```python
import torch

def _softmax(x, axis=-1):
    return torch.softmax(x, dim=axis)
def _gelu(x):
    return torch.nn.functional.gelu(x, approximate="tanh")
def _silu(x):
    return torch.nn.functional.silu(x)
def _sigmoid(x):
    return torch.sigmoid(x)
def _layernorm(x, axis=-1, eps=1e-5):
    m = x.mean(dim=axis, keepdim=True)
    v = x.var(dim=axis, keepdim=True, unbiased=False)
    return (x - m) / torch.sqrt(v + eps)
def _scatter_add(tgt, idx, src, axis=0):
    return tgt.clone().index_add_(axis, idx, src)
def _segment_sum(src, seg, n):
    out = torch.zeros((n,) + src.shape[1:], dtype=src.dtype)
    return out.index_add_(0, seg, src)
def _pad(x, pw):
    flat = tuple(v for pair in reversed(pw) for v in pair)
    return torch.nn.functional.pad(x, flat)

kernel_name = 'parallel_sum__softmax_full_mha__dense_activation_silu__prompt'

def setup_inputs():

    _w = (lambda a: (lambda t: t.to(torch.bfloat16) if t.is_floating_point() else t)(torch.as_tensor(a)))
    def _A_setup():
        B, S, D = 1, 2048, 1024
        return {
            "x": _w((lambda *s: torch.randn(*s, dtype=torch.bfloat16) * 0.05)(B, S, D)),
            "wqkv": _w((lambda *s: torch.randn(*s, dtype=torch.bfloat16) * 0.05)(D, 3 * D)),
            "wo": _w((lambda *s: torch.randn(*s, dtype=torch.bfloat16) * 0.05)(D, D)),
        }
    _A_in = _A_setup()

    def _B_setup():
        B, S, D, F = 1, 2048, 1024, 3584
        return {
            "x": _w((lambda *s: torch.randn(*s, dtype=torch.bfloat16) * 0.05)(B, S, D)),
            "w1": _w((lambda *s: torch.randn(*s, dtype=torch.bfloat16) * 3.2)(D, F) * (D ** -0.5)),
            "w2": _w((lambda *s: torch.randn(*s, dtype=torch.bfloat16) * 0.4)(F, D) * (F ** -0.5)),
        }
    _B_in = _B_setup()

    return {
        "A_x": _A_in["x"],
        "A_wqkv": _A_in["wqkv"],
        "A_wo": _A_in["wo"],
        "B_x": _B_in["x"],
        "B_w1": _B_in["w1"],
        "B_w2": _B_in["w2"],
    }

def reference(A_x, A_wqkv, A_wo, B_x, B_w1, B_w2):
    def _A_ref(x, wqkv, wo):
        B, S, D = x.shape
        H = 32; Dh = D // H
        qkv = (lambda x, *d: x.permute(*d))((x @ wqkv).reshape(B, S, 3, H, Dh), 2, 0, 3, 1, 4)
        q, k, v = qkv[0], qkv[1], qkv[2]
        scale = Dh ** -0.5
        scores = torch.einsum("bhqd,bhkd->bhqk", q, k) * scale
        p = _softmax(scores, axis=-1)
        o = torch.einsum("bhqk,bhkd->bhqd", p, v)
        return (lambda x, *d: x.permute(*d))(o, 0, 2, 1, 3).reshape(B, S, D) @ wo

    def _B_ref(x, w1, w2):
        h = torch.einsum("bsd,df->bsf", x, w1)
        h = _silu(h)
        out = torch.einsum("bsf,fd->bsd", h, w2)
        return out

    x = A_x
    xn = _layernorm(x, axis=-1)
    return x + _A_ref(xn, A_wqkv, A_wo) + _B_ref(xn, B_w1, B_w2)
```

```python
class Asm:
    def __init__(self):
        self.lines = []
    def __call__(self, s=""):
        for l in s.split("\n"):
            l = l.strip()
            if l:
                self.lines.append("    " + l)
    def label(self, l):
        self.lines.append(l + ":")
    def raw(self, s):
        self.lines.append(s)
    def c(self, s):
        self.lines.append("    ; " + s)
    def text(self):
        return "\n".join(self.lines) + "\n"

def v(i, n=1):
    return f"v{i}" if n == 1 else f"v[{i}:{i+n-1}]"
def a(i, n=1):
    return f"a{i}" if n == 1 else f"a[{i}:{i+n-1}]"
def s(i, n=1):
    return f"s{i}" if n == 1 else f"s[{i}:{i+n-1}]"

def kernel_begin(A, name):
    A.raw(".text")
    A.raw(f".globl {name}")
    A.raw(".p2align 8")
    A.raw(f".type {name},@function")
    A.label(name)

def kernel_end(A, name, vgpr, accum, sgpr=102):
    A.raw('.section .rodata,"a"')
    A.raw(".p2align 6")
    A.raw(f".amdhsa_kernel {name}")
    A.raw(f"  .amdhsa_next_free_vgpr {vgpr}")
    A.raw(f"  .amdhsa_next_free_sgpr {sgpr}")
    A.raw(f"  .amdhsa_accum_offset {accum}")
    A.raw("  .amdhsa_group_segment_fixed_size 0")
    A.raw("  .amdhsa_kernarg_size 72")
    A.raw("  .amdhsa_user_sgpr_count 2")
    A.raw("  .amdhsa_user_sgpr_kernarg_segment_ptr 1")
    A.raw("  .amdhsa_system_sgpr_workgroup_id_x 1")
    A.raw("  .amdhsa_float_denorm_mode_32 3")
    A.raw(".end_amdhsa_kernel")

def srd(A, d, base_lo, base_hi, nbytes):
    A(f"s_mov_b32 s{d}, {base_lo}")
    A(f"s_and_b32 s{d+1}, {base_hi}, 0xffff")
    A(f"s_mov_b32 s{d+2}, {nbytes}")
    A(f"s_mov_b32 s{d+3}, 0x00020000")

def fbits(x):
    import struct
    return "0x%08x" % struct.unpack("<I", struct.pack("<f", x))[0]
```

```python
from asmlib import *
from layout import *
import math

R = 8
V_L16 = 2
Q = {'a': 8, 'b': 16}
S = {'a': 32, 'b': 48}
P = {'a': 64, 'b': 72}
O = {'a': 80, 'b': 96}
L = {'a': 112, 'b': 116}
SEL = 120
M = {'a': 124, 'b': 125}
LS = {'a': 126, 'b': 127}
NV = 144
def kreg(slot, j): return slot * 16 + j * 4
def vreg(slot, j): return slot * 16 + 8 + j * 4
NA = R * 16
S_K = 8; S_V = 12; S_Q = 16; S_O = 20; S_N = 24
S_KOFF = 28; S_IT = 29; S_WV = 30; S_HEAD = 31; S_TB = 32

def qk(x, slot, j):
    c = "0" if j == 0 else v(S[x], 16)
    return f"v_mfma_f32_32x32x16_bf16 {v(S[x],16)}, {a(kreg(slot, j),4)}, {v(Q[x]+4*j,4)}, {c}"
def pv(x, slot, j):
    return f"v_mfma_f32_32x32x16_bf16 {v(O[x],16)}, {a(vreg(slot, j),4)}, {v(P[x]+4*j,4)}, {v(O[x],16)}"
def rs(x, j):
    return f"v_mfma_f32_16x16x32_bf16 {v(L[x],4)}, {v(SEL,4)}, {v(P[x]+4*j,4)}, {v(L[x],4)}"
def kload(slot, j, off):
    return f"buffer_load_dwordx4 {a(kreg(slot, j),4)}, {v(V_L16)}, s[{S_K}:{S_K+3}], s{S_KOFF} offen offset:{off + j*1024}"
def vload(slot, j, off):
    return f"buffer_load_dwordx4 {a(vreg(slot, j),4)}, {v(V_L16)}, s[{S_V}:{S_V+3}], s{S_KOFF} offen offset:{off + j*1024}"

def half(A, x, mf, extra):
    e = [f"v_exp_f32 {v(S[x]+i)}, {v(S[x]+i)}" for i in range(16)]
    c = [f"v_cvt_pk_bf16_f32 {v(P[x]+i)}, {v(S[x]+2*i)}, {v(S[x]+2*i+1)}" for i in range(8)]
    seq = [e[0], e[1], e[2], e[3], c[0], e[4], e[5], c[1], e[6], e[7], c[2], e[8], e[9], c[3],
           e[10], e[11], c[4], e[12], e[13], c[5], e[14], e[15], c[6], c[7]]
    mpos = [0, 3, 8, 12, 17, 21]
    k = 0
    for i, ins in enumerate(seq):
        if k < len(mf) and i == mpos[k]:
            A(mf[k]); k += 1
        A(ins)
        for z in extra.get(i, []): A(z)

def gen_attn(name):
    A = Asm()
    kernel_begin(A, name)
    end = f"L_{name}_end"
    A("s_cmp_ge_u32 s2, 256")
    A(f"s_cbranch_scc1 {end}")
    A(f"s_load_dwordx2 s[4:5], s[0:1], {KARG['ws']}")
    A("s_and_b32 s3, s2, 7")
    A("s_lshr_b32 s6, s2, 3")
    A("s_lshl_b32 s3, s3, 2")
    A("s_lshr_b32 s7, s6, 3")
    A(f"s_add_u32 s{S_HEAD}, s3, s7")
    A("s_and_b32 s6, s6, 7")
    A("v_and_b32 v1, 63, v0")
    A("v_lshrrev_b32 v3, 6, v0")
    A(f"v_lshlrev_b32 {v(V_L16)}, 4, v1")
    A(f"v_readfirstlane_b32 s{S_WV}, v3")
    A("s_nop 1")
    A("s_lshl_b32 s6, s6, 3")
    A(f"s_lshl_b32 s7, s{S_WV}, 1")
    A(f"s_add_u32 s{S_TB}, s6, s7")
    A("s_waitcnt lgkmcnt(0)")
    A(f"s_lshl_b32 s6, s{S_HEAD}, 17")
    A(f"s_add_u32 s34, s4, {QKV_OFF}")
    A("s_addc_u32 s35, s5, 0")
    A("s_add_u32 s34, s34, s6")
    A("s_addc_u32 s35, s35, 0")
    srd(A, S_Q, "s34", "s35", 131072)
    A(f"s_add_u32 s34, s34, {32*131072}")
    A("s_addc_u32 s35, s35, 0")
    srd(A, S_K, "s34", "s35", 131072)
    A(f"s_add_u32 s34, s34, {32*131072}")
    A("s_addc_u32 s35, s35, 0")
    srd(A, S_V, "s34", "s35", 131072)
    A(f"s_add_u32 s34, s4, {NRM_OFF}")
    A("s_addc_u32 s35, s5, 0")
    srd(A, S_N, "s34", "s35", 512*1024)
    A(f"s_add_u32 s34, s4, {AH_OFF}")
    A("s_addc_u32 s35, s5, 0")
    srd(A, S_O, "s34", "s35", 64*AH_TB)
    A(f"s_lshl_b32 s6, s{S_TB}, 11")
    for xi, x in enumerate("ab"):
        for j in range(2):
            A(f"buffer_load_dwordx4 {v(Q[x]+4*j,4)}, {v(V_L16)}, s[{S_Q}:{S_Q+3}], s6 offen offset:{xi*2048 + j*1024}")
    A(f"s_mov_b32 s{S_KOFF}, 0")
    A(kload(0, 0, 0)); A(kload(0, 1, 0))
    A(f"s_lshl_b32 s6, s{S_HEAD}, 13")
    A(f"s_lshl_b32 s7, s{S_TB}, 7")
    A("s_add_u32 s7, s7, s6")
    A("v_lshlrev_b32 v3, 2, v1")
    A(f"buffer_load_dword v4, v3, s[{S_N}:{S_N+3}], s7 offen")
    A(f"s_add_u32 s6, s6, {32*8192}")
    for i in range(8):
        A(f"buffer_load_dwordx4 {v(32+4*i,4)}, {v(V_L16)}, s[{S_N}:{S_N+3}], s6 offen offset:{(i&3)*1024}")
        if i == 3: A("s_add_u32 s6, s6, 4096")
    for r in range(8):
        A(f"v_accvgpr_write_b32 {a(vreg(7,0)+r)}, 0")
    for kb in range(-7, 0):
        kk = kb + 8; vv = kb + 7
        offk = kk * 2048; offv = vv * 2048
        A(f"s_mov_b32 s{S_KOFF}, {offk}")
        A(kload(kk % R, 0, 0)); A(kload(kk % R, 1, 0))
        A(f"s_mov_b32 s{S_KOFF}, {offv}")
        A(vload(vv % R, 0, 0)); A(vload(vv % R, 1, 0))
    for x in "ab":
        for r in range(16): A(f"v_mov_b32 {v(O[x]+r)}, 0")
        for r in range(4): A(f"v_mov_b32 {v(L[x]+r)}, 0")
    for r in range(8): A(f"v_mov_b32 {v(P['b']+r)}, 0")
    A("v_and_b32 v5, 15, v1")
    A("v_lshrrev_b32 v6, 4, v1")
    A("v_and_b32 v6, 1, v6")
    A("v_cmp_eq_u32 vcc, v5, v6")
    A("v_mov_b32 v7, 0x3f803f80")
    A("s_nop 0")
    for r in range(4):
        A(f"v_cndmask_b32 {v(SEL+r)}, 0, v7, vcc")
    A("s_waitcnt vmcnt(28)")
    for i in range(16):
        A(f"v_max_f32 {v(32+i)}, {v(32+i)}, {v(48+i)}")
    n = 16
    while n > 1:
        n //= 2
        for i in range(n):
            A(f"v_max_f32 {v(32+i)}, {v(32+i)}, {v(32+i+n)}")
    def wave_max(r, sd):
        for sh in (8, 4, 2, 1):
            A("s_nop 1")
            A(f"v_max_f32_dpp {v(r)}, {v(r)}, {v(r)} row_ror:{sh} row_mask:0xf bank_mask:0xf")
        A("s_nop 1")
        A(f"v_readlane_b32 s36, {v(r)}, 0")
        A(f"v_readlane_b32 s37, {v(r)}, 16")
        A(f"v_readlane_b32 s38, {v(r)}, 32")
        A(f"v_readlane_b32 s39, {v(r)}, 48")
        A("s_nop 1")
        A("s_max_u32 s36, s36, s37")
        A("s_max_u32 s38, s38, s39")
        A(f"s_max_u32 s{sd}, s36, s38")
    wave_max(32, 40)
    wave_max(4, 41)
    A("v_mov_b32 v5, s40")
    A("v_mul_f32 v5, s41, v5")
    A(f"v_mov_b32 v6, {fbits(4000.0)}")
    A("v_cmp_le_f32 vcc, v5, v6")
    A("s_nop 4")
    A(f"s_cbranch_vccz L_{name}_slow")
    A("s_waitcnt vmcnt(28)")
    A(qk('a', 0, 0)); A(qk('a', 0, 1))
    A(f"s_mov_b32 s{S_KOFF}, {8*2048}")
    A(f"s_movk_i32 s{S_IT}, 8")
    A("s_nop 7"); A("s_nop 7")
    A.raw(".p2align 6")
    A.label(f"L_{name}_loop")
    for u in range(R):
        half(A, 'a', [qk('b', u, 0), qk('b', u, 1), pv('b', (u-1) % R, 0), pv('b', (u-1) % R, 1), rs('b', 0), rs('b', 1)], {})
        A("s_waitcnt vmcnt(24)")
        ex = {}
        def ld(kind, slot, rel):
            return [f"s_add_u32 s33, s{S_KOFF}, {rel*2048}" if rel >= 0 else f"s_sub_u32 s33, s{S_KOFF}, {-rel*2048}"]
        def kl(slot, j): return f"buffer_load_dwordx4 {a(kreg(slot, j),4)}, {v(V_L16)}, s[{S_K}:{S_K+3}], s33 offen offset:{j*1024}"
        def vl(slot, j): return f"buffer_load_dwordx4 {a(vreg(slot, j),4)}, {v(V_L16)}, s[{S_V}:{S_V+3}], s33 offen offset:{j*1024}"
        ex[4] = ld('k', u, u) + [kl(u, 0)]
        ex[7] = [kl(u, 1)]
        ex[13] = ld('v', (u-1) % R, u-1) + [vl((u-1) % R, 0)]
        ex[16] = [vl((u-1) % R, 1)]
        half(A, 'b', [qk('a', (u+1) % R, 0), qk('a', (u+1) % R, 1), pv('a', u, 0), pv('a', u, 1), rs('a', 0), rs('a', 1)], ex)
    A(f"s_add_u32 s{S_KOFF}, s{S_KOFF}, {R*2048}")
    A(f"s_sub_u32 s{S_IT}, s{S_IT}, 1")
    A(f"s_cmp_lg_u32 s{S_IT}, 0")
    A(f"s_cbranch_scc1 L_{name}_loop")
    A("s_nop 1")
    A(pv('b', 7, 0)); A(pv('b', 7, 1)); A(rs('b', 0)); A(rs('b', 1))
    A("s_nop 7"); A("s_nop 7")
    A("v_and_b32 v3, 15, v1")
    A("v_lshlrev_b32 v3, 2, v3")
    A("v_lshrrev_b32 v4, 4, v1")
    A("v_and_b32 v4, 1, v4")
    A("v_cmp_eq_u32 vcc, 1, v4")
    for x in "ab":
        A(f"ds_bpermute_b32 v5, v3, {v(L[x])}")
        A(f"ds_bpermute_b32 v6, v3, {v(L[x]+1)}")
        A("s_waitcnt lgkmcnt(0)")
        A(f"v_cndmask_b32 {v(LS[x])}, v5, v6, vcc")
    A(f"s_branch L_{name}_fin")
    A.label(f"L_{name}_slow")
    A("s_waitcnt vmcnt(0)")
    for x in "ab":
        A(f"v_mov_b32 {v(M[x])}, 0xff800000")
        A(f"v_mov_b32 {v(LS[x])}, 0")
    A(f"s_mov_b32 s{S_KOFF}, 0")
    A(f"s_movk_i32 s{S_IT}, 64")
    A.label(f"L_{name}_sloop")
    A(kload(0, 0, 0)); A(kload(0, 1, 0)); A(vload(0, 0, 0)); A(vload(0, 1, 0))
    A("s_waitcnt vmcnt(0)")
    for x in "ab":
        A(qk(x, 0, 0)); A(qk(x, 0, 1))
        A("s_nop 7"); A("s_nop 7")
        A(f"v_max3_f32 v3, {v(S[x])}, {v(S[x]+1)}, {v(M[x])}")
        for i in range(2, 16, 2):
            A(f"v_max3_f32 v3, {v(S[x]+i)}, {v(S[x]+i+1)}, v3")
        A("v_mov_b32 v4, v3")
        A("s_nop 1")
        A("v_permlane32_swap_b32 v3, v4")
        A("s_nop 1")
        A("v_max_f32 v3, v3, v4")
        A(f"v_sub_f32 v4, {v(M[x])}, v3")
        A("v_exp_f32 v4, v4")
        A(f"v_mov_b32 {v(M[x])}, v3")
        for i in range(16):
            A(f"v_sub_f32 {v(S[x]+i)}, {v(S[x]+i)}, v3")
        for i in range(16):
            A(f"v_exp_f32 {v(S[x]+i)}, {v(S[x]+i)}")
        for i in range(16):
            A(f"v_mul_f32 {v(O[x]+i)}, {v(O[x]+i)}, v4")
        for i in range(8):
            A(f"v_cvt_pk_bf16_f32 {v(P[x]+i)}, {v(S[x]+2*i)}, {v(S[x]+2*i+1)}")
        A(f"v_mul_f32 {v(LS[x])}, {v(LS[x])}, v4")
        for i in range(16):
            A(f"v_add_f32 {v(LS[x])}, {v(LS[x])}, {v(S[x]+i)}")
        A(pv(x, 0, 0)); A(pv(x, 0, 1))
        A("s_nop 7"); A("s_nop 7")
    A(f"s_add_u32 s{S_KOFF}, s{S_KOFF}, 2048")
    A(f"s_sub_u32 s{S_IT}, s{S_IT}, 1")
    A(f"s_cmp_lg_u32 s{S_IT}, 0")
    A(f"s_cbranch_scc1 L_{name}_sloop")
    for x in "ab":
        A(f"v_mov_b32 v4, {v(LS[x])}")
        A("s_nop 1")
        A(f"v_permlane32_swap_b32 {v(LS[x])}, v4")
        A("s_nop 1")
        A(f"v_add_f32 {v(LS[x])}, {v(LS[x])}, v4")
    A.label(f"L_{name}_fin")
    A(f"s_mul_i32 s6, s{S_TB}, {AH_TB}")
    A(f"s_lshl_b32 s7, s{S_HEAD}, 11")
    A("s_add_u32 s6, s6, s7")
    for xi, x in enumerate("ab"):
        A(f"v_rcp_f32 v4, {v(LS[x])}")
        A("s_nop 0")
        for i in range(16):
            A(f"v_mul_f32 {v(O[x]+i)}, {v(O[x]+i)}, v4")
        for i in range(8):
            A(f"v_cvt_pk_bf16_f32 {v(O[x]+i)}, {v(O[x]+2*i)}, {v(O[x]+2*i+1)}")
        A(f"buffer_store_dwordx4 {v(O[x],4)}, {v(V_L16)}, s[{S_O}:{S_O+3}], s6 offen")
        A(f"buffer_store_dwordx4 {v(O[x]+4,4)}, {v(V_L16)}, s[{S_O}:{S_O+3}], s6 offen offset:1024")
        if xi == 0: A(f"s_add_u32 s6, s6, {AH_TB}")
    A.label(end)
    A("s_endpgm")
    kernel_end(A, name, NV + NA, NV, 64)
    return A.text(), dict(grid=256, block=256, lds=0)
```

```python
from asmlib import *
from layout import *
import math

NB = 7
ACC0 = 32
def acc(nb, tbi): return ACC0 + (nb * 2 + tbi) * 16
AR0 = 0
def areg(step, tbi): return AR0 + (step * 2 + tbi) * 4
BR0 = 64
def breg(buf, nb): return BR0 + (buf * NB + nb) * 4
NAGPR = 120
SLOT = 32768
PITCH = 448
V_DMA = 8
V_A = 16
V_TR = 18
V_LANE16 = 19
S_W = 8
S_X = 12
S_O = 16
S_N = 20
S_WOFF = 24
S_AOFF = 25
S_M0A = 26
S_IT = 27
S_LDW = 28
S_STG = 29
S_WV = 30
S_MT = 31
S_BLK0 = 32
S_TYPE = 33
S_T0, S_T1, S_T2, S_T3 = 34, 35, 36, 37
S_M0CUR = 38

def build_body(swap):
    steps = []
    for n in range(8):
        slots = []
        for nb in range(NB):
            for tbi in range(2):
                d = v(acc(nb, tbi), 16)
                w = a(breg(n & 1, nb), 4)
                x = a(areg(n, tbi), 4)
                m = f"v_mfma_f32_32x32x16_bf16 {d}, {x}, {w}, {d}" if swap else f"v_mfma_f32_32x32x16_bf16 {d}, {w}, {x}, {d}"
                slots.append([m, []])
        steps.append(slots)
    return steps

def tr_reads(n):
    out = []
    stage_par = (n >> 2) & 1
    ks4 = n & 3
    for nb in range(NB):
        for h in range(2):
            off = stage_par * SLOT + ks4 * 16 * PITCH + nb * 64 + h * 4 * PITCH
            out.append(f"ds_read_b64_tr_b16 {a(breg(n & 1, nb) + 2 * h, 2)}, {v(V_TR)} offset:{off}")
    return out

def a_load(slot, tbi, koff):
    return f"buffer_load_dwordx4 {a(areg(slot, tbi), 4)}, {v(V_A + tbi)}, s[{S_X}:{S_X+3}], s{S_AOFF} offen offset:{koff}"

def dma(i):
    return f"buffer_load_dwordx4 {v(V_DMA + i)}, s[{S_W}:{S_W+3}], s{S_WOFF} offen offset:{(i & 3) * 1024} lds"

def gen_mainloop(A, name, swap):
    steps = build_body(swap)
    seq = []
    def put(n, sl, ins, tag=None):
        steps[n][sl][1].append(ins)
        if tag: seq.append((n, sl, len(steps[n][sl][1]), tag))
    for n in range(8):
        rd = tr_reads(n + 1)
        if n == 7:
            put(n, 0, f"v_xor_b32 {v(V_TR)}, 0x10000, {v(V_TR)}")
            put(n, 0, "s_nop 0")
        for i, r in enumerate(rd):
            put(n, (i // 2) + (1 if n == 7 else 0), r)
        pn = (n - 1) % 8
        if n == 1:
            put(n, 7, f"s_add_u32 s{S_AOFF}, s{S_AOFF}, 2048")
            put(n, 7, f"s_cmp_eq_u32 s{S_IT}, 1")
            put(n, 7, f"s_cselect_b32 s{S_X+2}, 0, s{S_X+2}")
        put(n, 8, a_load(pn, 0, pn * 256), ('A', pn, 0))
        put(n, 9, a_load(pn, 1, pn * 256), ('A', pn, 1))
        ph = (n - 3) % 4
        idx = [[0, 1], [2, 3], [4, 5], [6]][ph]
        if ph == 0:
            put(n, 9, f"s_add_u32 s{S_WOFF}, s{S_WOFF}, s{S_STG}")
            put(n, 9, f"s_add_u32 s{S_M0CUR}, s{S_M0CUR}, {SLOT}")
            put(n, 9, f"s_and_b32 s{S_M0CUR}, s{S_M0CUR}, {4 * SLOT - 1}")
            put(n, 10, f"s_mov_b32 m0, s{S_M0CUR}")
            put(n, 10, "s_nop 0")
        if ph == 2:
            put(n, 10, f"s_add_u32 s{S_T0}, s{S_M0CUR}, 4096")
            put(n, 10, f"s_mov_b32 m0, s{S_T0}")
            put(n, 10, "s_nop 0")
        for k, i in enumerate(idx):
            put(n, 11 + k, dma(i), ('W', n, i))
    seq.sort(key=lambda e: (e[0], e[1], e[2]))
    tags = [e[3] for e in seq]
    pos = [(e[0], e[1]) for e in seq]
    NV = len(seq)
    def count_after(pred, at_step):
        order = [i for i in range(NV) if pos[i][0] >= at_step] + [i for i in range(NV) if pos[i][0] < at_step]
        last = max(k for k, i in enumerate(order) if pred(tags[i], pos[i]))
        return NV - 1 - last
    pre_waits = {}
    for n in range(8):
        N = count_after(lambda t, p: t[0] == 'A' and t[1] == n, n)
        pre_waits[n] = N
    out = []
    for n in range(8):
        pre = [f"s_waitcnt vmcnt({pre_waits[n]}) lgkmcnt(0)"]
        if n in (3, 7):
            pre.append("s_barrier")
        out.append((pre, steps[n]))
    A.raw(".p2align 6")
    A.label(f"L_{name}_loop")
    for n, (pre, slots) in enumerate(out):
        A.c(f"---- step {n}")
        for p in pre: A(p)
        for m, f in slots:
            A(m)
            for x in f: A(x)
    A(f"s_sub_u32 s{S_IT}, s{S_IT}, 1")
    A(f"s_cmp_lg_u32 s{S_IT}, 0")
    A(f"s_cbranch_scc1 L_{name}_loop")
    return seq, pre_waits

def gen_gemm1(name):
    A = Asm()
    kernel_begin(A, name)
    end = f"L_{name}_end"
    A("s_cmp_ge_u32 s2, 256")
    A(f"s_cbranch_scc1 {end}")
    A("s_and_b32 s3, s2, 7")
    A("s_lshr_b32 s4, s2, 3")
    A("s_and_b32 s5, s3, 1")
    A("s_lshl_b32 s5, s5, 2")
    A("s_and_b32 s6, s4, 3")
    A(f"s_add_u32 s{S_MT}, s5, s6")
    A("s_lshr_b32 s5, s3, 1")
    A("s_lshl_b32 s5, s5, 3")
    A("s_lshr_b32 s6, s4, 2")
    A("s_add_u32 s3, s5, s6")
    A("s_cmp_ge_u32 s3, 31")
    A(f"s_cbranch_scc1 {end}")
    A(f"s_load_dwordx2 s[4:5], s[0:1], {KARG['wqkv']}")
    A(f"s_load_dwordx2 s[6:7], s[0:1], {KARG['w1']}")
    A(f"s_load_dwordx2 s[40:41], s[0:1], {KARG['ws']}")
    A("v_and_b32 v1, 63, v0")
    A("v_lshrrev_b32 v2, 6, v0")
    A("s_nop 0")
    A(f"v_readfirstlane_b32 s{S_WV}, v2")
    A("s_cmp_lt_u32 s3, 15")
    A(f"s_cbranch_scc1 L_{name}_qkv")
    A(f"s_mov_b32 s{S_TYPE}, 2")
    A("s_sub_u32 s3, s3, 15")
    A(f"s_mul_i32 s{S_BLK0}, s3, 7")
    A(f"s_mov_b32 s{S_LDW}, 7168")
    A("s_waitcnt lgkmcnt(0)")
    A("s_mov_b32 s4, s6")
    A("s_mov_b32 s5, s7")
    A(f"s_mov_b32 s{S_T1}, {1024 * 7168}")
    A(f"s_branch L_{name}_common")
    A.label(f"L_{name}_qkv")
    A(f"s_mov_b32 s{S_LDW}, 6144")
    A(f"s_mov_b32 s{S_T1}, {1024 * 6144}")
    A("s_cmp_lt_u32 s3, 10")
    A(f"s_cbranch_scc1 L_{name}_qk")
    A(f"s_mov_b32 s{S_TYPE}, 1")
    A("s_sub_u32 s3, s3, 10")
    A("s_mul_i32 s3, s3, 7")
    A("s_min_u32 s3, s3, 25")
    A(f"s_add_u32 s{S_BLK0}, s3, 64")
    A("s_waitcnt lgkmcnt(0)")
    A(f"s_branch L_{name}_common")
    A.label(f"L_{name}_qk")
    A(f"s_mov_b32 s{S_TYPE}, 0")
    A("s_mul_i32 s3, s3, 7")
    A(f"s_min_u32 s{S_BLK0}, s3, 57")
    A("s_waitcnt lgkmcnt(0)")
    A.label(f"L_{name}_common")
    A(f"s_lshl_b32 s{S_T0}, s{S_BLK0}, 6")
    A(f"s_add_u32 s4, s4, s{S_T0}")
    A("s_addc_u32 s5, s5, 0")
    A(f"s_sub_u32 s{S_T1}, s{S_T1}, s{S_T0}")
    srd(A, S_W, "s4", "s5", f"s{S_T1}")
    A(f"s_add_u32 s4, s40, {XN_OFF}")
    A("s_addc_u32 s5, s41, 0")
    srd(A, S_X, "s4", "s5", 4 * MB)
    A(f"s_lshl_b32 s{S_STG}, s{S_LDW}, 6")
    A(f"s_lshl_b32 s{S_T0}, s{S_WV}, 4")
    A(f"s_movk_i32 s{S_T2}, 2341")
    for i in range(NB):
        A(f"v_add_u32 v3, {64 * i}, v1")
        A(f"v_mul_u32_u24 v4, s{S_T2}, v3")
        A("v_lshrrev_b32 v4, 16, v4")
        A("v_mul_u32_u24 v5, 28, v4")
        A("v_sub_u32 v5, v3, v5")
        A(f"v_add_u32 v4, s{S_T0}, v4")
        A(f"v_mul_lo_u32 v4, v4, s{S_LDW}")
        A(f"v_lshl_add_u32 v4, v5, 4, v4")
        if i & 3:
            A(f"v_subrev_u32 {v(V_DMA + i)}, {(i & 3) * 1024}, v4")
        else:
            A(f"v_mov_b32 {v(V_DMA + i)}, v4")
    A("v_and_b32 v3, 31, v1")
    A("v_lshrrev_b32 v4, 5, v1")
    A("v_lshrrev_b32 v5, 3, v3")
    A("v_and_b32 v6, 7, v3")
    A("v_lshlrev_b32 v6, 4, v6")
    A("v_lshl_add_u32 v6, v4, 7, v6")
    A("v_lshl_add_u32 v6, v5, 14, v6")
    A(f"s_lshl_b32 s{S_T0}, s{S_MT}, 3")
    A(f"s_lshl_b32 s{S_T1}, s{S_WV}, 1")
    A(f"s_add_u32 s{S_T0}, s{S_T0}, s{S_T1}")
    A(f"s_lshl_b32 s{S_T1}, s{S_T0}, 16")
    A(f"v_add_u32 {v(V_A)}, s{S_T1}, v6")
    A(f"v_add_u32 {v(V_A + 1)}, 0x10000, {v(V_A)}")
    A(f"s_mov_b32 s39, s{S_T0}")
    A("v_lshrrev_b32 v3, 2, v1")
    A("v_and_b32 v3, 3, v3")
    A("v_lshl_add_u32 v3, v4, 3, v3")
    A(f"v_mul_u32_u24 v3, {PITCH}, v3")
    A("v_lshrrev_b32 v5, 4, v1")
    A("v_and_b32 v5, 1, v5")
    A("v_lshl_add_u32 v3, v5, 5, v3")
    A("v_and_b32 v5, 3, v1")
    A(f"v_lshl_add_u32 {v(V_TR)}, v5, 3, v3")
    A(f"v_lshlrev_b32 {v(V_LANE16)}, 4, v1")
    A(f"s_mul_i32 s{S_M0A}, s{S_WV}, {16 * PITCH}")
    def dma_stage_setup(stage):
        A(f"s_mul_i32 s{S_WOFF}, s{S_STG}, {stage}")
        A(f"s_add_u32 s{S_M0CUR}, s{S_M0A}, {(stage & 3) * SLOT}")
    def set_m0(hi):
        if hi:
            A(f"s_add_u32 s{S_T0}, s{S_M0CUR}, 4096")
            A(f"s_mov_b32 m0, s{S_T0}")
        else:
            A(f"s_mov_b32 m0, s{S_M0CUR}")
        A("s_nop 0")
    A(f"s_mov_b32 s{S_AOFF}, 0")
    dma_stage_setup(0); set_m0(0)
    for i in range(4): A(dma(i))
    set_m0(1)
    for i in range(4, 7): A(dma(i))
    dma_stage_setup(1); set_m0(0)
    A(dma(0)); A(dma(1))
    A(dma(2)); A(dma(3))
    A(a_load(0, 0, 0)); A(a_load(0, 1, 0))
    set_m0(1); A(dma(4)); A(dma(5))
    A(a_load(1, 0, 256)); A(a_load(1, 1, 256)); A(dma(6))
    A(a_load(2, 0, 512)); A(a_load(2, 1, 512))
    dma_stage_setup(2); set_m0(0); A(dma(0)); A(dma(1))
    A(a_load(3, 0, 768)); A(a_load(3, 1, 768)); A(dma(2)); A(dma(3))
    A(a_load(4, 0, 1024)); A(a_load(4, 1, 1024)); set_m0(1); A(dma(4)); A(dma(5))
    A(a_load(5, 0, 1280)); A(a_load(5, 1, 1280)); A(dma(6))
    A(a_load(6, 0, 1536)); A(a_load(6, 1, 1536))
    dma_stage_setup(3); set_m0(0); A(dma(0)); A(dma(1))
    for r in range(ACC0, ACC0 + 224):
        A(f"v_mov_b32 {v(r)}, 0")
    A(f"s_movk_i32 s{S_IT}, 8")
    A("s_waitcnt vmcnt(30)")
    A("s_barrier")
    for r in tr_reads(0): A(r)
    A(f"s_cmp_eq_u32 s{S_TYPE}, 1")
    A(f"s_cbranch_scc1 L_{name}_vpath")
    gen_mainloop(A, name + "_n", False)
    A(f"s_cmp_eq_u32 s{S_TYPE}, 2")
    A(f"s_cbranch_scc1 L_{name}_epi_h")
    A.label(f"L_{name}_epi_qk")
    A("s_nop 7"); A("s_nop 7")
    A(f"s_add_u32 s4, s40, {QKV_OFF}")
    A("s_addc_u32 s5, s41, 0")
    srd(A, S_O, "s4", "s5", 12 * MB)
    A(f"s_add_u32 s4, s40, {NRM_OFF}")
    A("s_addc_u32 s5, s41, 0")
    srd(A, S_N, "s4", "s5", 512 * 1024)
    c = (32 ** -0.5) * math.log2(math.e)
    A("v_and_b32 v3, 31, v1")
    A("v_lshlrev_b32 v3, 2, v3")
    for nb in range(NB):
        A(f"s_add_u32 s{S_T0}, s{S_BLK0}, {nb}")
        A(f"s_cmp_lt_u32 s{S_T0}, 32")
        A(f"s_cselect_b32 s42, {fbits(c)}, 1.0")
        A(f"s_mov_b32 s43, s42")
        A(f"s_lshl_b32 s{S_T1}, s{S_T0}, 17")
        A(f"s_lshl_b32 s{S_T2}, s39, 11")
        A(f"s_add_u32 s{S_T1}, s{S_T1}, s{S_T2}")
        A(f"s_lshl_b32 s{S_T2}, s{S_T0}, 13")
        A(f"s_lshl_b32 s{S_T3}, s39, 7")
        A(f"s_add_u32 s{S_T2}, s{S_T2}, s{S_T3}")
        for tbi in range(2):
            b = acc(nb, tbi)
            for i in range(8):
                A(f"v_pk_mul_f32 {v(b + 2 * i, 2)}, {v(b + 2 * i, 2)}, s[42:43]")
            A(f"v_pk_mul_f32 v[4:5], {v(b, 2)}, {v(b, 2)}")
            for i in range(1, 8):
                A(f"v_pk_fma_f32 v[4:5], {v(b + 2 * i, 2)}, {v(b + 2 * i, 2)}, v[4:5]")
            for i in range(8):
                A(f"v_cvt_pk_bf16_f32 {v(b + i)}, {v(b + 2 * i)}, {v(b + 2 * i + 1)}")
            A("v_add_f32 v4, v4, v5")
            A("v_mov_b32 v5, v4")
            A(f"buffer_store_dwordx4 {v(b, 4)}, {v(V_LANE16)}, s[{S_O}:{S_O+3}], s{S_T1} offen offset:{tbi * 2048}")
            A(f"buffer_store_dwordx4 {v(b + 4, 4)}, {v(V_LANE16)}, s[{S_O}:{S_O+3}], s{S_T1} offen offset:{tbi * 2048 + 1024}")
            A(f"v_permlane32_swap_b32 v4, v5")
            A("v_add_f32 v4, v4, v5")
            A(f"buffer_store_dword v4, v3, s[{S_N}:{S_N+3}], s{S_T2} offen offset:{tbi * 128}")
            A("s_nop 0")
    A(f"s_branch {end}")
    A.label(f"L_{name}_epi_h")
    A("s_nop 7"); A("s_nop 7")
    A(f"s_add_u32 s4, s40, {AH_OFF}")
    A("s_addc_u32 s5, s41, 0")
    srd(A, S_O, "s4", "s5", 64 * AH_TB)
    A(f"s_mov_b32 s42, {fbits(-math.log2(math.e))}")
    A("s_mov_b32 s43, s42")
    A("s_mov_b32 s44, 1.0")
    A("s_mov_b32 s45, 1.0")
    A(f"s_mul_i32 s{S_T1}, s39, {AH_TB}")
    A(f"s_lshl_b32 s{S_T2}, s{S_BLK0}, 11")
    A(f"s_add_u32 s{S_T1}, s{S_T1}, s{S_T2}")
    A(f"s_add_u32 s{S_T1}, s{S_T1}, {64 * 1024}")
    T = 8
    A(f"v_mov_b32 v24, {v(V_LANE16)}")
    for tbi in range(2):
        for nb in range(NB):
            b = acc(nb, tbi)
            for i in range(8):
                A(f"v_pk_mul_f32 {v(T + 2 * i, 2)}, {v(b + 2 * i, 2)}, s[42:43]")
            for i in range(16):
                A(f"v_exp_f32 {v(T + i)}, {v(T + i)}")
            for i in range(8):
                A(f"v_pk_add_f32 {v(T + 2 * i, 2)}, {v(T + 2 * i, 2)}, s[44:45]")
            for i in range(16):
                A(f"v_rcp_f32 {v(T + i)}, {v(T + i)}")
            for i in range(8):
                A(f"v_pk_mul_f32 {v(b + 2 * i, 2)}, {v(b + 2 * i, 2)}, {v(T + 2 * i, 2)}")
            for i in range(8):
                A(f"v_cvt_pk_bf16_f32 {v(b + i)}, {v(b + 2 * i)}, {v(b + 2 * i + 1)}")
            A(f"s_add_u32 s{S_T2}, s{S_T1}, {tbi * AH_TB + nb * 2048}")
            A(f"buffer_store_dwordx4 {v(b, 4)}, v24, s[{S_O}:{S_O+3}], s{S_T2} offen")
            A(f"buffer_store_dwordx4 {v(b + 4, 4)}, v24, s[{S_O}:{S_O+3}], s{S_T2} offen offset:1024")
    A(f"s_branch {end}")
    A.label(f"L_{name}_vpath")
    gen_mainloop(A, name + "_v", True)
    A("s_nop 7"); A("s_nop 7")
    A(f"s_add_u32 s4, s40, {QKV_OFF}")
    A("s_addc_u32 s5, s41, 0")
    srd(A, S_O, "s4", "s5", 12 * MB)
    A(f"s_lshl_b32 s{S_T1}, s{S_BLK0}, 17")
    A(f"s_lshl_b32 s{S_T2}, s39, 11")
    A(f"s_add_u32 s{S_T1}, s{S_T1}, s{S_T2}")
    for nb in range(NB):
        for tbi in range(2):
            b = acc(nb, tbi)
            for i in range(8):
                A(f"v_cvt_pk_bf16_f32 {v(b + i)}, {v(b + 2 * i)}, {v(b + 2 * i + 1)}")
            A(f"buffer_store_dwordx4 {v(b, 4)}, {v(V_LANE16)}, s[{S_O}:{S_O+3}], s{S_T1} offen offset:{tbi * 2048}")
            A(f"buffer_store_dwordx4 {v(b + 4, 4)}, {v(V_LANE16)}, s[{S_O}:{S_O+3}], s{S_T1} offen offset:{tbi * 2048 + 1024}")
        A(f"s_add_u32 s{S_T1}, s{S_T1}, 131072")
    A.label(end)
    A("s_endpgm")
    kernel_end(A, name, 256 + NAGPR, 256, 64)
    return A.text(), dict(grid=256, block=256, lds=4 * SLOT)
```

```python
from asmlib import *
from layout import *

NSTEP = 288
RING = 16
SLOT = 8192
NSLOT = 8
ACC = 32
def acc(nb): return ACC + 16 * nb
def areg(i): return i * 4
def breg(buf, nb): return 64 + (buf * 2 + nb) * 4
NA = 80
V_DMA = 8
V_A = 10
V_TR = 12
S_W = 8; S_A = 12; S_O = 16; S_X = 20; S_WO = 24; S_W2 = 28
S_WOFF = 32; S_AOFF = 33; S_M0 = 34; S_IT = 35; S_WV = 36; S_TB = 37; S_COL = 38; S_STAGE = 39

def tr_reads(n):
    out = []
    st = (n >> 2) & 3
    ks4 = n & 3
    for nb in range(2):
        for h in range(2):
            off = st * SLOT + ks4 * 16 * 128 + h * 8 * 128
            out.append(f"ds_read_b64_tr_b16 {a(breg(n & 1, nb) + 2*h, 2)}, {v(V_TR + nb)} offset:{off}")
    return out
def a_load(slot, imm):
    return f"buffer_load_dwordx4 {a(areg(slot),4)}, {v(V_A)}, s[{S_A}:{S_A+3}], s{S_AOFF} offen offset:{imm}"
def dma(i):
    return f"buffer_load_dwordx4 {v(V_DMA+i)}, s[{S_W}:{S_W+3}], s{S_WOFF} offen offset:{i*1024} lds"

def next_stage():
    return [f"s_add_u32 s{S_STAGE}, s{S_STAGE}, 1",
            f"s_add_u32 s{S_WOFF}, s{S_WOFF}, {64*2048}",
            f"s_cmp_eq_u32 s{S_STAGE}, 16",
            f"s_cselect_b32 s{S_WOFF}, 0, s{S_WOFF}",
            f"s_cselect_b32 s{S_W}, s{S_W2}, s{S_W}",
            f"s_cselect_b32 s{S_W+1}, s{S_W2+1}, s{S_W+1}",
            f"s_cselect_b32 s{S_W+2}, s{S_W2+2}, s{S_W+2}",
            f"s_add_u32 s{S_M0}, s{S_M0}, {SLOT}",
            f"s_and_b32 s{S_M0}, s{S_M0}, {NSLOT*SLOT-1}",
            f"s_mov_b32 m0, s{S_M0}"]

def gen_gemm2(name):
    A = Asm()
    kernel_begin(A, name)
    end = f"L_{name}_end"
    A("s_cmp_ge_u32 s2, 256")
    A(f"s_cbranch_scc1 {end}")
    A(f"s_load_dwordx2 s[4:5], s[0:1], {KARG['ws']}")
    A(f"s_load_dwordx2 s[{S_WO}:{S_WO+1}], s[0:1], {KARG['wo']}")
    A(f"s_load_dwordx2 s[{S_W2}:{S_W2+1}], s[0:1], {KARG['w2']}")
    A(f"s_load_dwordx2 s[6:7], s[0:1], {KARG['x']}")
    A(f"s_load_dwordx2 s[40:41], s[0:1], {KARG['out']}")
    A("s_and_b32 s3, s2, 7")
    A("s_lshr_b32 s42, s2, 3")
    A("s_and_b32 s43, s3, 3")
    A("s_lshl_b32 s43, s43, 2")
    A("s_and_b32 s44, s42, 3")
    A("s_add_u32 s43, s43, s44")
    A("s_lshr_b32 s3, s3, 2")
    A("s_lshl_b32 s3, s3, 3")
    A("s_lshr_b32 s42, s42, 2")
    A("s_add_u32 s3, s3, s42")
    A(f"s_lshl_b32 s{S_COL}, s3, 7")
    A("v_and_b32 v1, 63, v0")
    A("v_lshrrev_b32 v2, 6, v0")
    A("s_nop 0")
    A(f"v_readfirstlane_b32 s{S_WV}, v2")
    A("s_nop 1")
    A("s_lshl_b32 s43, s43, 2")
    A(f"s_add_u32 s{S_TB}, s43, s{S_WV}")
    A("s_waitcnt lgkmcnt(0)")
    A(f"s_add_u32 s{S_WO}, s{S_WO}, s{S_COL}")
    A(f"s_addc_u32 s{S_WO+1}, s{S_WO+1}, 0")
    A(f"s_sub_u32 s45, {1024*2048}, s{S_COL}")
    srd(A, S_W, f"s{S_WO}", f"s{S_WO+1}", "s45")
    A(f"s_add_u32 s{S_W2}, s{S_W2}, s{S_COL}")
    A(f"s_addc_u32 s{S_W2+1}, s{S_W2+1}, 0")
    A(f"s_and_b32 s{S_W2+1}, s{S_W2+1}, 0xffff")
    A(f"s_sub_u32 s{S_W2+2}, {3584*2048}, s{S_COL}")
    A(f"s_add_u32 s4, s4, {AH_OFF}")
    A("s_addc_u32 s5, s5, 0")
    A(f"s_mul_i32 s45, s{S_TB}, {AH_TB}")
    A("s_add_u32 s4, s4, s45")
    A("s_addc_u32 s5, s5, 0")
    srd(A, S_A, "s4", "s5", AH_TB)
    srd(A, S_X, "s6", "s7", 4*MB)
    srd(A, S_O, "s40", "s41", 4*MB)
    A(f"v_lshlrev_b32 {v(V_A)}, 4, v1")
    A("v_lshrrev_b32 v3, 3, v1")
    A("v_and_b32 v4, 7, v1")
    A("v_lshrrev_b32 v5, 1, v3")
    A("v_and_b32 v5, 1, v5")
    A("v_lshlrev_b32 v5, 2, v5")
    A("v_xor_b32 v4, v4, v5")
    A(f"s_lshl_b32 s45, s{S_WV}, 4")
    A("v_add_u32 v3, s45, v3")
    A("v_lshlrev_b32 v3, 11, v3")
    A("v_lshl_add_u32 v3, v4, 4, v3")
    A(f"v_mov_b32 {v(V_DMA)}, v3")
    A(f"v_add_u32 {v(V_DMA+1)}, {8*2048 - 1024}, v3")
    A("v_lshrrev_b32 v3, 5, v1")
    A("v_lshrrev_b32 v4, 2, v1")
    A("v_and_b32 v4, 3, v4")
    A("v_lshl_add_u32 v3, v3, 2, v4")
    A("v_lshlrev_b32 v3, 7, v3")
    A("v_lshrrev_b32 v4, 4, v1")
    A("v_and_b32 v4, 1, v4")
    A("v_lshl_add_u32 v3, v4, 5, v3")
    A("v_and_b32 v4, 3, v1")
    A("v_lshl_add_u32 v3, v4, 3, v3")
    A("v_lshrrev_b32 v4, 3, v1")
    A("v_and_b32 v4, 1, v4")
    A("v_lshlrev_b32 v4, 6, v4")
    A(f"v_add_u32 {v(V_TR)}, v3, v4")
    A("v_xor_b32 v4, 64, v4")
    A(f"v_add_u32 {v(V_TR+1)}, v3, v4")
    A(f"s_lshl_b32 s{S_M0}, s{S_WV}, 11")
    A(f"s_mov_b32 s{S_STAGE}, 0")
    A(f"s_mov_b32 s{S_WOFF}, 0")
    A(f"s_mov_b32 s{S_AOFF}, 0")
    A(f"s_mov_b32 m0, s{S_M0}")
    A("s_nop 0")
    A(dma(0)); A(dma(1))
    PD = 6
    for st in range(1, PD - 3):
        for z in next_stage(): A(z)
        A("s_nop 0")
        A(dma(0)); A(dma(1))
    for n in range(-16, 0):
        tgt = n - 1 + 16
        if tgt >= 0:
            imm = (tgt % 4) * 1024
            if tgt % 4 == 0 and tgt > 0: A(f"s_add_u32 s{S_AOFF}, s{S_AOFF}, 4096")
            A(a_load(tgt % RING, imm))
        if (n & 3) == 3:
            for z in next_stage(): A(z)
            A("s_nop 0")
            A(dma(0)); A(dma(1))
    for r in range(32): A(f"v_mov_b32 {v(ACC+r)}, 0")
    A(f"s_movk_i32 s{S_IT}, {NSTEP//16}")
    nprol = 2*(PD-3) + 15 + 8
    A(f"s_waitcnt vmcnt({nprol-2})")
    A("s_barrier")
    for r in tr_reads(0): A(r)
    seq = []
    body = []
    for n in range(16):
        f0 = []; f1 = []
        rd = tr_reads(n + 1)
        if n == 15:
            f0 += [f"v_xor_b32 {v(V_TR)}, {4*SLOT}, {v(V_TR)}", f"v_xor_b32 {v(V_TR+1)}, {4*SLOT}, {v(V_TR+1)}"]
        f0 += rd
        tgt = n - 1 + 16
        if tgt % 4 == 0: f1.append(f"s_add_u32 s{S_AOFF}, s{S_AOFF}, 4096")
        f1.append(a_load(tgt % RING, (tgt % 4) * 1024)); seq.append((n, ('A', tgt % RING)))
        if (n & 3) == 3:
            f1 += next_stage() + ["s_nop 0", dma(0), dma(1)]
            seq.append((n, ('W', 0))); seq.append((n, ('W', 1)))
        body.append((f0, f1))
    NVM = len(seq)
    def count_after(slot, at_step):
        order = [i for i in range(NVM) if seq[i][0] >= at_step] + [i for i in range(NVM) if seq[i][0] < at_step]
        last = max(k for k, i in enumerate(order) if seq[i][1] == ('A', slot))
        return NVM - 1 - last
    A.raw(".p2align 6")
    A.label(f"L_{name}_loop")
    for n in range(16):
        A.c(f"step {n}")
        A(f"s_waitcnt vmcnt({count_after(n, n)}) lgkmcnt(0)")
        if (n & 3) == 3: A("s_barrier")
        f0, f1 = body[n]
        A(f"v_mfma_f32_32x32x16_bf16 {v(acc(0),16)}, {a(breg(n&1,0),4)}, {a(areg(n),4)}, {v(acc(0),16)}")
        for z in f0: A(z)
        A(f"v_mfma_f32_32x32x16_bf16 {v(acc(1),16)}, {a(breg(n&1,1),4)}, {a(areg(n),4)}, {v(acc(1),16)}")
        for z in f1: A(z)
    A(f"s_sub_u32 s{S_IT}, s{S_IT}, 1")
    A(f"s_cmp_lg_u32 s{S_IT}, 0")
    A(f"s_cbranch_scc1 L_{name}_loop")
    A("v_and_b32 v3, 31, v1")
    A("v_lshrrev_b32 v4, 5, v1")
    A("v_lshlrev_b32 v3, 11, v3")
    A("v_lshl_add_u32 v3, v4, 4, v3")
    A(f"s_lshl_b32 s45, s{S_TB}, 16")
    A(f"s_add_u32 s45, s45, s{S_COL}")
    for nb in range(2):
        for g in range(2):
            A(f"buffer_load_dwordx4 {v(8+8*nb+4*g,4)}, v3, s[{S_X}:{S_X+3}], s45 offen offset:{nb*64+g*32}")
    A("s_nop 7"); A("s_nop 7")
    for nb in range(2):
        b = acc(nb)
        for g in range(2):
            for i in range(4):
                A(f"v_permlane32_swap_b32 {v(b+8*g+i)}, {v(b+8*g+4+i)}")
    A("s_waitcnt vmcnt(0)")
    A("s_mov_b32 s46, 0xffff0000")
    for nb in range(2):
        b = acc(nb)
        for g in range(2):
            xr = 8 + 8*nb + 4*g
            for i in range(4):
                A(f"v_lshlrev_b32 v24, 16, {v(xr+i)}")
                A(f"v_and_b32 v25, s46, {v(xr+i)}")
                A(f"v_add_f32 {v(b+8*g+2*i)}, {v(b+8*g+2*i)}, v24")
                A(f"v_add_f32 {v(b+8*g+2*i+1)}, {v(b+8*g+2*i+1)}, v25")
            for i in range(4):
                A(f"v_cvt_pk_bf16_f32 {v(xr+i)}, {v(b+8*g+2*i)}, {v(b+8*g+2*i+1)}")
            A(f"buffer_store_dwordx4 {v(xr,4)}, v3, s[{S_O}:{S_O+3}], s45 offen offset:{nb*64+g*32}")
    A.label(end)
    A("s_endpgm")
    kernel_end(A, name, 64 + NA, 64, 64)
    return A.text(), dict(grid=256, block=256, lds=NSLOT*SLOT)
```

```python
from asmlib import *
from layout import *

def gen_ln(name):
    A = Asm()
    kernel_begin(A, name)
    A("s_cmp_ge_u32 s2, 256")
    A(f"s_cbranch_scc1 L_{name}_end")
    A(f"s_load_dwordx2 s[4:5], s[0:1], {KARG['x']}")
    A(f"s_load_dwordx2 s[6:7], s[0:1], {KARG['ws']}")
    A("v_and_b32 v1, 63, v0")
    A("v_lshrrev_b32 v2, 6, v0")
    A("v_and_b32 v3, 7, v1")
    A("v_lshrrev_b32 v4, 3, v1")
    A("v_lshlrev_b32 v5, 11, v3")
    A("v_lshl_add_u32 v5, v4, 4, v5")
    A("v_lshl_add_u32 v5, v2, 9, v5")
    A("v_lshlrev_b32 v6, 4, v1")
    A("v_lshl_add_u32 v6, v2, 12, v6")
    A("s_lshl_b32 s3, s2, 14")
    A("s_waitcnt lgkmcnt(0)")
    srd(A, 8, "s4", "s5", 4 * MB)
    A(f"s_add_u32 s6, s6, {XN_OFF}")
    A("s_addc_u32 s7, s7, 0")
    srd(A, 12, "s6", "s7", 4 * MB)
    for i in range(4):
        A(f"buffer_load_dwordx4 {v(8+4*i,4)}, v5, s[8:11], s3 offen offset:{i*128}")
    A("v_lshlrev_b32 v7, 2, v3")
    A("v_lshl_add_u32 v24, v2, 5, v7")
    A("s_mov_b32 s16, 0xffff0000")
    for i in range(4):
        A(f"s_waitcnt vmcnt({3-i})")
        for r in range(4):
            src = 8 + 4 * i + r
            A(f"v_lshlrev_b32 {v(32+2*(4*i+r))}, 16, {v(src)}")
            A(f"v_and_b32 {v(33+2*(4*i+r))}, s16, {v(src)}")
    def reduce_rows(val, tmp, ldsoff):
        A(f"ds_swizzle_b32 {v(tmp)}, {v(val)} offset:0x201F")
        A("s_waitcnt lgkmcnt(0)")
        A(f"v_add_f32 {v(val)}, {v(val)}, {v(tmp)}")
        A(f"ds_swizzle_b32 {v(tmp)}, {v(val)} offset:0x401F")
        A("s_waitcnt lgkmcnt(0)")
        A(f"v_add_f32 {v(val)}, {v(val)}, {v(tmp)}")
        A(f"v_mov_b32 {v(tmp)}, {v(val)}")
        A("s_nop 1")
        A(f"v_permlane32_swap_b32 {v(val)}, {v(tmp)}")
        A("s_nop 1")
        A(f"v_add_f32 {v(val)}, {v(val)}, {v(tmp)}")
        A(f"ds_write_b32 v24, {v(val)} offset:{ldsoff}")
        A("s_waitcnt lgkmcnt(0)")
        A("s_barrier")
        A(f"ds_read_b32 {v(val)}, v7 offset:{ldsoff}")
        A(f"ds_read_b32 {v(tmp)}, v7 offset:{ldsoff+32}")
        A(f"ds_read_b32 v27, v7 offset:{ldsoff+64}")
        A(f"ds_read_b32 v28, v7 offset:{ldsoff+96}")
        A("s_waitcnt lgkmcnt(0)")
        A(f"v_add_f32 {v(val)}, {v(val)}, {v(tmp)}")
        A(f"v_add_f32 v27, v27, v28")
        A(f"v_add_f32 {v(val)}, {v(val)}, v27")
    for i in range(16):
        A(f"v_add_f32 {v(8+i)}, {v(32+2*i)}, {v(33+2*i)}")
    n = 16
    while n > 1:
        n //= 2
        for i in range(n):
            A(f"v_add_f32 {v(8+i)}, {v(8+i)}, {v(8+i+n)}")
    A("v_mov_b32 v25, v8")
    reduce_rows(25, 26, 0)
    A(f"v_mul_f32 v25, {fbits(1.0/1024)}, v25")
    for i in range(32):
        A(f"v_sub_f32 {v(32+i)}, {v(32+i)}, v25")
    for i in range(4):
        A(f"v_mul_f32 {v(8+i)}, {v(32+i)}, {v(32+i)}")
    for i in range(4, 32):
        A(f"v_fmac_f32 {v(8+i%4)}, {v(32+i)}, {v(32+i)}")
    A("v_add_f32 v8, v8, v9")
    A("v_add_f32 v10, v10, v11")
    A("v_add_f32 v29, v8, v10")
    reduce_rows(29, 26, 128)
    A(f"v_mov_b32 v30, {fbits(1e-5)}")
    A(f"v_fmac_f32 v30, {fbits(1.0/1024)}, v29")
    A("v_rsq_f32 v30, v30")
    A("s_nop 0")
    for i in range(32):
        A(f"v_mul_f32 {v(32+i)}, {v(32+i)}, v30")
    for i in range(16):
        A(f"v_cvt_pk_bf16_f32 {v(8+i)}, {v(32+2*i)}, {v(33+2*i)}")
    for i in range(4):
        A(f"buffer_store_dwordx4 {v(8+4*i,4)}, v6, s[12:15], s3 offen offset:{i*1024}")
    A.label(f"L_{name}_end")
    A("s_endpgm")
    kernel_end(A, name, 64, 64, 32)
    return A.text(), dict(grid=256, block=256, lds=256)
```

```python
import sys
from k_ln import gen_ln
from k_gemm1 import gen_gemm1
from k_attn import gen_attn
from k_gemm2 import gen_gemm2
NAME = "parallel_sum__softmax_full_mha__dense_activation_silu__prompt"
def build(path):
    ref = open(f"cdna_kernels/{NAME}.s.ref").read().split("\n")
    head = [l for l in ref if l.startswith(";") and "@launch" not in l and "Override launch" not in l and "grid=ceil" not in l]
    ks = [("ln_kernel", gen_ln), ("gemm1_kernel", gen_gemm1), ("attn_kernel", gen_attn), ("gemm2_kernel", gen_gemm2)]
    body = ""; launches = []
    for n, g in ks:
        t, cfg = g(n)
        body += t
        launches.append(f"; @launch kernel={n} grid=({cfg['grid']},1,1) block=({cfg['block']},1,1) lds={cfg['lds']}")
    out = "\n".join(head) + "\n" + "\n".join(launches) + "\n" + '.amdgcn_target "amdgcn-amd-amdhsa--gfx950"\n' + body
    open(path, "w").write(out)
if __name__ == "__main__":
    build(sys.argv[1] if len(sys.argv) > 1 else f"cdna_kernels/{NAME}.s")
```

```python
class Asm:
    def __init__(self):
        self.lines = []
    def __call__(self, s=""):
        for l in s.split("\n"):
            l = l.strip()
            if l:
                self.lines.append("    " + l)
    def label(self, l):
        self.lines.append(l + ":")
    def raw(self, s):
        self.lines.append(s)
    def c(self, s):
        self.lines.append("    ; " + s)
    def text(self):
        return "\n".join(self.lines) + "\n"

def v(i, n=1):
    return f"v{i}" if n == 1 else f"v[{i}:{i+n-1}]"
def a(i, n=1):
    return f"a{i}" if n == 1 else f"a[{i}:{i+n-1}]"
def s(i, n=1):
    return f"s{i}" if n == 1 else f"s[{i}:{i+n-1}]"

def kernel_begin(A, name):
    A.raw(".text")
    A.raw(f".globl {name}")
    A.raw(".p2align 8")
    A.raw(f".type {name},@function")
    A.label(name)

def kernel_end(A, name, vgpr, accum, sgpr=102):
    A.raw('.section .rodata,"a"')
    A.raw(".p2align 6")
    A.raw(f".amdhsa_kernel {name}")
    A.raw(f"  .amdhsa_next_free_vgpr {vgpr}")
    A.raw(f"  .amdhsa_next_free_sgpr {sgpr}")
    A.raw(f"  .amdhsa_accum_offset {accum}")
    A.raw("  .amdhsa_group_segment_fixed_size 0")
    A.raw("  .amdhsa_kernarg_size 72")
    A.raw("  .amdhsa_user_sgpr_count 2")
    A.raw("  .amdhsa_user_sgpr_kernarg_segment_ptr 1")
    A.raw("  .amdhsa_system_sgpr_workgroup_id_x 1")
    A.raw("  .amdhsa_float_denorm_mode_32 3")
    A.raw(".end_amdhsa_kernel")

def srd(A, d, base_lo, base_hi, nbytes):
    A(f"s_mov_b32 s{d}, {base_lo}")
    A(f"s_and_b32 s{d+1}, {base_hi}, 0xffff")
    A(f"s_mov_b32 s{d+2}, {nbytes}")
    A(f"s_mov_b32 s{d+3}, 0x00020000")

def fbits(x):
    import struct
    return "0x%08x" % struct.unpack("<I", struct.pack("<f", x))[0]

PROF = {"on": False}
PROF_OFF = 60 << 20
def stamp(A, i, real=False):
    if not PROF["on"] or i is None: return
    A(f"s_memtime s[{64+4*i}:{65+4*i}]")
    A(f"s_memrealtime s[{66+4*i}:{67+4*i}]")
def prof_flush(A, kidx, nst, wave_sgpr, ws_lo=None):
    if not PROF["on"]: return
    A("s_waitcnt lgkmcnt(0) vmcnt(0)")
    A("s_load_dwordx2 s[4:5], s[0:1], 64")
    A("s_waitcnt lgkmcnt(0)")
    A(f"s_add_u32 s4, s4, {PROF_OFF + kidx * (1 << 18)}")
    A("s_addc_u32 s5, s5, 0")
    A("s_mov_b32 s8, s4"); A("s_and_b32 s9, s5, 0xffff"); A(f"s_mov_b32 s10, {1 << 18}"); A("s_mov_b32 s11, 0x00020000")
    A("s_lshl_b32 s6, s2, 3")
    A(f"s_add_u32 s6, s6, s{wave_sgpr}")
    A("s_lshl_b32 s6, s6, 6")
    A("s_mov_b64 exec, 1")
    for i in range(6):
        for k in range(2):
            A(f"v_mov_b32 v1, s{64+4*i+2*k}")
            A(f"v_mov_b32 v2, {8*i+4*k}")
            A("s_nop 1")
            A("buffer_store_dword v1, v2, s[8:11], s6 offen")
            A("s_nop 1")
    A("s_waitcnt vmcnt(0)")

OPT = {}
def opt(k, d=None): return OPT.get(k, d)
```

```python
from asmlib import *
from layout import *
from vmsim import VmSim
import math

NCB = 14
def acc(cb, tb): return 32 + 4 * (cb * 4 + tb)
def xreg(slot, tb): return (slot * 4 + tb) * 4
def wreg(buf, cb): return 64 + (buf * NCB + cb) * 4
NAGPR = 176
SLOT = 32768
PITCH = 448
LN_LDS = 4 * SLOT
LDS_BYTES = 4 * SLOT + 256
V_X = 0; V_DMA = 1; V_TRE = 8; V_TRO = 9
S_W = 8; S_X = 12; S_O = 16; S_N = 20
S_WOFF = 24; S_XO = 25; S_IT = 29; S_WV = 30; S_MT = 31; S_BLK0 = 32; S_TYPE = 33
S_T0, S_T1, S_T2, S_T3 = 34, 35, 36, 37
S_M0CUR = 38; S_TOK = 39; S_WS = 40; S_LDW = 42; S_STG = 43; S_D = 52; S_M0A = 56; S_SLOT = 57

def tr_main(n):
    par = (n >> 1) & 1; sub = n & 1
    out = []
    for cb in range(NCB):
        for h in range(2):
            off = par * SLOT + sub * 32 * PITCH + h * 4 * PITCH + cb * 32
            ad = V_TRE if cb % 2 == 0 else V_TRO
            out.append(f"ds_read_b64_tr_b16 {a(wreg(n & 1, cb) + 2 * h, 2)}, {v(ad)} offset:{off}")
    return out
def x_load(slot, tb, imm):
    return f"buffer_load_dwordx4 {a(xreg(slot, tb), 4)}, {v(V_X)}, s[{S_X}:{S_X+3}], s{S_XO + tb} offen offset:{imm}{' sc1' if opt('x_sc1', 1) else ''}"
def dma(i):
    return f"buffer_load_dwordx4 {v(V_DMA + i)}, s[{S_W}:{S_W+3}], s{S_WOFF} offen offset:{(i & 3) * 1024} lds"
def w_next_stage():
    return [f"s_add_u32 s{S_WOFF}, s{S_WOFF}, s{S_STG}",
            f"s_add_u32 s{S_M0CUR}, s{S_M0CUR}, {SLOT}",
            f"s_and_b32 s{S_M0CUR}, s{S_M0CUR}, {4 * SLOT - 1}",
            f"s_mov_b32 m0, s{S_M0CUR}"]
def w_hi():
    return [f"s_add_u32 s{S_T0}, s{S_M0CUR}, 4096", f"s_mov_b32 m0, s{S_T0}"]

def body_vm_ops(it, PD, XD):
    ops = []
    for n in range(4):
        tgt = 4 * it + n + XD
        for tb in range(4): ops.append((n, ('X', tgt, tb)))
        if n & 1:
            st = 2 * it + (n >> 1) + PD
            for i in range(4): ops.append((n, ('W', st, i)))
        else:
            st = 2 * it + (n >> 1) - 1 + PD
            for i in range(4, 7): ops.append((n, ('W', st, i)))
    return ops

def gen_mainloop(A, name, swap, PD, XD, prologue_ops):
    waits = {n: 63 for n in range(4)}
    sim = VmSim()
    for t in prologue_ops: sim.issue(t)
    for it in range(4):
        ops = body_vm_ops(it, PD, XD)
        for n in range(4):
            g = 4 * it + n
            need = sim.need(lambda t: t[0] == 'X' and t[1] == g)
            if n & 1:
                st = 2 * it + (n >> 1) + 1
                nw = sim.need(lambda t: t[0] == 'W' and t[1] == st)
                if nw is not None: need = nw if need is None else min(need, nw)
            if need is not None: waits[n] = min(waits[n], need)
            for (s_, t) in ops:
                if s_ == n: sim.issue(t)
    A.raw(".p2align 6")
    A.label(f"L_{name}_loop")
    for n in range(4):
        A.c(f"---- step {n}")
        A(f"s_waitcnt vmcnt({waits[n]}) lgkmcnt(0)")
        if n & 1: A("s_barrier")
        reads = []
        if n == 3:
            reads += [f"v_xor_b32 {v(r)}, 0x10000, {v(r)}" for r in (V_TRE, V_TRO)]
        reads += tr_main(n + 1)
        tail = []
        tgt = n + XD
        if tgt == 4:
            tail += [f"s_add_u32 s{S_XO + tb}, s{S_XO + tb}, 2048" for tb in range(4)]
            tail += [f"s_cmp_eq_u32 s{S_IT}, 1", f"s_cselect_b32 s{S_X+2}, 0, s{S_X+2}"]
        xl = [x_load(tgt % 4, tb, (tgt % 4) * 512) for tb in range(4)]
        if n & 1:
            pre = w_next_stage() + ["s_nop 0"]; dm = [dma(i) for i in range(4)]
        else:
            pre = w_hi() + ["s_nop 0"]; dm = [dma(i) for i in range(4, 7)]
        fill = [[] for _ in range(56)]
        for k, z in enumerate(reads): fill[k].append(z)
        k0 = 2
        for z in tail: fill[k0].append(z); k0 += 1
        vm = [[z] for z in xl]
        vm.append(pre + [dm[0]])
        vm += [[z] for z in dm[1:]]
        sp = opt("l1_vmsp", 5)
        pos = max(k0, 10)
        for grp in vm:
            fill[min(pos, 55)] += grp
            pos += sp
        for m in range(56):
            cb, tb = m // 4, m % 4
            d = v(acc(cb, tb), 4); w = a(wreg(n & 1, cb), 4); x = a(xreg(n, tb), 4)
            A(f"v_mfma_f32_16x16x32_bf16 {d}, {x}, {w}, {d}" if swap else f"v_mfma_f32_16x16x32_bf16 {d}, {w}, {x}, {d}")
            for z in fill[m]: A(z)
    A(f"s_sub_u32 s{S_IT}, s{S_IT}, 1")
    A(f"s_cmp_lg_u32 s{S_IT}, 0")
    A(f"s_cbranch_scc1 L_{name}_loop")

def ln_loads(A):
    A("v_and_b32 v3, 7, v1"); A("v_lshrrev_b32 v4, 3, v1")
    A("v_lshlrev_b32 v5, 11, v3"); A("v_lshl_add_u32 v5, v4, 4, v5")
    A(f"s_lshl_b32 s{S_T0}, s{S_WV}, 9")
    A(f"v_add_u32 v5, s{S_T0}, v5")
    A(f"s_lshl_b32 s{S_T1}, s2, 14")
    A("v_lshlrev_b32 v6, 11, v3")
    A(f"buffer_load_ushort v30, v6, s[{S_N}:{S_N+3}], s{S_T1} offen")
    for i in range(4):
        A(f"buffer_load_dwordx4 {v(32+4*i,4)}, v5, s[{S_N}:{S_N+3}], s{S_T1} offen offset:{i*128}")

def ln_compute(A, nafter, tag, zero_acc=False):
    A("v_and_b32 v24, 7, v1"); A("v_lshlrev_b32 v24, 3, v24")
    A(f"v_add_u32 v24, {LN_LDS}, v24")
    A(f"s_lshl_b32 s{S_T0}, s{S_WV}, 6")
    A(f"v_add_u32 v25, s{S_T0}, v24")
    A("s_mov_b32 s44, 0xffff0000")
    A(f"s_waitcnt vmcnt({nafter + 4})")
    A("v_lshlrev_b32 v30, 16, v30"); A("v_sub_f32 v30, 0, v30"); A("v_mov_b32 v31, v30")
    for i in range(4):
        A(f"s_waitcnt vmcnt({nafter + 3 - i})")
        for r in range(4):
            src = 32 + 4 * i + r
            A(f"v_lshlrev_b32 {v(64+2*(4*i+r))}, 16, {v(src)}")
            A(f"v_and_b32 {v(65+2*(4*i+r))}, s44, {v(src)}")
        for r in range(4):
            A(f"v_pk_add_f32 {v(64+2*(4*i+r),2)}, {v(64+2*(4*i+r),2)}, v[30:31]")
    A("v_pk_add_f32 v[32:33], v[64:65], v[66:67]"); A("v_pk_mul_f32 v[34:35], v[64:65], v[64:65]")
    A("v_pk_add_f32 v[36:37], v[68:69], v[70:71]"); A("v_pk_mul_f32 v[38:39], v[66:67], v[66:67]")
    for i in range(2, 16):
        A(f"v_pk_fma_f32 {v(34+4*(i%2),2)}, {v(64+2*i,2)}, {v(64+2*i,2)}, {v(34+4*(i%2),2)}")
        if i >= 4: A(f"v_pk_add_f32 {v(32+4*(i%2),2)}, {v(32+4*(i%2),2)}, {v(64+2*i,2)}")
    A("v_pk_add_f32 v[32:33], v[32:33], v[36:37]"); A("v_pk_add_f32 v[34:35], v[34:35], v[38:39]")
    A("v_add_f32 v26, v32, v33"); A("v_add_f32 v27, v34, v35")
    A("s_nop 0")
    for r in (26, 27):
        A(f"v_add_f32_dpp {v(r)}, {v(r)}, {v(r)} row_ror:8 row_mask:0xf bank_mask:0xf")
    A("v_mov_b32 v28, v26"); A("v_mov_b32 v29, v27"); A("s_nop 0")
    A("v_permlane16_swap_b32 v26, v28"); A("v_permlane16_swap_b32 v27, v29"); A("s_nop 0")
    A("v_add_f32 v26, v26, v28"); A("v_add_f32 v27, v27, v29")
    A("v_mov_b32 v28, v26"); A("v_mov_b32 v29, v27"); A("s_nop 0")
    A("v_permlane32_swap_b32 v26, v28"); A("v_permlane32_swap_b32 v27, v29"); A("s_nop 0")
    A("v_add_f32 v26, v26, v28"); A("v_add_f32 v27, v27, v29")
    A("ds_write_b64 v25, v[26:27]")
    A("s_waitcnt lgkmcnt(0)")
    A("s_barrier")
    for w_ in range(4): A(f"ds_read_b64 {v(32+2*w_,2)}, v24 offset:{64*w_}")
    A("s_waitcnt lgkmcnt(0)")
    A("v_pk_add_f32 v[32:33], v[32:33], v[34:35]"); A("v_pk_add_f32 v[36:37], v[36:37], v[38:39]")
    A("v_pk_add_f32 v[32:33], v[32:33], v[36:37]")
    A(f"v_mul_f32 v32, {fbits(1.0/1024)}, v32")
    A(f"v_mov_b32 v30, {fbits(1e-5)}")
    A(f"v_fmac_f32 v30, {fbits(1.0/1024)}, v33")
    A("v_fma_f32 v30, -v32, v32, v30")
    A(f"v_max_f32 v30, {fbits(1e-5)}, v30")
    A("v_rsq_f32 v30, v30"); A("s_nop 0")
    A("v_mul_f32 v32, -v32, v30"); A("v_mov_b32 v31, v30"); A("v_mov_b32 v33, v32")
    for i in range(16): A(f"v_pk_fma_f32 {v(64+2*i,2)}, {v(64+2*i,2)}, v[30:31], v[32:33]")
    for i in range(16): A(f"v_cvt_pk_bf16_f32 {v(40+i)}, {v(64+2*i)}, {v(65+2*i)}")
    A("v_lshlrev_b32 v24, 4, v1")
    A(f"s_lshl_b32 s{S_T0}, s{S_WV}, 12")
    A(f"v_add_u32 v24, s{S_T0}, v24")
    A(f"s_lshl_b32 s{S_T1}, s2, 14")
    for i in range(4):
        A(f"buffer_store_dwordx4 {v(40+4*i,4)}, v24, s[{S_X}:{S_X+3}], s{S_T1} offen offset:{i*1024} sc1")
    if zero_acc:
        for r in list(range(64, 256)) + list(range(32, 40)): A(f"v_mov_b32 {v(r)}, 0")
    A("s_waitcnt vmcnt(0)")
    A("s_barrier")
    if zero_acc:
        for r in range(40, 64): A(f"v_mov_b32 {v(r)}, 0")
    if tag == 't': stamp(A, 1)
    A(f"s_cmp_eq_u32 s{S_WV}, 0")
    A(f"s_cbranch_scc0 L_l1_nosig{tag}")
    A(f"s_lshr_b32 s{S_T0}, s2, 5"); A(f"s_lshl_b32 s{S_T0}, s{S_T0}, 5")
    A("v_mov_b32 v24, 1")
    A("s_mov_b64 s[44:45], exec"); A("s_mov_b64 exec, 1")
    A(f"buffer_atomic_add v24, off, s[{S_D}:{S_D+3}], s{S_T0}")
    A("s_mov_b64 exec, s[44:45]")
    A.label(f"L_l1_nosig{tag}")

def gen_l1(name):
    PD = opt("l1_pd", 3); XD = opt("l1_xd", 3)
    A = Asm()
    kernel_begin(A, name)
    end = f"L_{name}_end"; fin = f"L_{name}_fin"
    A("s_cmp_ge_u32 s2, 256")
    A(f"s_cbranch_scc1 {end}")
    stamp(A, 0)
    A(f"s_load_dwordx2 s[4:5], s[0:1], {KARG['wqkv']}")
    A(f"s_load_dwordx2 s[6:7], s[0:1], {KARG['w1']}")
    A(f"s_load_dwordx2 s[{S_WS}:{S_WS+1}], s[0:1], {KARG['ws']}")
    A(f"s_load_dwordx2 s[44:45], s[0:1], {KARG['x']}")
    A(f"s_load_dwordx2 s[46:47], s[0:1], {KARG['dbg']}")
    A("v_mov_b32 v2, v0")
    A("v_and_b32 v1, 63, v0")
    A("v_lshrrev_b32 v3, 6, v0")
    A("s_and_b32 s3, s2, 7")
    A(f"v_readfirstlane_b32 s{S_WV}, v3")
    A(f"s_lshr_b32 s{S_SLOT}, s2, 3")
    A("s_lshr_b32 s49, s3, 1")
    A("s_mul_i32 s49, s49, 31")
    A(f"s_add_u32 s49, s49, s{S_SLOT}")
    A("s_sub_u32 s49, s49, 1")
    A("s_and_b32 s48, s3, 1")
    A("s_lshl_b32 s48, s48, 2")
    A(f"s_and_b32 s{S_T0}, s49, 3")
    A(f"s_add_u32 s{S_MT}, s48, s{S_T0}")
    A("s_lshr_b32 s3, s49, 2")
    A(f"s_lshl_b32 s{S_TOK}, s{S_MT}, 8")
    A(f"s_lshl_b32 s{S_T0}, s{S_WV}, 6")
    A(f"s_add_u32 s{S_TOK}, s{S_TOK}, s{S_T0}")
    A("s_waitcnt lgkmcnt(0)")
    srd(A, S_N, "s44", "s45", 4 * MB)
    srd(A, S_D, "s46", "s47", 256)
    ln_loads(A)
    A(f"s_add_u32 s44, s{S_WS}, {XN_OFF}"); A(f"s_addc_u32 s45, s{S_WS+1}, 0")
    srd(A, S_X, "s44", "s45", 4 * MB)
    A(f"s_cmp_eq_u32 s{S_SLOT}, 0")
    A(f"s_cbranch_scc0 L_{name}_tile")
    ln_compute(A, 0, 'h')
    A(f"s_add_u32 s4, s{S_WS}, 0"); A(f"s_addc_u32 s5, s{S_WS+1}, 0")
    srd(A, S_N, "s4", "s5", 1 * MB)
    A("s_and_b32 s3, s2, 7")
    A("v_mov_b32 v12, 0"); A("v_mov_b32 v13, 0"); A("v_mov_b32 v14, 0"); A("v_mov_b32 v15, 0")
    A("v_lshlrev_b32 v9, 4, v2")
    A(f"s_mul_i32 s{S_T1}, s3, {17 * 128}")
    A(f"s_add_u32 s{S_T1}, s{S_T1}, {FLAGS_OFF}")
    A("v_cmp_gt_u32 vcc, 136, v2")
    A("s_and_saveexec_b64 s[44:45], vcc")
    A(f"s_cbranch_execz L_{name}_nz")
    A(f"buffer_store_dwordx4 v[12:15], v9, s[{S_N}:{S_N+3}], s{S_T1} offen")
    A.label(f"L_{name}_nz")
    A("s_mov_b64 exec, s[44:45]")
    if opt("l1_touch", 0):
        A(f"s_load_dwordx2 s[4:5], s[0:1], {KARG['wqkv']}")
        A(f"s_load_dwordx2 s[6:7], s[0:1], {KARG['w1']}")
        A("s_waitcnt lgkmcnt(0)")
        srd(A, S_W, "s4", "s5", 1024 * 6144)
        srd(A, S_O, "s6", "s7", 1024 * 7168)
        A("v_lshlrev_b32 v9, 7, v1")
        A("v_cmp_gt_u32 vcc, 48, v1"); A("v_mov_b32 v11, 0x7fffffff"); A("s_nop 0")
        A("v_cndmask_b32 v12, v11, v9, vcc")
        A("v_cmp_gt_u32 vcc, 56, v1"); A("s_nop 1")
        A("v_cndmask_b32 v13, v11, v9, vcc")
        A(f"s_lshl_b32 s{S_T0}, s{S_WV}, 3"); A(f"s_add_u32 s{S_T0}, s{S_T0}, s3")
        A(f"s_mul_i32 s{S_T1}, s{S_T0}, 6144"); A(f"s_mul_i32 s{S_T2}, s{S_T0}, 7168")
        A(f"s_movk_i32 s{S_IT}, 8")
        A.label(f"L_{name}_tl")
        for m in range(4):
            A(f"buffer_load_dword v10, v12, s[{S_W}:{S_W+3}], s{S_T1} offen")
            A(f"buffer_load_dword v10, v13, s[{S_O}:{S_O+3}], s{S_T2} offen")
            A(f"s_add_u32 s{S_T1}, s{S_T1}, {32 * 6144}"); A(f"s_add_u32 s{S_T2}, s{S_T2}, {32 * 7168}")
        A("s_waitcnt vmcnt(52)")
        A(f"s_sub_u32 s{S_IT}, s{S_IT}, 1"); A(f"s_cmp_lg_u32 s{S_IT}, 0"); A(f"s_cbranch_scc1 L_{name}_tl")
    A(f"s_load_dwordx2 s[4:5], s[0:1], {KARG['wo']}")
    A(f"s_load_dwordx2 s[6:7], s[0:1], {KARG['w2']}")
    A("s_waitcnt lgkmcnt(0)")
    srd(A, S_W, "s4", "s5", 1024 * 2048)
    srd(A, S_O, "s6", "s7", 3584 * 2048)
    A("v_lshlrev_b32 v9, 7, v2")
    A(f"s_mul_i32 s{S_T0}, s3, {1024 * 2048 // 8}")
    for i in range(8):
        A(f"buffer_load_dword v10, v9, s[{S_W}:{S_W+3}], s{S_T0} offen")
        A(f"s_add_u32 s{S_T0}, s{S_T0}, 32768")
    A(f"s_mul_i32 s{S_T0}, s3, {3584 * 2048 // 8}")
    for i in range(28):
        if i % 4 == 0: A("s_waitcnt vmcnt(56)")
        A(f"buffer_load_dword v10, v9, s[{S_O}:{S_O+3}], s{S_T0} offen")
        A(f"s_add_u32 s{S_T0}, s{S_T0}, 32768")
    A("s_waitcnt vmcnt(0)")
    A(f"s_branch {fin}")
    A.label(f"L_{name}_tile")
    A("s_cmp_lt_u32 s3, 15")
    A(f"s_cbranch_scc1 L_{name}_qkv")
    A(f"s_mov_b32 s{S_TYPE}, 2")
    A("s_sub_u32 s3, s3, 15")
    A(f"s_mul_i32 s{S_BLK0}, s3, 7")
    A(f"s_mov_b32 s{S_LDW}, 7168")
    A("s_mov_b32 s4, s6"); A("s_mov_b32 s5, s7")
    A(f"s_mov_b32 s{S_T1}, {1024 * 7168}")
    A(f"s_branch L_{name}_common")
    A.label(f"L_{name}_qkv")
    A(f"s_mov_b32 s{S_LDW}, 6144")
    A(f"s_mov_b32 s{S_T1}, {1024 * 6144}")
    A("s_cmp_lt_u32 s3, 10")
    A(f"s_cbranch_scc1 L_{name}_qk")
    A(f"s_mov_b32 s{S_TYPE}, 1")
    A("s_sub_u32 s3, s3, 10")
    A("s_mul_i32 s3, s3, 7")
    A("s_min_u32 s3, s3, 25")
    A(f"s_add_u32 s{S_BLK0}, s3, 64")
    A(f"s_branch L_{name}_common")
    A.label(f"L_{name}_qk")
    A(f"s_mov_b32 s{S_TYPE}, 0")
    A("s_mul_i32 s3, s3, 7")
    A(f"s_min_u32 s{S_BLK0}, s3, 57")
    A.label(f"L_{name}_common")
    A(f"s_lshl_b32 s{S_T0}, s{S_BLK0}, 6")
    A(f"s_add_u32 s4, s4, s{S_T0}")
    A("s_addc_u32 s5, s5, 0")
    A(f"s_sub_u32 s{S_T1}, s{S_T1}, s{S_T0}")
    srd(A, S_W, "s4", "s5", f"s{S_T1}")
    A(f"s_lshl_b32 s{S_STG}, s{S_LDW}, 6")
    A(f"s_lshl_b32 s{S_T0}, s{S_WV}, 4")
    A(f"s_movk_i32 s{S_T2}, 2341")
    for i in range(7):
        A(f"v_add_u32 v3, {64 * i}, v1")
        A(f"v_mul_u32_u24 v4, s{S_T2}, v3")
        A("v_lshrrev_b32 v4, 16, v4")
        A("v_mul_u32_u24 v6, 28, v4")
        A("v_sub_u32 v6, v3, v6")
        A("v_lshrrev_b32 v7, 3, v4")
        A("v_lshlrev_b32 v7, 1, v7")
        A("v_xor_b32 v6, v6, v7")
        A(f"v_add_u32 v4, s{S_T0}, v4")
        A(f"v_mul_lo_u32 v4, v4, s{S_LDW}")
        A(f"v_lshl_add_u32 v4, v6, 4, v4")
        if i & 3: A(f"v_subrev_u32 {v(10 + i)}, {(i & 3) * 1024}, v4")
        else: A(f"v_mov_b32 {v(10 + i)}, v4")
    A(f"s_mul_i32 s{S_M0A}, s{S_WV}, {16 * PITCH}")
    prol = []
    def dma_p(i, base):
        return f"buffer_load_dwordx4 {v(base + i)}, s[{S_W}:{S_W+3}], s{S_WOFF} offen offset:{(i & 3) * 1024} lds"
    def stage_dma(st, lo, hi, base):
        for i in range(lo, hi):
            if i == 0:
                A(f"s_mul_i32 s{S_WOFF}, s{S_STG}, {st}")
                A(f"s_add_u32 s{S_M0CUR}, s{S_M0A}, {(st & 3) * SLOT}")
                A(f"s_mov_b32 m0, s{S_M0CUR}"); A("s_nop 0")
            if i == 4:
                for z in w_hi(): A(z)
                A("s_nop 0")
            A(dma_p(i, base)); prol.append(('W', st, i))
    stage_dma(0, 0, 7, 10)
    ntouch = 0
    ln_compute(A, 7 + ntouch, 't', True)
    prol.clear()
    for st in range(1, PD):
        stage_dma(st, 0, 7 if st < PD - 1 else 4, 10)
    A("v_and_b32 v3, 15, v1"); A("v_lshrrev_b32 v4, 4, v1")
    A("v_lshrrev_b32 v5, 2, v3"); A("v_lshl_add_u32 v5, v4, 3, v5"); A(f"v_mul_u32_u24 v5, {PITCH}, v5")
    A("v_and_b32 v6, 3, v3"); A("v_lshl_add_u32 v5, v6, 3, v5")
    A("v_and_b32 v6, 1, v4"); A("v_lshlrev_b32 v6, 5, v6")
    A(f"v_add_u32 {v(V_TRE)}, v5, v6"); A(f"v_sub_u32 {v(V_TRO)}, v5, v6")
    A(f"v_lshrrev_b32 v5, 3, v3"); A("v_lshlrev_b32 v5, 14, v5")
    A("v_lshl_add_u32 v5, v4, 7, v5"); A("v_and_b32 v6, 7, v3")
    A(f"v_lshl_add_u32 {v(V_X)}, v6, 4, v5")
    A("v_mov_b32 v17, v1")
    for i in range(7): A(f"v_mov_b32 {v(V_DMA + i)}, {v(10 + i)}")
    A(f"s_lshl_b32 s{S_XO}, s{S_TOK}, 11")
    for tb in range(1, 4): A(f"s_add_u32 s{S_XO + tb}, s{S_XO}, {tb * 2 * 16384}")
    A(f"s_lshl_b32 s{S_T0}, s{S_MT}, 5")
    A(f"s_mov_b32 s{S_T1}, 0x8000")
    A.label(f"L_{name}_poll")
    A(f"buffer_load_dword v18, off, s[{S_D}:{S_D+3}], s{S_T0} sc1")
    A("s_waitcnt vmcnt(0)")
    A(f"v_readfirstlane_b32 s{S_T2}, v18")
    A(f"s_sub_u32 s{S_T1}, s{S_T1}, 1")
    A(f"s_cmp_eq_u32 s{S_T1}, 0")
    A(f"s_cbranch_scc1 L_{name}_got")
    A(f"s_cmp_ge_u32 s{S_T2}, 32")
    A(f"s_cbranch_scc1 L_{name}_got")
    A("s_sleep 2")
    A(f"s_branch L_{name}_poll")
    A.label(f"L_{name}_got")
    stamp(A, 2)
    prol.clear()
    for s_ in range(XD):
        for tb in range(4):
            A(x_load(s_ % 4, tb, (s_ % 4) * 512))
    A(f"s_movk_i32 s{S_IT}, 8")
    A("s_barrier")
    for r in tr_main(0): A(r)
    A("s_waitcnt vmcnt(0)")
    stamp(A, 3)
    A(f"s_cmp_eq_u32 s{S_TYPE}, 1")
    A(f"s_cbranch_scc1 L_{name}_vpath")
    gen_mainloop(A, name + "_n", False, PD, XD, prol)
    stamp(A, 4)
    sc = " sc1" if opt("st_sc1", 1) else ""
    A("v_and_b32 v3, 15, v17"); A("v_lshrrev_b32 v4, 4, v17")
    A(f"s_cmp_eq_u32 s{S_TYPE}, 2")
    A(f"s_cbranch_scc1 L_{name}_epi_h")
    c = (32 ** -0.5) * math.log2(math.e)
    A(f"s_add_u32 s4, s{S_WS}, {QKV_OFF}"); A(f"s_addc_u32 s5, s{S_WS+1}, 0")
    srd(A, S_O, "s4", "s5", 12 * MB)
    A(f"s_add_u32 s4, s{S_WS}, {NRM_OFF}"); A(f"s_addc_u32 s5, s{S_WS+1}, 0")
    srd(A, S_N, "s4", "s5", 512 * 1024)
    A("v_lshrrev_b32 v7, 1, v4"); A("v_lshlrev_b32 v7, 10, v7")
    A("v_and_b32 v8, 1, v4"); A("v_lshl_add_u32 v7, v8, 9, v7")
    A("v_lshl_add_u32 v8, v3, 4, v7")
    A("v_lshrrev_b32 v9, 3, v3"); A("v_lshlrev_b32 v9, 8, v9")
    A("v_and_b32 v10, 7, v3"); A("v_lshl_add_u32 v9, v10, 4, v9")
    A("v_add_u32 v9, v9, v7")
    A("v_lshlrev_b32 v10, 2, v3")
    for p in range(7):
        A(f"s_add_u32 s{S_T0}, s{S_BLK0}, {p}")
        A(f"s_cmp_lt_u32 s{S_T0}, 32")
        A(f"s_cselect_b32 s44, {fbits(c)}, 1.0")
        A(f"s_cselect_b32 s46, 0, 1")
        A("s_mov_b32 s45, s44")
        A(f"s_lshl_b32 s{S_T1}, s{S_T0}, 17")
        A(f"s_lshl_b32 s{S_T2}, s{S_TOK}, 6")
        A(f"s_add_u32 s{S_T1}, s{S_T1}, s{S_T2}")
        A(f"s_lshl_b32 s{S_T2}, s{S_T0}, 13")
        A(f"s_lshl_b32 s{S_T3}, s{S_TOK}, 2")
        A(f"s_add_u32 s{S_T2}, s{S_T2}, s{S_T3}")
        A(f"s_cmp_eq_u32 s46, 1")
        A("s_cselect_b64 vcc, -1, 0")
        A("s_lshr_b32 s47, 256, s46")
        A(f"s_add_u32 s47, s47, s{S_T1}")
        A("v_cndmask_b32 v7, v8, v9, vcc")
        for tb in range(4):
            E = acc(2 * p, tb); F = acc(2 * p + 1, tb)
            for R in (E, E + 2, F, F + 2):
                A(f"v_pk_mul_f32 {v(R, 2)}, {v(R, 2)}, s[44:45]")
            A(f"v_pk_mul_f32 v[4:5], {v(E, 2)}, {v(E, 2)}")
            for R in (E + 2, F, F + 2):
                A(f"v_pk_fma_f32 v[4:5], {v(R, 2)}, {v(R, 2)}, v[4:5]")
            A(f"v_cvt_pk_bf16_f32 {v(E)}, {v(E)}, {v(E + 1)}")
            A(f"v_cvt_pk_bf16_f32 {v(E + 1)}, {v(E + 2)}, {v(E + 3)}")
            A(f"v_cvt_pk_bf16_f32 {v(E + 2)}, {v(F)}, {v(F + 1)}")
            A(f"v_cvt_pk_bf16_f32 {v(E + 3)}, {v(F + 2)}, {v(F + 3)}")
            A("v_add_f32 v4, v4, v5")
            A("v_mov_b32 v5, v4")
            so = "s47" if tb & 1 else f"s{S_T1}"
            A(f"buffer_store_dwordx4 {v(E, 4)}, v7, s[{S_O}:{S_O+3}], {so} offen offset:{(tb >> 1) * 2048}{sc}")
            A("s_nop 0")
            A("v_permlane32_swap_b32 v4, v5")
            A("s_nop 0")
            A("v_add_f32 v4, v4, v5")
            A("v_mov_b32 v5, v4")
            A("s_nop 1")
            A("v_permlane16_swap_b32 v4, v5")
            A("s_nop 0")
            A("v_add_f32 v4, v4, v5")
            A(f"buffer_store_dword v4, v10, s[{S_N}:{S_N+3}], s{S_T2} offen offset:{tb * 64}")
    A(f"s_branch {fin}")
    A.label(f"L_{name}_epi_h")
    A(f"s_add_u32 s4, s{S_WS}, {AH_OFF}"); A(f"s_addc_u32 s5, s{S_WS+1}, 0")
    srd(A, S_O, "s4", "s5", 64 * AH_TB)
    A("v_lshrrev_b32 v7, 1, v4"); A("v_lshlrev_b32 v7, 10, v7")
    A("v_and_b32 v8, 1, v4"); A("v_lshl_add_u32 v7, v8, 9, v7")
    A("v_lshl_add_u32 v7, v3, 4, v7")
    A(f"s_lshr_b32 s{S_T1}, s{S_TOK}, 5")
    A(f"s_mul_i32 s{S_T1}, s{S_T1}, {AH_TB}")
    A(f"s_lshl_b32 s{S_T2}, s{S_BLK0}, 11")
    A(f"s_add_u32 s{S_T1}, s{S_T1}, s{S_T2}")
    A(f"s_add_u32 s{S_T1}, s{S_T1}, {32 * 2048}")
    A(f"s_mov_b32 s44, {fbits(-math.log2(math.e))}"); A("s_mov_b32 s45, s44")
    A("s_mov_b32 s46, 1.0"); A("s_mov_b32 s47, 1.0")
    TP = [8, 10, 12, 14]
    for p in range(7):
        for tb in range(4):
            E = acc(2 * p, tb); F = acc(2 * p + 1, tb)
            prs = [E, E + 2, F, F + 2]
            for k, R in enumerate(prs): A(f"v_pk_mul_f32 {v(TP[k], 2)}, {v(R, 2)}, s[44:45]")
            for k in range(4):
                A(f"v_exp_f32 {v(TP[k])}, {v(TP[k])}"); A(f"v_exp_f32 {v(TP[k] + 1)}, {v(TP[k] + 1)}")
            for k in range(4): A(f"v_pk_add_f32 {v(TP[k], 2)}, {v(TP[k], 2)}, s[46:47]")
            for k in range(4):
                A(f"v_rcp_f32 {v(TP[k])}, {v(TP[k])}"); A(f"v_rcp_f32 {v(TP[k] + 1)}, {v(TP[k] + 1)}")
            A(f"s_add_u32 s{S_T2}, s{S_T1}, {(tb >> 1) * AH_TB + p * 2048 + (tb & 1) * 256}")
            for k, R in enumerate(prs): A(f"v_pk_mul_f32 {v(R, 2)}, {v(R, 2)}, {v(TP[k], 2)}")
            A(f"v_cvt_pk_bf16_f32 {v(E)}, {v(E)}, {v(E + 1)}")
            A(f"v_cvt_pk_bf16_f32 {v(E + 1)}, {v(E + 2)}, {v(E + 3)}")
            A(f"v_cvt_pk_bf16_f32 {v(E + 2)}, {v(F)}, {v(F + 1)}")
            A(f"v_cvt_pk_bf16_f32 {v(E + 3)}, {v(F + 2)}, {v(F + 3)}")
            A(f"buffer_store_dwordx4 {v(E, 4)}, v7, s[{S_O}:{S_O+3}], s{S_T2} offen{sc}")
    A(f"s_branch {fin}")
    A.label(f"L_{name}_vpath")
    gen_mainloop(A, name + "_v", True, PD, XD, prol)
    stamp(A, 4)
    A("v_and_b32 v3, 15, v17"); A("v_lshrrev_b32 v4, 4, v17")
    A(f"s_add_u32 s4, s{S_WS}, {QKV_OFF}"); A(f"s_addc_u32 s5, s{S_WS+1}, 0")
    srd(A, S_O, "s4", "s5", 12 * MB)
    A("v_lshrrev_b32 v7, 1, v4"); A("v_lshlrev_b32 v7, 10, v7")
    A("v_and_b32 v8, 1, v4"); A("v_lshl_add_u32 v7, v8, 9, v7")
    A("v_lshl_add_u32 v7, v3, 4, v7")
    A(f"s_lshl_b32 s{S_T3}, s{S_BLK0}, 17")
    A(f"s_lshl_b32 s47, s{S_TOK}, 6")
    A(f"s_add_u32 s{S_T3}, s{S_T3}, s47")
    for kb in range(2):
        for cb in range(NCB):
            E = acc(cb, 2 * kb); F = acc(cb, 2 * kb + 1)
            A(f"v_cvt_pk_bf16_f32 {v(E)}, {v(E)}, {v(E + 1)}")
            A(f"v_cvt_pk_bf16_f32 {v(E + 1)}, {v(E + 2)}, {v(E + 3)}")
            A(f"v_cvt_pk_bf16_f32 {v(E + 2)}, {v(F)}, {v(F + 1)}")
            A(f"v_cvt_pk_bf16_f32 {v(E + 3)}, {v(F + 2)}, {v(F + 3)}")
            A(f"s_add_u32 s47, s{S_T3}, {(cb >> 1) * 131072 + kb * 2048}")
            A(f"buffer_store_dwordx4 {v(E, 4)}, v7, s[{S_O}:{S_O+3}], s47 offen offset:{(cb & 1) * 256}{sc}")
    A.label(fin)
    if PROF["on"]:
        A("s_waitcnt vmcnt(0)")
        stamp(A, 5)
        prof_flush(A, 0, 8, S_WV)
    A.label(end)
    A("s_endpgm")
    kernel_end(A, name, 256 + NAGPR, 256, 102)
    return A.text(), dict(grid=256, block=256, lds=LDS_BYTES)
```

```python
from asmlib import *
from layout import *
from vmsim import VmSim
import math

R = 8
V_L16 = 2
Q = {'a': 8, 'b': 16}
S = {'a': 32, 'b': 48}
P = {'a': 64, 'b': 72}
O = {'a': 80, 'b': 96}
L = {'a': 112, 'b': 128}
SEL = 144
M = {'a': 148, 'b': 149}
LS = {'a': 150, 'b': 151}
def kreg(slot, j): return slot * 16 + j * 4
def vreg(slot, j): return slot * 16 + 8 + j * 4
ACC = 152
def gacc(cb): return ACC + cb * 16
V_TR = 216
V_WD = 220
V_F = 221
V_FA = 222
NV = 232
def areg(slot, j): return (128 + (slot * 2 + j) * 4) if slot < 8 else ((slot - 8) * 2 + j) * 4
def wreg(buf, j, cb): return 192 + (buf * 8 + j * 4 + cb) * 4
WSLOT = 32768
LDS_BYTES = 4 * WSLOT
S_K = 8; S_V = 12; S_Q = 16; S_O = 20; S_N = 24
S_KOFF = 28; S_IT = 29; S_WV = 30; S_HEAD = 31; S_TB = 32
S_WS = 34
S_GW = 40; S_GA = 44; S_F = 48
S_WO = 52
S_WOFF = 56; S_AOFF = 57; S_M0 = 58; S_WST = 59; S_AST = 60; S_HALF = 61; S_MT = 62; S_NT = 63
S_WSW = 88; S_ASW = 89; S_AEND = 90; S_FIRST = 91; S_GOTP = 92; S_TD = 93; S_NIT = 94
S_QT = 33

def qk(x, slot, j):
    c = "0" if j == 0 else v(S[x], 16)
    return f"v_mfma_f32_32x32x16_bf16 {v(S[x],16)}, {a(kreg(slot, j),4)}, {v(Q[x]+4*j,4)}, {c}"
def pv(x, slot, j):
    return f"v_mfma_f32_32x32x16_bf16 {v(O[x],16)}, {a(vreg(slot, j),4)}, {v(P[x]+4*j,4)}, {v(O[x],16)}"
def rs(x, j):
    if opt("rs32", 0):
        return f"v_mfma_f32_32x32x16_bf16 {v(L[x],16)}, {v(SEL,4)}, {v(P[x]+4*j,4)}, {v(L[x],16)}"
    return f"v_mfma_f32_16x16x32_bf16 {v(L[x],4)}, {v(SEL,4)}, {v(P[x]+4*j,4)}, {v(L[x],4)}"
def kload(slot, j, off, so=None):
    return f"buffer_load_dwordx4 {a(kreg(slot, j),4)}, {v(V_L16)}, s[{S_K}:{S_K+3}], s{so or S_KOFF} offen offset:{off + j*1024}"
def vload(slot, j, off, so=None):
    return f"buffer_load_dwordx4 {a(vreg(slot, j),4)}, {v(V_L16)}, s[{S_V}:{S_V+3}], s{so or S_KOFF} offen offset:{off + j*1024}"

def half(A, x, mf, extra):
    e = [f"v_exp_f32 {v(S[x]+i)}, {v(S[x]+i)}" for i in range(16)]
    c = [f"v_cvt_pk_bf16_f32 {v(P[x]+i)}, {v(S[x]+2*i)}, {v(S[x]+2*i+1)}" for i in range(8)]
    seq = [e[0], e[1], e[2], e[3], c[0], e[4], e[5], c[1], e[6], e[7], c[2], e[8], e[9], c[3],
           e[10], e[11], c[4], e[12], e[13], c[5], e[14], e[15], c[6], c[7]]
    mpos = opt("mpos", [0, 3, 8, 12, 17, 21]) if not opt("rs32", 0) else [0, 4, 8, 12, 16, 20]
    k = 0
    for i, ins in enumerate(seq):
        if k < len(mf) and i == mpos[k]:
            A(mf[k]); k += 1
        A(ins)
        for z in extra.get(i, []): A(z)

def g_tr(n):
    st = (n >> 2) & 1; sub = n & 3
    out = []
    for j in range(2):
        for cb in range(4):
            for h in range(2):
                out.append(f"ds_read_b64_tr_b16 {a(wreg(n & 1, j, cb) + 2 * h, 2)}, {v(V_TR + cb)} offset:{st * WSLOT + sub * 8192 + j * 2048 + h * 4096}")
    return out
def g_aload(slot, j, imm):
    return f"buffer_load_dwordx4 {a(areg(slot, j), 4)}, {v(V_L16)}, s[{S_GA}:{S_GA+3}], s{S_AOFF} offen offset:{imm} sc1"
def g_dma(i):
    pre = []
    if i == 4: pre += [f"s_add_u32 s{S_TD}, s{S_M0}, 4096", f"s_mov_b32 m0, s{S_TD}"]
    pre.append(f"s_add_u32 s{S_TD}, s{S_WOFF}, {4 * i * 2048 - (i & 3) * 1024}")
    return pre + [f"buffer_load_dwordx4 {v(V_WD)}, s[{S_GW}:{S_GW+3}], s{S_TD} offen offset:{(i & 3) * 1024} lds"]
def g_next_stage():
    return [f"s_add_u32 s{S_WST}, s{S_WST}, 1",
            f"s_add_u32 s{S_WOFF}, s{S_WOFF}, {128 * 2048}",
            f"s_cmp_eq_u32 s{S_WST}, s{S_WSW}",
            f"s_cselect_b32 s{S_WOFF}, 0, s{S_WOFF}",
            f"s_cselect_b32 s{S_GW}, s{S_WO}, s{S_GW}",
            f"s_cselect_b32 s{S_GW+1}, s{S_WO+1}, s{S_GW+1}",
            f"s_cselect_b32 s{S_GW+2}, s{S_WO+2}, s{S_GW+2}",
            f"s_add_u32 s{S_M0}, s{S_M0}, {WSLOT}",
            f"s_and_b32 s{S_M0}, s{S_M0}, {4 * WSLOT - 1}",
            f"s_mov_b32 m0, s{S_M0}"]
def g_flagload():
    return f"buffer_load_dword {v(V_F)}, {v(V_FA)}, s[{S_F}:{S_F+3}], 0 offen sc1"

def spin(A, name, tag, lane, target, st1, st2):
    A(f"s_mov_b32 s{st1}, 0x8000")
    A.label(f"L_{name}_spin{tag}")
    A(g_flagload())
    A("s_waitcnt vmcnt(0)")
    A(f"v_readlane_b32 s{st2}, {v(V_F)}, {lane}")
    A(f"s_sub_u32 s{st1}, s{st1}, 1")
    A(f"s_cmp_eq_u32 s{st1}, 0")
    A(f"s_cbranch_scc1 L_{name}_spun{tag}")
    A(f"s_cmp_ge_u32 s{st2}, {target}")
    A(f"s_cbranch_scc1 L_{name}_spun{tag}")
    A("s_sleep 4")
    A(f"s_branch L_{name}_spin{tag}")
    A.label(f"L_{name}_spun{tag}")

def gen_l2(name):
    PD = 4; XD = 15; NB = 16
    A = Asm()
    kernel_begin(A, name)
    end = f"L_{name}_end"; fin = f"L_{name}_fin"
    GS = opt("g_stamps")
    A("s_cmp_ge_u32 s2, 256")
    A(f"s_cbranch_scc1 {end}")
    stamp(A, 0)
    A(f"s_load_dwordx2 s[{S_WS}:{S_WS+1}], s[0:1], {KARG['ws']}")
    A(f"s_load_dwordx2 s[{S_WO}:{S_WO+1}], s[0:1], {KARG['wo']}")
    A(f"s_load_dwordx2 s[4:5], s[0:1], {KARG['w2']}")
    A(f"s_load_dwordx2 s[96:97], s[0:1], {KARG['x']}")
    A(f"s_load_dwordx2 s[98:99], s[0:1], {KARG['out']}")
    A("s_and_b32 s3, s2, 7")
    A("s_lshr_b32 s6, s2, 3")
    A("s_lshl_b32 s7, s3, 2")
    A("s_lshr_b32 s36, s6, 3")
    A(f"s_add_u32 s{S_HEAD}, s7, s36")
    A(f"s_and_b32 s{S_QT}, s6, 7")
    A(f"s_and_b32 s{S_HALF}, s6, 1")
    A("s_lshr_b32 s6, s6, 1")
    A("s_and_b32 s7, s3, 3"); A("s_lshl_b32 s7, s7, 2"); A("s_and_b32 s36, s6, 3")
    A(f"s_add_u32 s{S_MT}, s7, s36")
    A("s_lshr_b32 s7, s3, 2"); A("s_lshl_b32 s7, s7, 2"); A("s_lshr_b32 s36, s6, 2")
    A(f"s_add_u32 s{S_NT}, s7, s36")
    A("v_and_b32 v1, 63, v0")
    A("v_lshrrev_b32 v3, 6, v0")
    A(f"v_lshlrev_b32 {v(V_L16)}, 4, v1")
    A(f"v_readfirstlane_b32 s{S_WV}, v3")
    A("s_nop 1")
    A(f"s_lshl_b32 s6, s{S_QT}, 3")
    A(f"s_lshl_b32 s7, s{S_WV}, 1")
    A(f"s_add_u32 s{S_TB}, s6, s7")
    A("s_waitcnt lgkmcnt(0)")
    WS = f"s{S_WS}"; WS1 = f"s{S_WS+1}"
    A(f"s_lshl_b32 s6, s{S_HEAD}, 17")
    A(f"s_add_u32 s36, {WS}, {QKV_OFF}"); A(f"s_addc_u32 s37, {WS1}, 0")
    A("s_add_u32 s36, s36, s6"); A("s_addc_u32 s37, s37, 0")
    srd(A, S_Q, "s36", "s37", 131072)
    A(f"s_add_u32 s36, s36, {32*131072}"); A("s_addc_u32 s37, s37, 0")
    srd(A, S_K, "s36", "s37", 131072)
    A(f"s_add_u32 s36, s36, {32*131072}"); A("s_addc_u32 s37, s37, 0")
    srd(A, S_V, "s36", "s37", 131072)
    A(f"s_add_u32 s36, {WS}, {NRM_OFF}"); A(f"s_addc_u32 s37, {WS1}, 0")
    srd(A, S_N, "s36", "s37", 512*1024)
    A(f"s_add_u32 s36, {WS}, {AH_OFF}"); A(f"s_addc_u32 s37, {WS1}, 0")
    srd(A, S_O, "s36", "s37", 64*AH_TB)
    A(f"s_lshl_b32 s6, s{S_TB}, 11")
    for xi, x in enumerate("ab"):
        for j in range(2):
            A(f"buffer_load_dwordx4 {v(Q[x]+4*j,4)}, {v(V_L16)}, s[{S_Q}:{S_Q+3}], s6 offen offset:{xi*2048 + j*1024}")
    A(f"s_mov_b32 s{S_KOFF}, 0")
    A(kload(0, 0, 0)); A(kload(0, 1, 0))
    A(f"s_lshl_b32 s6, s{S_HEAD}, 13")
    A(f"s_lshl_b32 s7, s{S_TB}, 7")
    A("s_add_u32 s7, s7, s6")
    A("v_lshlrev_b32 v3, 2, v1")
    A(f"buffer_load_dword v4, v3, s[{S_N}:{S_N+3}], s7 offen")
    A(f"s_add_u32 s6, s6, {32*8192}")
    for i in range(8):
        A(f"buffer_load_dwordx4 {v(32+4*i,4)}, {v(V_L16)}, s[{S_N}:{S_N+3}], s6 offen offset:{(i&3)*1024}")
        if i == 3: A("s_add_u32 s6, s6, 4096")
    for r in range(8):
        A(f"v_accvgpr_write_b32 {a(vreg(7,0)+r)}, 0")
    for kb in range(-7, 0):
        kk = kb + 8; vv = kb + 7
        A(f"s_mov_b32 s{S_KOFF}, {kk * 2048}")
        A(kload(kk % R, 0, 0)); A(kload(kk % R, 1, 0))
        A(f"s_mov_b32 s{S_KOFF}, {vv * 2048}")
        A(vload(vv % R, 0, 0)); A(vload(vv % R, 1, 0))
    A(f"s_lshl_b32 s6, s{S_NT}, 8")
    A(f"s_add_u32 s{S_WO}, s{S_WO}, s6"); A(f"s_addc_u32 s{S_WO+1}, s{S_WO+1}, 0")
    A(f"s_and_b32 s{S_WO+1}, s{S_WO+1}, 0xffff")
    A(f"s_sub_u32 s{S_WO+2}, {1024*2048}, s6")
    A("s_add_u32 s4, s4, s6"); A("s_addc_u32 s5, s5, 0")
    A(f"s_sub_u32 s7, {3584*2048}, s6")
    srd(A, S_GW, "s4", "s5", "s7")
    A(f"s_add_u32 s36, {WS}, {AH_OFF}"); A(f"s_addc_u32 s37, {WS1}, 0")
    A(f"s_lshl_b32 s6, s{S_MT}, 2"); A(f"s_add_u32 s6, s6, s{S_WV}")
    A(f"s_mul_i32 s6, s6, {AH_TB}")
    A("s_add_u32 s36, s36, s6"); A("s_addc_u32 s37, s37, 0")
    srd(A, S_GA, "s36", "s37", AH_TB)
    A(f"s_add_u32 s36, {WS}, {FLAGS_OFF}"); A(f"s_addc_u32 s37, {WS1}, 0")
    srd(A, S_F, "s36", "s37", NFLAGS * 128)
    A(f"s_cmp_eq_u32 s{S_HALF}, 0")
    A(f"s_cselect_b32 s{S_AOFF}, 32, 0x50")
    A(f"s_lshl_b32 s{S_AOFF}, s{S_AOFF}, 11")
    A(f"s_cmp_eq_u32 s{S_HALF}, 0")
    A(f"s_cselect_b32 s{S_WOFF}, 0, {1536*2048}")
    A(f"s_cselect_b32 s{S_WSW}, 12, 0x3e8")
    A(f"s_cselect_b32 s{S_ASW}, 48, 0x3e8")
    A(f"s_cselect_b32 s{S_AEND}, 0x50, 64")
    A(f"s_cselect_b32 s{S_NIT}, 5, 4")
    A(f"s_lshr_b32 s6, s{S_MT}, 1"); A("s_lshl_b32 s6, s6, 7")
    A(f"s_lshl_b32 s7, s{S_MT}, 3"); A(f"s_add_u32 s7, s7, s{S_NT}"); A("s_add_u32 s7, s7, 8"); A("s_lshl_b32 s7, s7, 7")
    A("v_mov_b32 v5, s7"); A("v_mov_b32 v6, s6"); A("v_cmp_eq_u32 vcc, 0, v1"); A("s_nop 1")
    A(f"v_cndmask_b32 {v(V_FA)}, v5, v6, vcc")
    A("v_lshrrev_b32 v5, 4, v1"); A("v_and_b32 v6, 15, v1")
    A("v_lshlrev_b32 v7, 2, v5"); A("v_xor_b32 v7, v7, v6")
    A(f"s_lshl_b32 s6, s{S_WV}, 5")
    A("v_add_u32 v24, s6, v5"); A("v_lshlrev_b32 v24, 11, v24")
    A(f"v_lshl_add_u32 {v(V_WD)}, v7, 4, v24")
    A("v_lshrrev_b32 v7, 2, v6")
    A("v_lshrrev_b32 v24, 5, v1"); A("v_lshl_add_u32 v24, v24, 2, v7")
    A("v_lshlrev_b32 v24, 8, v24")
    A("v_and_b32 v25, 1, v5"); A("v_lshl_add_u32 v24, v25, 5, v24")
    A("v_and_b32 v25, 3, v6"); A("v_lshl_add_u32 v24, v25, 3, v24")
    for cb in range(4):
        A(f"v_xor_b32 v25, {cb}, v7"); A(f"v_lshl_add_u32 {v(V_TR+cb)}, v25, 6, v24")
    for x in "ab":
        for r in range(16): A(f"v_mov_b32 {v(O[x]+r)}, 0")
        for r in range(16): A(f"v_mov_b32 {v(L[x]+r)}, 0")
    for r in range(8): A(f"v_mov_b32 {v(P['b']+r)}, 0")
    for r in range(64): A(f"v_mov_b32 {v(ACC+r)}, 0")
    if opt("rs32", 0):
        A("v_and_b32 v5, 31, v1"); A("v_cmp_eq_u32 vcc, 0, v5")
    else:
        A("v_and_b32 v5, 15, v1"); A("v_lshrrev_b32 v6, 4, v1"); A("v_and_b32 v6, 1, v6"); A("v_cmp_eq_u32 vcc, v5, v6")
    A("v_mov_b32 v7, 0x3f803f80")
    A("s_nop 0")
    for r in range(4): A(f"v_cndmask_b32 {v(SEL+r)}, 0, v7, vcc")
    A("s_waitcnt vmcnt(28)")
    for i in range(16): A(f"v_max_f32 {v(32+i)}, {v(32+i)}, {v(48+i)}")
    n = 16
    while n > 1:
        n //= 2
        for i in range(n): A(f"v_max_f32 {v(32+i)}, {v(32+i)}, {v(32+i+n)}")
    def wave_max(r, sd):
        for sh in (8, 4, 2, 1):
            A("s_nop 1")
            A(f"v_max_f32_dpp {v(r)}, {v(r)}, {v(r)} row_ror:{sh} row_mask:0xf bank_mask:0xf")
        A("s_nop 1")
        for k, ln in enumerate((0, 16, 32, 48)): A(f"v_readlane_b32 s{36+k}, {v(r)}, {ln}")
        A("s_nop 1")
        A("s_max_u32 s36, s36, s37"); A("s_max_u32 s38, s38, s39"); A(f"s_max_u32 s{sd}, s36, s38")
    wave_max(32, 6); wave_max(4, 7)
    A("v_mov_b32 v5, s6"); A("v_mul_f32 v5, s7, v5")
    A(f"v_mov_b32 v6, {fbits(4000.0)}")
    A("v_cmp_le_f32 vcc, v5, v6")
    A("s_nop 4")
    A(f"s_cbranch_vccz L_{name}_slow")
    def gemm_prologue_groups():
        g = []
        first = [f"s_lshl_b32 s{S_M0}, s{S_WV}, 13", f"s_mov_b32 s{S_WST}, 0", f"s_mov_b32 m0, s{S_M0}"]
        for i in range(8): g.append((first if i == 0 else []) + g_dma(i))
        for s_ in range(7):
            for j in range(2):
                grp = [g_aload(s_, j, (s_ % 2) * 2048 + j * 1024)]
                if s_ % 2 == 1 and j == 1: grp.append(f"s_add_u32 s{S_AOFF}, s{S_AOFF}, 4096")
                g.append(grp)
        for i in range(8): g.append((g_next_stage() if i == 0 else []) + g_dma(i))
        return g
    def gemm_prologue_rest():
        for s_ in range(7, XD):
            for j in range(2):
                A(g_aload(s_, j, (s_ % 2) * 2048 + j * 1024))
            if s_ % 2 == 1: A(f"s_add_u32 s{S_AOFF}, s{S_AOFF}, 4096")
        for st in (2, 3):
            for i in range(8 if st == 2 else 2):
                for z in (g_next_stage() if i == 0 else []) + g_dma(i): A(z)
        A(f"s_mov_b32 s{S_AST}, {XD}")
    A(qk('a', 0, 0)); A(qk('a', 0, 1))
    A(f"s_mov_b32 s{S_KOFF}, {8*2048}")
    A(f"s_movk_i32 s{S_IT}, 7")
    A("s_nop 7"); A("s_nop 7")
    stamp(A, 1)
    off = lambda rel: [f"s_add_u32 s3, s{S_KOFF}, {rel*2048}" if rel >= 0 else f"s_sub_u32 s3, s{S_KOFF}, {-rel*2048}"]
    p0, p1 = opt("kvp0", 9), opt("kvp1", 20)
    def attn_body(last):
        gp = gemm_prologue_groups() if last else None
        for u in range(R):
            if last: ea = {p0: gp.pop(0), p1: gp.pop(0)}
            else: ea = {p0: off(u) + [kload(u, 0, 0, 3)], p1: [kload(u, 1, 0, 3)]}
            half(A, 'a', [qk('b', u, 0), qk('b', u, 1), pv('b', (u-1) % R, 0), pv('b', (u-1) % R, 1), rs('b', 0), rs('b', 1)], ea)
            A("s_waitcnt vmcnt(26)")
            if last and u > 0: eb = {p0: gp.pop(0), p1: gp.pop(0)}
            else: eb = {p0: off(u - 1) + [vload((u-1) % R, 0, 0, 3)], p1: [vload((u-1) % R, 1, 0, 3)]}
            mf = [qk('a', (u+1) % R, 0), qk('a', (u+1) % R, 1), pv('a', u, 0), pv('a', u, 1), rs('a', 0), rs('a', 1)]
            if last and u == R - 1: mf[0] = "s_nop 0"; mf[1] = "s_nop 0"
            half(A, 'b', mf, eb)
        if last: assert not gp
    A.raw(".p2align 6")
    A.label(f"L_{name}_loop")
    attn_body(False)
    A(f"s_add_u32 s{S_KOFF}, s{S_KOFF}, {R*2048}")
    A(f"s_sub_u32 s{S_IT}, s{S_IT}, 1")
    A(f"s_cmp_lg_u32 s{S_IT}, 0")
    A(f"s_cbranch_scc1 L_{name}_loop")
    attn_body(True)
    stamp(A, 2)
    A("s_nop 1")
    A(pv('b', 7, 0)); A(pv('b', 7, 1)); A(rs('b', 0)); A(rs('b', 1))
    gemm_prologue_rest()
    A("s_nop 7")
    if opt("rs32", 0):
        for x in "ab":
            A(f"v_mov_b32 {v(LS[x])}, {v(L[x])}"); A(f"v_mov_b32 v5, {v(L[x])}"); A("s_nop 1")
            A(f"v_permlane32_swap_b32 {v(LS[x])}, v5")
    else:
        A("v_and_b32 v3, 15, v1"); A("v_lshlrev_b32 v3, 2, v3")
        A("v_lshrrev_b32 v4, 4, v1"); A("v_and_b32 v4, 1, v4"); A("v_cmp_eq_u32 vcc, 1, v4")
        for x in "ab":
            A(f"ds_bpermute_b32 v5, v3, {v(L[x])}"); A(f"ds_bpermute_b32 v6, v3, {v(L[x]+1)}")
            A("s_waitcnt lgkmcnt(0)")
            A(f"v_cndmask_b32 {v(LS[x])}, v5, v6, vcc")
    A(f"s_branch L_{name}_afin")
    A.label(f"L_{name}_slow")
    A("s_waitcnt vmcnt(0)")
    for x in "ab":
        A(f"v_mov_b32 {v(M[x])}, 0xff800000"); A(f"v_mov_b32 {v(LS[x])}, 0")
    A(f"s_mov_b32 s{S_KOFF}, 0")
    A(f"s_movk_i32 s{S_IT}, 64")
    A.label(f"L_{name}_sloop")
    A(kload(0, 0, 0)); A(kload(0, 1, 0)); A(vload(0, 0, 0)); A(vload(0, 1, 0))
    A("s_waitcnt vmcnt(0)")
    for x in "ab":
        A(qk(x, 0, 0)); A(qk(x, 0, 1))
        A("s_nop 7"); A("s_nop 7")
        A(f"v_max3_f32 v3, {v(S[x])}, {v(S[x]+1)}, {v(M[x])}")
        for i in range(2, 16, 2): A(f"v_max3_f32 v3, {v(S[x]+i)}, {v(S[x]+i+1)}, v3")
        A("v_mov_b32 v4, v3"); A("s_nop 1")
        A("v_permlane32_swap_b32 v3, v4"); A("s_nop 1")
        A("v_max_f32 v3, v3, v4")
        A(f"v_sub_f32 v4, {v(M[x])}, v3")
        A("v_exp_f32 v4, v4")
        A(f"v_mov_b32 {v(M[x])}, v3")
        for i in range(16): A(f"v_sub_f32 {v(S[x]+i)}, {v(S[x]+i)}, v3")
        for i in range(16): A(f"v_exp_f32 {v(S[x]+i)}, {v(S[x]+i)}")
        for i in range(16): A(f"v_mul_f32 {v(O[x]+i)}, {v(O[x]+i)}, v4")
        for i in range(8): A(f"v_cvt_pk_bf16_f32 {v(P[x]+i)}, {v(S[x]+2*i)}, {v(S[x]+2*i+1)}")
        A(f"v_mul_f32 {v(LS[x])}, {v(LS[x])}, v4")
        for i in range(16): A(f"v_add_f32 {v(LS[x])}, {v(LS[x])}, {v(S[x]+i)}")
        A(pv(x, 0, 0)); A(pv(x, 0, 1))
        A("s_nop 7"); A("s_nop 7")
    A(f"s_add_u32 s{S_KOFF}, s{S_KOFF}, 2048")
    A(f"s_sub_u32 s{S_IT}, s{S_IT}, 1")
    A(f"s_cmp_lg_u32 s{S_IT}, 0")
    A(f"s_cbranch_scc1 L_{name}_sloop")
    for x in "ab":
        A(f"v_mov_b32 v4, {v(LS[x])}"); A("s_nop 1")
        A(f"v_permlane32_swap_b32 {v(LS[x])}, v4"); A("s_nop 1")
        A(f"v_add_f32 {v(LS[x])}, {v(LS[x])}, v4")
    for grp in gemm_prologue_groups():
        for z in grp: A(z)
    gemm_prologue_rest()
    A.label(f"L_{name}_afin")
    A(f"s_mul_i32 s6, s{S_TB}, {AH_TB}")
    A(f"s_lshl_b32 s7, s{S_HEAD}, 11"); A("s_add_u32 s6, s6, s7")
    for xi, x in enumerate("ab"):
        A(f"v_rcp_f32 v4, {v(LS[x])}"); A("s_nop 0")
        for i in range(16): A(f"v_mul_f32 {v(O[x]+i)}, {v(O[x]+i)}, v4")
        T = S[x]
        for j in range(2):
            A(f"v_cvt_pk_bf16_f32 {v(T+4*j)}, {v(O[x]+4*j)}, {v(O[x]+4*j+1)}")
            A(f"v_cvt_pk_bf16_f32 {v(T+4*j+1)}, {v(O[x]+4*j+2)}, {v(O[x]+4*j+3)}")
            A(f"v_cvt_pk_bf16_f32 {v(T+4*j+2)}, {v(O[x]+8+4*j)}, {v(O[x]+8+4*j+1)}")
            A(f"v_cvt_pk_bf16_f32 {v(T+4*j+3)}, {v(O[x]+8+4*j+2)}, {v(O[x]+8+4*j+3)}")
            A(f"buffer_store_dwordx4 {v(T+4*j,4)}, {v(V_L16)}, s[{S_O}:{S_O+3}], s6 offen offset:{j*1024} sc1")
        if xi == 0: A(f"s_add_u32 s6, s6, {AH_TB}")
    srd(A, S_V, "s96", "s97", 4*MB)
    srd(A, S_Q, "s98", "s99", 4*MB)
    A("v_lshrrev_b32 v5, 4, v1"); A("v_and_b32 v6, 15, v1")
    A("v_lshlrev_b32 v3, 11, v5"); A("v_lshl_add_u32 v3, v6, 4, v3")
    A(f"s_lshl_b32 s7, s{S_MT}, 7"); A(f"s_lshl_b32 s36, s{S_WV}, 5"); A("s_add_u32 s7, s7, s36")
    A("s_lshl_b32 s7, s7, 11"); A(f"s_lshl_b32 s36, s{S_NT}, 8"); A("s_add_u32 s95, s7, s36")
    XR = 112
    A(f"s_cmp_eq_u32 s{S_HALF}, 0")
    A(f"s_cbranch_scc0 L_{name}_nox")
    A("s_mov_b32 s7, s95")
    for i in range(8):
        A(f"buffer_load_dwordx4 {v(XR + 4*i, 4)}, v3, s[{S_V}:{S_V+3}], s7 offen")
        if i < 7: A(f"s_add_u32 s7, s7, {4 * 2048}")
    A.label(f"L_{name}_nox")
    A("s_waitcnt vmcnt(52)")
    A("s_barrier")
    stamp(A, 3)
    A(f"s_mov_b32 s{S_IT}, s{S_NIT}")
    A(f"s_mov_b32 s{S_FIRST}, 1")
    A(f"s_mov_b32 s{S_GOTP}, 0")
    for r in g_tr(0): A(r)
    def body_ops(it):
        ops = []
        for n in range(NB):
            ph = (n + 1) % 4
            st = 4 * it + ((n + 1) >> 2) - 1 + PD
            if n == 2: ops.append((n, ('F', it)))
            ops.append((n, ('A', NB * it + n + XD, 0))); ops.append((n, ('W', st, 2 * ph)))
            ops.append((n, ('A', NB * it + n + XD, 1))); ops.append((n, ('W', st, 2 * ph + 1)))
        return ops
    waits = {n: 63 for n in range(NB)}
    sim = VmSim()
    for t in [('W', 0, i) for i in range(8)] + [('A', s_, j) for s_ in range(7) for j in range(2)] + [('W', 1, i) for i in range(8)] + \
             [('A', s_, j) for s_ in range(7, XD) for j in range(2)] + \
             [('W', 2, i) for i in range(8)] + [('W', 3, i) for i in range(2)] + [('S', i) for i in range(4)]: sim.issue(t)
    SIGN = 7; sig_wait = None
    for it in range(3):
        ops = body_ops(it)
        for n in range(NB):
            g = NB * it + n
            need = sim.need(lambda t: t[0] == 'A' and t[1] == g)
            if n % 4 == 3:
                need = min(need, sim.need(lambda t: t[0] == 'W' and t[1] == 4 * it + (n >> 2) + 1))
            if n == 1 and it > 0: need = min(need, sim.need(lambda t: t[0] == 'F' and t[1] == it - 1))
            if n == SIGN and it == 0: sig_wait = sim.need(lambda t: t[0] == 'S')
            waits[n] = min(waits[n], need)
            for (s_, t) in ops:
                if s_ == n: sim.issue(t)
    assert max(waits.values()) <= 63
    PR = 32
    A.raw(".p2align 6")
    A.label(f"L_{name}_gloop")
    for n in range(NB):
        A.c(f"gemm step {n}")
        A(f"s_waitcnt vmcnt({waits[n]}) lgkmcnt(0)")
        if n % 4 == 3 and not opt("g_nobar"): A("s_barrier")
        fill = [[] for _ in range(8)]
        reads = []
        if n % 8 == 7: reads += [f"v_xor_b32 {v(V_TR+cb)}, 0x10000, {v(V_TR+cb)}" for cb in range(4)]
        reads += g_tr(n + 1) if not opt("g_notr") else []
        k = 0; m = 0
        while k < len(reads):
            cnt = 4 if m < 1 and n % 8 == 7 else 3
            fill[m] += reads[k:k + cnt]; k += cnt; m += 1
        tgt = n + XD
        pre = []
        if n == 1:
            pre += [f"s_cmp_eq_u32 s{S_IT}, 1", ("BR", f"s_cbranch_scc1 L_{name}_last", f"L_{name}_lastback")]
            pre += [f"s_cmp_eq_u32 s{S_AST}, s{S_ASW}", ("BR", f"s_cbranch_scc1 L_{name}_asw", f"L_{name}_aback"),
                    f"s_cmp_eq_u32 s{S_AST}, s{S_AEND}", f"s_cselect_b32 s{S_GA+2}, 0, s{S_GA+2}"]
        if n == 2: pre += [g_flagload()]
        if n == SIGN:
            pre += [f"s_cmp_eq_u32 s{S_FIRST}, 1", ("BR", f"s_cbranch_scc1 L_{name}_sig", f"L_{name}_sigback")]
        ph = (n + 1) % 4
        ns = g_next_stage() if ph == 0 else []
        imm = (tgt % 2) * 2048
        fill[0] = pre + fill[0]
        fill[1].append(g_aload(tgt % NB, 0, imm))
        fill[2] += ns
        fill[3] += g_dma(2 * ph)
        fill[5].append(g_aload(tgt % NB, 1, imm + 1024))
        if tgt % 2 == 1: fill[5].append(f"s_add_u32 s{S_AOFF}, s{S_AOFF}, 4096")
        fill[5].append(f"s_add_u32 s{S_AST}, s{S_AST}, 1")
        fill[7] += g_dma(2 * ph + 1)
        if opt("g_novm"):
            fill = [[z for z in f if isinstance(z, tuple) or not z.startswith("buffer_load")] for f in fill]
        for m in range(8):
            j, cb = m // 4, m % 4
            d = v(gacc(cb), 16)
            A(f"v_mfma_f32_32x32x16_bf16 {d}, {a(wreg(n & 1, j, cb), 4)}, {a(areg(n, j), 4)}, {d}")
            for z in fill[m]:
                if isinstance(z, tuple):
                    A(z[1]); A.label(z[2])
                else: A(z)
    A(f"s_sub_u32 s{S_IT}, s{S_IT}, 1")
    A(f"s_cmp_lg_u32 s{S_IT}, 0")
    A(f"s_cbranch_scc1 L_{name}_gloop")
    A(f"s_branch L_{name}_gdone")
    A.label(f"L_{name}_asw")
    A(f"v_readlane_b32 s6, {v(V_F)}, 0")
    A("s_nop 3")
    A("s_cmp_ge_u32 s6, 128")
    A(f"s_cbranch_scc1 L_{name}_asw2")
    spin(A, name, "o", 0, 128, 7, 6)
    A.label(f"L_{name}_asw2")
    A(f"s_mov_b32 s{S_AOFF}, 0")
    A(f"s_branch L_{name}_aback")
    A.label(f"L_{name}_sig")
    A(f"s_mov_b32 s{S_FIRST}, 0")
    A(f"s_waitcnt vmcnt({sig_wait})")
    A(f"s_lshl_b32 s6, s{S_QT}, 7")
    A("v_mov_b32 v4, 1")
    A("s_mov_b64 s[36:37], exec"); A("s_mov_b64 exec, 1")
    A(f"buffer_atomic_add v4, off, s[{S_F}:{S_F+3}], s6")
    A("s_mov_b64 exec, s[36:37]")
    A(f"s_branch L_{name}_sigback")
    def part_srd():
        A(f"s_lshl_b32 s6, s{S_MT}, 3"); A(f"s_add_u32 s6, s6, s{S_NT}")
        A(f"s_add_u32 s36, {WS}, {PART_OFF}"); A(f"s_addc_u32 s37, {WS1}, 0")
        A("s_lshl_b32 s7, s6, 16"); A(f"s_lshl_b32 s38, s{S_WV}, 14"); A("s_add_u32 s7, s7, s38")
        A("s_add_u32 s36, s36, s7"); A("s_addc_u32 s37, s37, 0")
        srd(A, S_K, "s36", "s37", 16384)
    def part_loads():
        for i in range(16):
            if i % 4 == 0: A(f"s_mov_b32 s7, {i * 1024}")
            A(f"buffer_load_dwordx4 {v(PR + 4*i, 4)}, {v(V_L16)}, s[{S_K}:{S_K+3}], s7 offen offset:{(i % 4) * 1024} sc1")
    A.label(f"L_{name}_last")
    A(f"s_cmp_eq_u32 s{S_HALF}, 0")
    A(f"s_cbranch_scc0 L_{name}_lastback")
    A(f"v_readlane_b32 s6, {v(V_F)}, 1")
    A("s_nop 3")
    A("s_cmp_ge_u32 s6, 1")
    A(f"s_cbranch_scc0 L_{name}_lastback")
    part_srd(); part_loads()
    A(f"s_mov_b32 s{S_GOTP}, 1")
    A(f"s_branch L_{name}_lastback")
    A.label(f"L_{name}_gdone")
    stamp(A, 4)
    A(f"s_cmp_eq_u32 s{S_HALF}, 0")
    A(f"s_cbranch_scc1 L_{name}_final")
    part_srd()
    for i in range(16):
        if i % 4 == 0: A(f"s_mov_b32 s7, {i * 1024}")
        A(f"buffer_store_dwordx4 {v(ACC + 4*i, 4)}, {v(V_L16)}, s[{S_K}:{S_K+3}], s7 offen offset:{(i % 4) * 1024} sc1")
    A("s_waitcnt vmcnt(0)")
    A("s_barrier")
    A(f"s_cmp_eq_u32 s{S_WV}, 0")
    A(f"s_cbranch_scc0 {fin}")
    A(f"s_lshl_b32 s6, s{S_MT}, 3"); A(f"s_add_u32 s6, s6, s{S_NT}"); A("s_add_u32 s6, s6, 8"); A("s_lshl_b32 s6, s6, 7")
    A("v_mov_b32 v4, 1")
    A("s_mov_b64 exec, 1")
    A(f"buffer_store_dword v4, off, s[{S_F}:{S_F+3}], s6 sc1")
    A("s_mov_b64 exec, -1")
    A(f"s_branch {fin}")
    A.label(f"L_{name}_final")
    A(f"s_cmp_eq_u32 s{S_GOTP}, 1")
    A(f"s_cbranch_scc1 L_{name}_havep")
    spin(A, name, "p", 1, 1, 38, 39)
    part_srd(); part_loads()
    A.label(f"L_{name}_havep")
    A("s_waitcnt vmcnt(0)")
    A("s_barrier")
    A("v_and_b32 v5, 31, v1"); A("v_lshrrev_b32 v6, 5, v1")
    A("v_lshlrev_b32 v7, 9, v5"); A(f"s_lshl_b32 s6, s{S_WV}, 14"); A("v_add_u32 v7, s6, v7")
    A("v_and_b32 v5, 7, v5")
    for i in range(16):
        A(f"v_pk_add_f32 {v(ACC + 4*i, 2)}, {v(ACC + 4*i, 2)}, {v(PR + 4*i, 2)}")
        A(f"v_pk_add_f32 {v(ACC + 4*i + 2, 2)}, {v(ACC + 4*i + 2, 2)}, {v(PR + 4*i + 2, 2)}")
    for cb in range(4):
        for q in range(4):
            A(f"v_add_u32 v24, {cb * 8 + 2 * q}, v6"); A("v_xor_b32 v24, v24, v5"); A("v_lshl_add_u32 v24, v24, 4, v7")
            A(f"ds_write_b128 v24, {v(gacc(cb) + 4*q, 4)}")
    A("v_lshrrev_b32 v5, 4, v1"); A("v_and_b32 v6, 15, v1"); A("v_lshlrev_b32 v6, 1, v6")
    A("v_lshlrev_b32 v7, 9, v5"); A("v_add_u32 v7, s6, v7")
    A("s_waitcnt lgkmcnt(0)")
    for i in range(8):
        A(f"v_add_u32 v24, {4 * (i & 1)}, v5")
        A("v_xor_b32 v25, v6, v24"); A("v_lshl_add_u32 v25, v25, 4, v7")
        A(f"ds_read_b128 {v(ACC + 8*i, 4)}, v25 offset:{i * 2048}")
        A("v_xor_b32 v25, 16, v25")
        A(f"ds_read_b128 {v(ACC + 8*i + 4, 4)}, v25 offset:{i * 2048}")
    A("s_mov_b32 s39, 0xffff0000")
    A("s_mov_b32 s7, s95")
    for i in range(8):
        A(f"s_waitcnt lgkmcnt({14 - 2*i})")
        b = ACC + 8*i; xr = XR + 4*i
        for r in range(4):
            A(f"v_lshlrev_b32 v24, 16, {v(xr+r)}"); A(f"v_and_b32 v25, s39, {v(xr+r)}")
            A(f"v_pk_add_f32 {v(b+2*r, 2)}, {v(b+2*r, 2)}, v[24:25]")
        for r in range(4): A(f"v_cvt_pk_bf16_f32 {v(xr+r)}, {v(b+2*r)}, {v(b+2*r+1)}")
        A(f"buffer_store_dwordx4 {v(xr, 4)}, v3, s[{S_Q}:{S_Q+3}], s7 offen")
        if i < 7: A(f"s_add_u32 s7, s7, {4 * 2048}")
    A.label(fin)
    if PROF["on"]:
        A("s_waitcnt vmcnt(0)")
        stamp(A, 5)
        prof_flush(A, 1, 8, S_WV)
    A.label(end)
    A("s_endpgm")
    kernel_end(A, name, 512, 256, 102)
    return A.text(), dict(grid=256, block=256, lds=LDS_BYTES)
```

```python
MB = 1 << 20
STATS_OFF = 0
STMU_OFF  = 64 * 1024
STRS_OFF  = 72 * 1024
FLAGS_OFF = 128 * 1024
NFLAGS    = 392
PRIV_LINE = 136
QKV_OFF = 4 * MB
NRM_OFF = 16 * MB
AH_OFF  = 18 * MB
AH_TB   = 144 * 2048
PART_OFF = 36 * MB
XN_OFF = 44 * MB
WS_USED = 48 * MB
KARG = dict(x=0, wqkv=8, wo=16, bx=24, w1=32, w2=40, out=48, dbg=56, ws=64)
```

```python
class VmSim:
    def __init__(self):
        self.ops = []
    def issue(self, tag):
        self.ops.append(tag)
    def need(self, pred):
        for k in range(len(self.ops) - 1, -1, -1):
            if pred(self.ops[k]):
                return len(self.ops) - 1 - k
        return None
```

```python
import sys
import asmlib
from k_l1 import gen_l1
from k_l2 import gen_l2
NAME = "parallel_sum__softmax_full_mha__dense_activation_silu__prompt"
def build(path):
    ref = open(f"cdna_kernels/{NAME}.s.ref").read().split("\n")
    head = [l for l in ref if l.startswith(";") and "@launch" not in l and "Override launch" not in l and "grid=ceil" not in l]
    ks = [("l1_kernel", gen_l1), ("l2_kernel", gen_l2)]
    body = ""; launches = []
    for n, g in ks:
        t, cfg = g(n)
        body += t
        launches.append(f"; @launch kernel={n} grid=({cfg['grid']},1,1) block=({cfg['block']},1,1) lds={cfg['lds']}")
    out = "\n".join(head) + "\n" + "\n".join(launches) + "\n" + '.amdgcn_target "amdgcn-amd-amdhsa--gfx950"\n' + body
    open(path, "w").write(out)
if __name__ == "__main__":
    if "--prof" in sys.argv:
        asmlib.PROF["on"] = True
        sys.argv.remove("--prof")
    for x in list(sys.argv):
        if x.startswith("--opt="):
            k, val = x[6:].split("=")
            asmlib.OPT[k] = int(val)
            sys.argv.remove(x)
    build(sys.argv[1] if len(sys.argv) > 1 else f"cdna_kernels/{NAME}.s")
```

```python
class Asm:
    def __init__(self):
        self.lines = []
    def __call__(self, s=""):
        for l in s.split("\n"):
            l = l.strip()
            if l:
                self.lines.append("    " + l)
    def label(self, l):
        self.lines.append(l + ":")
    def raw(self, s):
        self.lines.append(s)
    def c(self, s):
        self.lines.append("    ; " + s)
    def text(self):
        return "\n".join(self.lines) + "\n"

def v(i, n=1):
    return f"v{i}" if n == 1 else f"v[{i}:{i+n-1}]"
def a(i, n=1):
    return f"a{i}" if n == 1 else f"a[{i}:{i+n-1}]"
def s(i, n=1):
    return f"s{i}" if n == 1 else f"s[{i}:{i+n-1}]"

def kernel_begin(A, name):
    A.raw(".text")
    A.raw(f".globl {name}")
    A.raw(".p2align 8")
    A.raw(f".type {name},@function")
    A.label(name)

def kernel_end(A, name, vgpr, accum, sgpr=102):
    A.raw('.section .rodata,"a"')
    A.raw(".p2align 6")
    A.raw(f".amdhsa_kernel {name}")
    A.raw(f"  .amdhsa_next_free_vgpr {vgpr}")
    A.raw(f"  .amdhsa_next_free_sgpr {sgpr}")
    A.raw(f"  .amdhsa_accum_offset {accum}")
    A.raw("  .amdhsa_group_segment_fixed_size 0")
    A.raw("  .amdhsa_kernarg_size 72")
    A.raw("  .amdhsa_user_sgpr_count 2")
    A.raw("  .amdhsa_user_sgpr_kernarg_segment_ptr 1")
    A.raw("  .amdhsa_system_sgpr_workgroup_id_x 1")
    A.raw("  .amdhsa_float_denorm_mode_32 3")
    A.raw(".end_amdhsa_kernel")

def srd(A, d, base_lo, base_hi, nbytes):
    A(f"s_mov_b32 s{d}, {base_lo}")
    A(f"s_and_b32 s{d+1}, {base_hi}, 0xffff")
    A(f"s_mov_b32 s{d+2}, {nbytes}")
    A(f"s_mov_b32 s{d+3}, 0x00020000")

def fbits(x):
    import struct
    return "0x%08x" % struct.unpack("<I", struct.pack("<f", x))[0]

PROF = {"on": False}
PROF_OFF = 60 << 20
OPT = {}
STAMPMAP = {}
def stamp(A, i, real=False):
    if not PROF["on"] or i is None: return
    m = STAMPMAP.get(OPT.get("fine", 0), None)
    if m is not None:
        if i not in m: return
        i = m[i]
    elif not isinstance(i, int): return
    A(f"s_memtime s[{64+4*i}:{65+4*i}]")
    A(f"s_memrealtime s[{66+4*i}:{67+4*i}]")
def prof_flush(A, kidx, nst, wave_sgpr, ws_lo=None):
    if not PROF["on"]: return
    A("s_waitcnt lgkmcnt(0) vmcnt(0)")
    A("s_load_dwordx2 s[4:5], s[0:1], 64")
    A("s_waitcnt lgkmcnt(0)")
    A(f"s_add_u32 s4, s4, {PROF_OFF + kidx * (1 << 18)}")
    A("s_addc_u32 s5, s5, 0")
    A("s_mov_b32 s8, s4"); A("s_and_b32 s9, s5, 0xffff"); A(f"s_mov_b32 s10, {1 << 18}"); A("s_mov_b32 s11, 0x00020000")
    A("s_lshl_b32 s6, s2, 3")
    A(f"s_add_u32 s6, s6, s{wave_sgpr}")
    A("s_lshl_b32 s6, s6, 6")
    A("s_mov_b64 exec, 1")
    for i in range(6):
        for k in range(2):
            A(f"v_mov_b32 v1, s{64+4*i+2*k}")
            A(f"v_mov_b32 v2, {8*i+4*k}")
            A("s_nop 1")
            A("buffer_store_dword v1, v2, s[8:11], s6 offen")
            A("s_nop 1")
    A("s_waitcnt vmcnt(0)")

STAMPMAP[1] = {2: 0, 'epi_end': 1, 'pre_poll': 2, 'poll_done': 3, 'norm_ok': 4, 3: 5}
STAMPMAP[2] = {0: 0, 'ln_loaded': 1, 'ln_stored': 2, 'ln_drained': 3, 'ln_got': 4, 1: 5}
STAMPMAP[3] = {4: 0, 'g_start': 1, 'g_end': 2, 'p_ready': 3, 't_done': 4, 5: 5}
def opt(k, d=None): return OPT.get(k, d)
```

```python
from asmlib import *
from layout import *
from vmsim import VmSim
import math

NCB = 14
def acc(cb, tb): return 32 + 4 * (cb * 4 + tb)
def xreg(slot, tb): return (slot * 4 + tb) * 4
def wreg(buf, cb): return 64 + (buf * NCB + cb) * 4
NAGPR = 176
SLOT = 32768
PITCH = 448
LN_LDS = 4 * SLOT
LDS_BYTES = 4 * SLOT + 256
V_X = 0; V_DMA = 1; V_TRE = 8; V_TRO = 9
S_W = 8; S_X = 12; S_O = 16; S_N = 20
S_WOFF = 24; S_XO = 25; S_IT = 29; S_WV = 30; S_MT = 31; S_BLK0 = 32; S_TYPE = 33
S_T0, S_T1, S_T2, S_T3 = 34, 35, 36, 37
S_M0CUR = 38; S_TOK = 39; S_WS = 40; S_LDW = 42; S_STG = 43; S_D = 52; S_M0A = 56; S_SLOT = 57; S_NT = 58

def tr_main(n, ncb=NCB):
    par = (n >> 1) & 1; sub = n & 1
    out = []
    for cb in range(ncb):
        for h in range(2):
            off = par * SLOT + sub * 32 * PITCH + h * 4 * PITCH + cb * 32
            ad = V_TRE if cb % 2 == 0 else V_TRO
            out.append(f"ds_read_b64_tr_b16 {a(wreg(n & 1, cb) + 2 * h, 2)}, {v(ad)} offset:{off}")
    return out
def x_load(slot, tb, imm):
    return f"buffer_load_dwordx4 {a(xreg(slot, tb), 4)}, {v(V_X)}, s[{S_X}:{S_X+3}], s{S_XO + tb} offen offset:{imm}{' sc1' if opt('x_sc1', 1) else ''}"
def dma(i):
    return f"buffer_load_dwordx4 {v(V_DMA + i)}, s[{S_W}:{S_W+3}], s{S_WOFF} offen offset:{(i & 3) * 1024} lds"
def w_next_stage():
    return [f"s_add_u32 s{S_WOFF}, s{S_WOFF}, s{S_STG}",
            f"s_add_u32 s{S_M0CUR}, s{S_M0CUR}, {SLOT}",
            f"s_and_b32 s{S_M0CUR}, s{S_M0CUR}, {4 * SLOT - 1}",
            f"s_mov_b32 m0, s{S_M0CUR}"]
def w_hi():
    return [f"s_add_u32 s{S_T0}, s{S_M0CUR}, 4096", f"s_mov_b32 m0, s{S_T0}"]

def body_vm_ops(it, PD, XD):
    ops = []
    for n in range(4):
        tgt = 4 * it + n + XD
        for tb in range(4): ops.append((n, ('X', tgt, tb)))
        if n & 1:
            st = 2 * it + (n >> 1) + PD
            for i in range(4): ops.append((n, ('W', st, i)))
        else:
            st = 2 * it + (n >> 1) - 1 + PD
            for i in range(4, 7): ops.append((n, ('W', st, i)))
    return ops

def gen_mainloop(A, name, ncb, swap, PD, XD, prologue_ops):
    NM = 4 * ncb
    waits = {n: 63 for n in range(4)}
    sim = VmSim()
    for t in prologue_ops: sim.issue(t)
    for it in range(4):
        ops = body_vm_ops(it, PD, XD)
        for n in range(4):
            g = 4 * it + n
            need = sim.need(lambda t: t[0] == 'X' and t[1] == g)
            if n & 1:
                st = 2 * it + (n >> 1) + 1
                nw = sim.need(lambda t: t[0] == 'W' and t[1] == st)
                if nw is not None: need = nw if need is None else min(need, nw)
            if need is not None: waits[n] = min(waits[n], need)
            for (s_, t) in ops:
                if s_ == n: sim.issue(t)
    A.raw(".p2align 6")
    A.label(f"L_{name}_loop")
    for n in range(4):
        A.c(f"---- step {n}")
        A(f"s_waitcnt vmcnt({waits[n]}) lgkmcnt(0)")
        if n & 1: A("s_barrier")
        reads = []
        if n == 3:
            reads += [f"v_xor_b32 {v(r)}, 0x10000, {v(r)}" for r in (V_TRE, V_TRO)]
        reads += tr_main(n + 1, ncb)
        tail = []
        tgt = n + XD
        if tgt == 4:
            tail += [f"s_add_u32 s{S_XO + tb}, s{S_XO + tb}, 2048" for tb in range(4)]
            tail += [f"s_cmp_eq_u32 s{S_IT}, 1", f"s_cselect_b32 s{S_X+2}, 0, s{S_X+2}"]
        xl = [x_load(tgt % 4, tb, (tgt % 4) * 512) for tb in range(4)]
        if n & 1:
            pre = w_next_stage() + ["s_nop 0"]; dm = [dma(i) for i in range(4)]
        else:
            pre = w_hi() + ["s_nop 0"]; dm = [dma(i) for i in range(4, 7)]
        fill = [[] for _ in range(NM)]
        for k, z in enumerate(reads): fill[k].append(z)
        k0 = 2
        for z in tail: fill[k0].append(z); k0 += 1
        vm = [[z] for z in xl]
        vm.append(pre + [dm[0]])
        vm += [[z] for z in dm[1:]]
        sp = opt("l1_vmsp", 5) if ncb == 14 else 4
        pos = max(k0, 10)
        for grp in vm:
            fill[min(pos, NM - 1)] += grp
            pos += sp
        for m in range(NM):
            cb, tb = m // 4, m % 4
            d = v(acc(cb, tb), 4); w = a(wreg(n & 1, cb), 4); x = a(xreg(n, tb), 4)
            A(f"v_mfma_f32_16x16x32_bf16 {d}, {x}, {w}, {d}" if swap(cb) else f"v_mfma_f32_16x16x32_bf16 {d}, {w}, {x}, {d}")
            for z in fill[m]: A(z)
    A(f"s_sub_u32 s{S_IT}, s{S_IT}, 1")
    A(f"s_cmp_lg_u32 s{S_IT}, 0")
    A(f"s_cbranch_scc1 L_{name}_loop")

def ln_loads(A):
    A("v_and_b32 v3, 7, v1"); A("v_lshrrev_b32 v4, 3, v1")
    A("v_lshlrev_b32 v5, 11, v3"); A("v_lshl_add_u32 v5, v4, 4, v5")
    A(f"s_lshl_b32 s{S_T0}, s{S_WV}, 9")
    A(f"v_add_u32 v5, s{S_T0}, v5")
    A(f"s_lshl_b32 s{S_T1}, s2, 14")
    A("v_lshlrev_b32 v6, 11, v3")
    A(f"buffer_load_ushort v30, v6, s[{S_N}:{S_N+3}], s{S_T1} offen")
    for i in range(4):
        A(f"buffer_load_dwordx4 {v(32+4*i,4)}, v5, s[{S_N}:{S_N+3}], s{S_T1} offen offset:{i*128}")

def ln_compute(A, nafter, tag, zero_acc=False, pre_signal=None):
    A("v_and_b32 v24, 7, v1"); A("v_lshlrev_b32 v24, 3, v24")
    A(f"v_add_u32 v24, {LN_LDS}, v24")
    A(f"s_lshl_b32 s{S_T0}, s{S_WV}, 6")
    A(f"v_add_u32 v25, s{S_T0}, v24")
    A("s_mov_b32 s44, 0xffff0000")
    A(f"s_waitcnt vmcnt({nafter + 4})")
    A("v_lshlrev_b32 v30, 16, v30"); A("v_sub_f32 v30, 0, v30"); A("v_mov_b32 v31, v30")
    for i in range(4):
        A(f"s_waitcnt vmcnt({nafter + 3 - i})")
        for r in range(4):
            src = 32 + 4 * i + r
            A(f"v_lshlrev_b32 {v(64+2*(4*i+r))}, 16, {v(src)}")
            A(f"v_and_b32 {v(65+2*(4*i+r))}, s44, {v(src)}")
        for r in range(4):
            A(f"v_pk_add_f32 {v(64+2*(4*i+r),2)}, {v(64+2*(4*i+r),2)}, v[30:31]")
    stamp(A, 'ln_loaded')
    A("v_pk_add_f32 v[32:33], v[64:65], v[66:67]"); A("v_pk_mul_f32 v[34:35], v[64:65], v[64:65]")
    A("v_pk_add_f32 v[36:37], v[68:69], v[70:71]"); A("v_pk_mul_f32 v[38:39], v[66:67], v[66:67]")
    for i in range(2, 16):
        A(f"v_pk_fma_f32 {v(34+4*(i%2),2)}, {v(64+2*i,2)}, {v(64+2*i,2)}, {v(34+4*(i%2),2)}")
        if i >= 4: A(f"v_pk_add_f32 {v(32+4*(i%2),2)}, {v(32+4*(i%2),2)}, {v(64+2*i,2)}")
    A("v_pk_add_f32 v[32:33], v[32:33], v[36:37]"); A("v_pk_add_f32 v[34:35], v[34:35], v[38:39]")
    A("v_add_f32 v26, v32, v33"); A("v_add_f32 v27, v34, v35")
    A("s_nop 0")
    for r in (26, 27):
        A(f"v_add_f32_dpp {v(r)}, {v(r)}, {v(r)} row_ror:8 row_mask:0xf bank_mask:0xf")
    A("v_mov_b32 v28, v26"); A("v_mov_b32 v29, v27"); A("s_nop 0")
    A("v_permlane16_swap_b32 v26, v28"); A("v_permlane16_swap_b32 v27, v29"); A("s_nop 0")
    A("v_add_f32 v26, v26, v28"); A("v_add_f32 v27, v27, v29")
    A("v_mov_b32 v28, v26"); A("v_mov_b32 v29, v27"); A("s_nop 0")
    A("v_permlane32_swap_b32 v26, v28"); A("v_permlane32_swap_b32 v27, v29"); A("s_nop 0")
    A("v_add_f32 v26, v26, v28"); A("v_add_f32 v27, v27, v29")
    A("ds_write_b64 v25, v[26:27]")
    A("s_waitcnt lgkmcnt(0)")
    A("s_barrier")
    for w_ in range(4): A(f"ds_read_b64 {v(32+2*w_,2)}, v24 offset:{64*w_}")
    A("s_waitcnt lgkmcnt(0)")
    A("v_pk_add_f32 v[32:33], v[32:33], v[34:35]"); A("v_pk_add_f32 v[36:37], v[36:37], v[38:39]")
    A("v_pk_add_f32 v[32:33], v[32:33], v[36:37]")
    A(f"v_mul_f32 v32, {fbits(1.0/1024)}, v32")
    A(f"v_mov_b32 v30, {fbits(1e-5)}")
    A(f"v_fmac_f32 v30, {fbits(1.0/1024)}, v33")
    A("v_fma_f32 v30, -v32, v32, v30")
    A(f"v_max_f32 v30, {fbits(1e-5)}, v30")
    A("v_rsq_f32 v30, v30"); A("s_nop 0")
    A("v_mul_f32 v32, -v32, v30"); A("v_mov_b32 v31, v30"); A("v_mov_b32 v33, v32")
    for i in range(16): A(f"v_pk_fma_f32 {v(64+2*i,2)}, {v(64+2*i,2)}, v[30:31], v[32:33]")
    for i in range(16): A(f"v_cvt_pk_bf16_f32 {v(40+i)}, {v(64+2*i)}, {v(65+2*i)}")
    A("v_lshlrev_b32 v24, 4, v1")
    A(f"s_lshl_b32 s{S_T0}, s{S_WV}, 12")
    A(f"v_add_u32 v24, s{S_T0}, v24")
    A(f"s_lshl_b32 s{S_T1}, s2, 14")
    for i in range(4):
        A(f"buffer_store_dwordx4 {v(40+4*i,4)}, v24, s[{S_X}:{S_X+3}], s{S_T1} offen offset:{i*1024} sc1")
    if zero_acc:
        for r in list(range(64, 256)) + list(range(32, 40)): A(f"v_mov_b32 {v(r)}, 0")
    if pre_signal: pre_signal()
    stamp(A, 'ln_stored')
    A("s_waitcnt vmcnt(0)")
    A("s_barrier")
    stamp(A, 'ln_drained')
    if zero_acc:
        for r in range(40, 64): A(f"v_mov_b32 {v(r)}, 0")
    A(f"s_cmp_eq_u32 s{S_WV}, 0")
    A(f"s_cbranch_scc0 L_l1_nosig{tag}")
    A(f"s_lshr_b32 s{S_T0}, s2, 5"); A(f"s_lshl_b32 s{S_T0}, s{S_T0}, 5")
    A("v_mov_b32 v24, 1")
    A("s_mov_b64 s[44:45], exec"); A("s_mov_b64 exec, 1")
    A(f"buffer_atomic_add v24, off, s[{S_D}:{S_D+3}], s{S_T0}")
    A("s_mov_b64 exec, s[44:45]")
    A.label(f"L_l1_nosig{tag}")

S_HSIG = 100
def gen_l1(name, A=None, end=None):
    PD = opt("l1_pd", 3); XD = opt("l1_xd", 3)
    fin = f"L_{name}_fin"
    A("s_cmp_ge_u32 s2, 256")
    A(f"s_cbranch_scc1 {end}")
    stamp(A, 0)
    A(f"s_load_dwordx2 s[4:5], s[0:1], {KARG['wqkv']}")
    A(f"s_load_dwordx2 s[6:7], s[0:1], {KARG['w1']}")
    A(f"s_load_dwordx2 s[{S_WS}:{S_WS+1}], s[0:1], {KARG['ws']}")
    A(f"s_load_dwordx2 s[44:45], s[0:1], {KARG['x']}")
    A(f"s_load_dwordx2 s[46:47], s[0:1], {KARG['dbg']}")
    A("v_mov_b32 v2, v0")
    A("v_and_b32 v1, 63, v0")
    A("v_lshrrev_b32 v3, 6, v0")
    A("s_and_b32 s3, s2, 7")
    A(f"v_readfirstlane_b32 s{S_WV}, v3")
    A(f"s_lshr_b32 s{S_SLOT}, s2, 3")
    A("s_and_b32 s48, s3, 1"); A("s_lshl_b32 s48, s48, 2")
    A(f"s_and_b32 s{S_T0}, s{S_SLOT}, 3")
    A(f"s_add_u32 s{S_MT}, s48, s{S_T0}")
    A("s_lshr_b32 s3, s3, 1"); A("s_lshl_b32 s3, s3, 2")
    A(f"s_lshr_b32 s{S_T0}, s{S_SLOT}, 2")
    A(f"s_and_b32 s{S_T1}, s{S_T0}, 3"); A(f"s_add_u32 s3, s3, s{S_T1}")
    A(f"s_lshr_b32 s{S_T0}, s{S_T0}, 2"); A(f"s_lshl_b32 s{S_T0}, s{S_T0}, 4")
    A(f"s_add_u32 s3, s3, s{S_T0}")
    A(f"s_mov_b32 s{S_NT}, s3")
    A(f"s_lshl_b32 s{S_TOK}, s{S_MT}, 8")
    A(f"s_lshl_b32 s{S_T0}, s{S_WV}, 6")
    A(f"s_add_u32 s{S_TOK}, s{S_TOK}, s{S_T0}")
    A("s_waitcnt lgkmcnt(0)")
    srd(A, S_N, "s44", "s45", 4 * MB)
    srd(A, S_D, "s46", "s47", 256)
    ln_loads(A)
    A(f"s_add_u32 s44, s{S_WS}, {XN_OFF}"); A(f"s_addc_u32 s45, s{S_WS+1}, 0")
    srd(A, S_X, "s44", "s45", 4 * MB)
    A("s_cmp_lt_u32 s3, 16")
    A(f"s_cbranch_scc1 L_{name}_qkv")
    A(f"s_mov_b32 s{S_TYPE}, 2")
    A("s_sub_u32 s3, s3, 16")
    A(f"s_mul_i32 s{S_BLK0}, s3, 7")
    A(f"s_mov_b32 s{S_LDW}, 7168")
    A("s_mov_b32 s4, s6"); A("s_mov_b32 s5, s7")
    A(f"s_mov_b32 s{S_T1}, {1024 * 7168}")
    A("s_movk_i32 s59, 28")
    A(f"s_branch L_{name}_common")
    A.label(f"L_{name}_qkv")
    A(f"s_mov_b32 s{S_LDW}, 6144")
    A(f"s_mov_b32 s{S_T1}, {1024 * 6144}")
    A(f"s_mul_i32 s{S_BLK0}, s3, 6")
    A("s_movk_i32 s59, 24")
    A("s_cmp_lt_u32 s3, 10"); A(f"s_cselect_b32 s{S_TYPE}, 0, 1")
    A("s_cmp_eq_u32 s3, 10"); A(f"s_cselect_b32 s{S_TYPE}, 3, s{S_TYPE}")
    A.label(f"L_{name}_common")
    A(f"s_lshl_b32 s{S_T0}, s{S_BLK0}, 6")
    A(f"s_add_u32 s4, s4, s{S_T0}")
    A("s_addc_u32 s5, s5, 0")
    A(f"s_sub_u32 s{S_T1}, s{S_T1}, s{S_T0}")
    srd(A, S_W, "s4", "s5", f"s{S_T1}")
    A(f"s_lshl_b32 s{S_STG}, s{S_LDW}, 6")
    A(f"s_lshl_b32 s{S_T0}, s{S_WV}, 4")
    A(f"s_movk_i32 s{S_T2}, 2341")
    for i in range(7):
        A(f"v_add_u32 v3, {64 * i}, v1")
        A(f"v_mul_u32_u24 v4, s{S_T2}, v3")
        A("v_lshrrev_b32 v4, 16, v4")
        A("v_mul_u32_u24 v6, 28, v4")
        A("v_sub_u32 v6, v3, v6")
        A("v_lshrrev_b32 v7, 3, v4")
        A("v_lshlrev_b32 v7, 1, v7")
        A("v_xor_b32 v6, v6, v7")
        A(f"v_add_u32 v4, s{S_T0}, v4")
        A(f"v_mul_lo_u32 v4, v4, s{S_LDW}")
        A(f"v_lshl_add_u32 v4, v6, 4, v4")
        if i & 3: A(f"v_subrev_u32 v4, {(i & 3) * 1024}, v4")
        A("v_cmp_gt_u32 vcc, s59, v6"); A("v_mov_b32 v7, 0x7ffff000"); A("s_nop 0")
        A(f"v_cndmask_b32 {v(10 + i)}, v7, v4, vcc")
    A(f"s_mul_i32 s{S_M0A}, s{S_WV}, {16 * PITCH}")
    prol = []
    def dma_p(i, base):
        return f"buffer_load_dwordx4 {v(base + i)}, s[{S_W}:{S_W+3}], s{S_WOFF} offen offset:{(i & 3) * 1024} lds"
    def stage_dma(st, lo, hi, base):
        for i in range(lo, hi):
            if i == 0:
                A(f"s_mul_i32 s{S_WOFF}, s{S_STG}, {st}")
                A(f"s_add_u32 s{S_M0CUR}, s{S_M0A}, {(st & 3) * SLOT}")
                A(f"s_mov_b32 m0, s{S_M0CUR}"); A("s_nop 0")
            if i == 4:
                for z in w_hi(): A(z)
                A("s_nop 0")
            A(dma_p(i, base)); prol.append(('W', st, i))
    NPRE = opt("l1_npre", 0)
    for st in range(NPRE):
        stage_dma(st, 0, 7 if st < PD - 1 else 4, 10)
    ntouch = len(prol) - 7
    def zero_flags():
        A("s_cmp_lt_u32 s2, 8")
        A(f"s_cbranch_scc0 L_{name}_nz2")
        A(f"s_add_u32 s44, s{S_WS}, {FLAGS_OFF}"); A(f"s_addc_u32 s45, s{S_WS+1}, 0")
        srd(A, S_N, "s44", "s45", NFLAGS * 128)
        A("v_mov_b32 v20, 0"); A("v_mov_b32 v21, 0"); A("v_mov_b32 v22, 0"); A("v_mov_b32 v23, 0")
        A("v_lshlrev_b32 v9, 4, v2")
        A(f"s_mul_i32 s{S_T1}, s2, {49 * 128}")
        A(f"buffer_store_dwordx4 v[20:23], v9, s[{S_N}:{S_N+3}], s{S_T1} offen sc1")
        A(f"s_add_u32 s{S_T1}, s{S_T1}, 4096")
        A("v_cmp_gt_u32 vcc, 136, v2")
        A("s_and_saveexec_b64 s[44:45], vcc")
        A(f"s_cbranch_execz L_{name}_nz")
        A(f"buffer_store_dwordx4 v[20:23], v9, s[{S_N}:{S_N+3}], s{S_T1} offen sc1")
        A.label(f"L_{name}_nz")
        A("s_mov_b64 exec, s[44:45]")
        A.label(f"L_{name}_nz2")
    ln_compute(A, 7 + ntouch, 't', True, zero_flags)
    prol.clear()
    for st in range(NPRE, PD):
        stage_dma(st, 0, 7 if st < PD - 1 else 4, 10)
    T3 = opt("l1_touch3", 0)
    if T3:
        A(f"s_cmp_eq_u32 s{S_WV}, 0"); A(f"s_cbranch_scc1 L_{name}_nt")
        A(f"s_cmp_eq_u32 s{S_TYPE}, 2"); A(f"s_cbranch_scc1 L_{name}_nt")
        A(f"s_load_dwordx2 s[44:45], s[0:1], {KARG['w1']}")
        A("v_lshrrev_b32 v3, 2, v1"); A("v_lshlrev_b32 v3, 3, v3"); A(f"v_add_u32 v3, s{S_MT}, v3")
        A("v_and_b32 v4, 3, v1"); A("v_lshlrev_b32 v4, 7, v4")
        A(f"s_sub_u32 s{S_T0}, s{S_WV}, 1")
        A(f"s_mul_i32 s{S_T1}, s{S_NT}, 448")
        A("s_waitcnt lgkmcnt(0)")
        A(f"s_add_u32 s44, s44, s{S_T1}"); A("s_addc_u32 s45, s45, 0"); A(f"s_sub_u32 s{S_T1}, {1024 * 7168}, s{S_T1}")
        srd(A, S_O, "s44", "s45", f"s{S_T1}")
        A("v_mul_u32_u24 v5, 7168, v3"); A("v_add_u32 v5, v5, v4")
        A(f"s_mul_i32 s{S_T2}, s{S_T0}, {128 * 7168}")
        for k in range(3):
            A(f"buffer_load_dword v21, v5, s[{S_O}:{S_O+3}], s{S_T2} offen")
            if k < 2: A(f"s_add_u32 s{S_T2}, s{S_T2}, {3 * 128 * 7168}")
        if T3 >= 2:
            A("v_mul_u32_u24 v5, 6144, v3"); A("v_add_u32 v5, v5, v4")
            A(f"s_mul_i32 s{S_T2}, s{S_T0}, {128 * 6144}")
            for k in range(3):
                A(f"buffer_load_dword v21, v5, s[{S_W}:{S_W+3}], s{S_T2} offen")
                if k < 2: A(f"s_add_u32 s{S_T2}, s{S_T2}, {3 * 128 * 6144}")
        A.label(f"L_{name}_nt")
    A("v_and_b32 v3, 15, v1"); A("v_lshrrev_b32 v4, 4, v1")
    A("v_lshrrev_b32 v5, 2, v3"); A("v_lshl_add_u32 v5, v4, 3, v5"); A(f"v_mul_u32_u24 v5, {PITCH}, v5")
    A("v_and_b32 v6, 3, v3"); A("v_lshl_add_u32 v5, v6, 3, v5")
    A("v_and_b32 v6, 1, v4"); A("v_lshlrev_b32 v6, 5, v6")
    A(f"v_add_u32 {v(V_TRE)}, v5, v6"); A(f"v_sub_u32 {v(V_TRO)}, v5, v6")
    A(f"v_lshrrev_b32 v5, 3, v3"); A("v_lshlrev_b32 v5, 14, v5")
    A("v_lshl_add_u32 v5, v4, 7, v5"); A("v_and_b32 v6, 7, v3")
    A(f"v_lshl_add_u32 {v(V_X)}, v6, 4, v5")
    A("v_mov_b32 v17, v1")
    for i in range(7): A(f"v_mov_b32 {v(V_DMA + i)}, {v(10 + i)}")
    A(f"s_lshl_b32 s{S_XO}, s{S_TOK}, 11")
    for tb in range(1, 4): A(f"s_add_u32 s{S_XO + tb}, s{S_XO}, {tb * 2 * 16384}")
    A(f"s_cmp_eq_u32 s{S_WV}, 0")
    A(f"s_cbranch_scc0 L_{name}_got")
    A(f"s_lshl_b32 s{S_T0}, s{S_MT}, 5")
    A(f"v_mov_b32 v19, s{S_T0}"); A("v_mov_b32 v20, 0"); A("v_cmp_eq_u32 vcc, 0, v17"); A("s_nop 1"); A("v_cndmask_b32 v19, v19, v20, vcc")
    A(f"s_mov_b32 s{S_T1}, 0x8000")
    if opt('lnsleep0', 0): A(f"s_sleep {opt('lnsleep0', 0)}")
    A.label(f"L_{name}_poll")
    A(f"buffer_load_dword v18, v19, s[{S_D}:{S_D+3}], 0 offen sc1")
    A("s_waitcnt vmcnt(0)")
    A("v_cmp_le_u32 vcc, 32, v18")
    A(f"s_sub_u32 s{S_T1}, s{S_T1}, 1")
    A(f"s_cmp_eq_u32 s{S_T1}, 0")
    A(f"s_cbranch_scc1 L_{name}_got")
    A("s_nop 1")
    A("s_cmp_eq_u64 vcc, -1")
    A(f"s_cbranch_scc1 L_{name}_got")
    A(f"s_sleep {opt('lnsleep', 3)}")
    A(f"s_branch L_{name}_poll")
    A.label(f"L_{name}_got")
    A("s_waitcnt vmcnt(0)")
    A("s_barrier")
    stamp(A, 'ln_got')
    prol.clear()
    for s_ in range(XD):
        for tb in range(4):
            A(x_load(s_ % 4, tb, (s_ % 4) * 512))
    A(f"s_movk_i32 s{S_IT}, 8")
    sc = " sc1"
    c = (32 ** -0.5) * math.log2(math.e)
    def start_loop(tag, ncb, swap):
        for r in tr_main(0, ncb): A(r)
        A("s_waitcnt vmcnt(0)")
        stamp(A, 1)
        gen_mainloop(A, name + tag, ncb, swap, PD, XD, prol)
        A("s_barrier")
        stamp(A, 2)
        A("v_and_b32 v3, 15, v17"); A("v_lshrrev_b32 v4, 4, v17")
        A("v_lshrrev_b32 v7, 1, v4"); A("v_lshlrev_b32 v7, 10, v7")
        A("v_and_b32 v8, 1, v4"); A("v_lshl_add_u32 v7, v8, 9, v7")
    def qkv_srd():
        A(f"s_add_u32 s4, s{S_WS}, {QKV_OFF}"); A(f"s_addc_u32 s5, s{S_WS+1}, 0")
        srd(A, S_O, "s4", "s5", 12 * MB)
    def qk_epi(ps):
        A(f"s_add_u32 s4, s{S_WS}, {NRM_OFF}"); A(f"s_addc_u32 s5, s{S_WS+1}, 0")
        srd(A, S_N, "s4", "s5", 512 * 1024)
        A("v_lshl_add_u32 v8, v3, 4, v7")
        A("v_lshrrev_b32 v9, 3, v3"); A("v_lshlrev_b32 v9, 8, v9")
        A("v_and_b32 v10, 7, v3"); A("v_lshl_add_u32 v9, v10, 4, v9")
        A("v_add_u32 v9, v9, v7")
        A("v_lshlrev_b32 v10, 2, v17")
        A("v_and_b32 v11, 1, v4"); A("v_cmp_eq_u32 s[48:49], 1, v11")
        A("v_cmp_le_u32 s[60:61], 2, v4")
        N0 = 24
        for p in ps:
            A(f"s_add_u32 s{S_T0}, s{S_BLK0}, {p}")
            A(f"s_cmp_lt_u32 s{S_T0}, 32")
            A(f"s_cselect_b32 s44, {fbits(c)}, 1.0")
            A(f"s_cselect_b32 s46, 0, 1")
            A("s_mov_b32 s45, s44")
            A(f"s_lshl_b32 s{S_T1}, s{S_T0}, 17")
            A(f"s_lshl_b32 s{S_T2}, s{S_TOK}, 6")
            A(f"s_add_u32 s{S_T1}, s{S_T1}, s{S_T2}")
            A(f"s_lshl_b32 s{S_T2}, s{S_T0}, 13")
            A(f"s_lshl_b32 s{S_T3}, s{S_TOK}, 2")
            A(f"s_add_u32 s{S_T2}, s{S_T2}, s{S_T3}")
            A(f"s_cmp_eq_u32 s46, 1")
            A("s_cselect_b64 vcc, -1, 0")
            A("s_lshr_b32 s47, 256, s46")
            A(f"s_add_u32 s47, s47, s{S_T1}")
            A("v_cndmask_b32 v11, v8, v9, vcc")
            EF = [(acc(2 * p, tb), acc(2 * p + 1, tb)) for tb in range(4)]
            for (E, F) in EF:
                for R in (E, E + 2, F, F + 2): A(f"v_pk_mul_f32 {v(R, 2)}, {v(R, 2)}, s[44:45]")
            for tb, (E, F) in enumerate(EF): A(f"v_pk_mul_f32 {v(N0 + 2 * tb, 2)}, {v(E, 2)}, {v(E, 2)}")
            for k in range(3):
                for tb, (E, F) in enumerate(EF):
                    R = (E + 2, F, F + 2)[k]
                    A(f"v_pk_fma_f32 {v(N0 + 2 * tb, 2)}, {v(R, 2)}, {v(R, 2)}, {v(N0 + 2 * tb, 2)}")
            for tb, (E, F) in enumerate(EF):
                A(f"v_cvt_pk_bf16_f32 {v(E)}, {v(E)}, {v(E + 1)}")
                A(f"v_cvt_pk_bf16_f32 {v(E + 1)}, {v(E + 2)}, {v(E + 3)}")
                A(f"v_cvt_pk_bf16_f32 {v(E + 2)}, {v(F)}, {v(F + 1)}")
                A(f"v_cvt_pk_bf16_f32 {v(E + 3)}, {v(F + 2)}, {v(F + 3)}")
                so = "s47" if tb & 1 else f"s{S_T1}"
                A(f"buffer_store_dwordx4 {v(E, 4)}, v11, s[{S_O}:{S_O+3}], {so} offen offset:{(tb >> 1) * 2048}{sc}")
            for tb in range(4): A(f"v_add_f32 {v(N0 + 2 * tb)}, {v(N0 + 2 * tb)}, {v(N0 + 2 * tb + 1)}")
            for tb in range(4): A(f"v_mov_b32 {v(20 + tb)}, {v(N0 + 2 * tb)}")
            for tb in range(4): A(f"v_permlane32_swap_b32 {v(N0 + 2 * tb)}, {v(20 + tb)}")
            for tb in range(4): A(f"v_add_f32 {v(N0 + 2 * tb)}, {v(N0 + 2 * tb)}, {v(20 + tb)}")
            for tb in range(4): A(f"v_mov_b32 {v(20 + tb)}, {v(N0 + 2 * tb)}")
            for tb in range(4): A(f"v_permlane16_swap_b32 {v(N0 + 2 * tb)}, {v(20 + tb)}")
            for tb in range(4): A(f"v_add_f32 {v(N0 + 2 * tb)}, {v(N0 + 2 * tb)}, {v(20 + tb)}")
            A(f"v_cndmask_b32 {v(N0)}, {v(N0)}, {v(N0 + 2)}, s[48:49]")
            A(f"v_cndmask_b32 {v(N0 + 4)}, {v(N0 + 4)}, {v(N0 + 6)}, s[48:49]")
            A(f"v_cndmask_b32 {v(N0)}, {v(N0)}, {v(N0 + 4)}, s[60:61]")
            A(f"buffer_store_dword {v(N0)}, v10, s[{S_N}:{S_N+3}], s{S_T2} offen sc1")
    def v_epi(cbs):
        A("v_lshl_add_u32 v6, v3, 4, v7")
        A(f"s_lshl_b32 s{S_T3}, s{S_BLK0}, 17")
        A(f"s_lshl_b32 s47, s{S_TOK}, 6")
        A(f"s_add_u32 s{S_T3}, s{S_T3}, s47")
        for kb in range(2):
            for cb in cbs:
                E = acc(cb, 2 * kb); F = acc(cb, 2 * kb + 1)
                A(f"v_cvt_pk_bf16_f32 {v(E)}, {v(E)}, {v(E + 1)}")
                A(f"v_cvt_pk_bf16_f32 {v(E + 1)}, {v(E + 2)}, {v(E + 3)}")
                A(f"v_cvt_pk_bf16_f32 {v(E + 2)}, {v(F)}, {v(F + 1)}")
                A(f"v_cvt_pk_bf16_f32 {v(E + 3)}, {v(F + 2)}, {v(F + 3)}")
                A(f"s_add_u32 s47, s{S_T3}, {(cb >> 1) * 131072 + kb * 2048}")
                A(f"buffer_store_dwordx4 {v(E, 4)}, v6, s[{S_O}:{S_O+3}], s47 offen offset:{(cb & 1) * 256}{sc}")
    A(f"s_cmp_eq_u32 s{S_TYPE}, 2"); A(f"s_cbranch_scc1 L_{name}_hpath")
    A(f"s_cmp_eq_u32 s{S_TYPE}, 1"); A(f"s_cbranch_scc1 L_{name}_vpath")
    A(f"s_cmp_eq_u32 s{S_TYPE}, 3"); A(f"s_cbranch_scc1 L_{name}_mpath")
    start_loop("_n", 12, lambda cb: False)
    qkv_srd(); qk_epi(range(6))
    A(f"s_branch L_{name}_sigqkv")
    A.label(f"L_{name}_mpath")
    start_loop("_m", 12, lambda cb: cb >= 8)
    qkv_srd(); v_epi(range(8, 12)); qk_epi(range(4))
    A(f"s_branch L_{name}_sigqkv")
    A.label(f"L_{name}_vpath")
    start_loop("_v", 12, lambda cb: True)
    qkv_srd(); v_epi(range(12))
    A(f"s_branch L_{name}_sigqkv")
    A.label(f"L_{name}_hpath")
    start_loop("_h", 14, lambda cb: False)
    A(f"s_add_u32 s4, s{S_WS}, {AH_OFF}"); A(f"s_addc_u32 s5, s{S_WS+1}, 0")
    srd(A, S_O, "s4", "s5", 64 * AH_TB)
    A("v_lshl_add_u32 v7, v3, 4, v7")
    A(f"s_lshr_b32 s{S_T1}, s{S_TOK}, 5")
    A(f"s_mul_i32 s{S_T1}, s{S_T1}, {AH_TB}")
    A(f"s_lshl_b32 s{S_T2}, s{S_BLK0}, 11")
    A(f"s_add_u32 s{S_T1}, s{S_T1}, s{S_T2}")
    A(f"s_add_u32 s{S_T1}, s{S_T1}, {32 * 2048}")
    A(f"s_mov_b32 s44, {fbits(-math.log2(math.e))}"); A("s_mov_b32 s45, s44")
    A("s_mov_b32 s46, 1.0"); A("s_mov_b32 s47, 1.0")
    TP = [8, 10, 12, 14]
    for p in range(7):
        for tb in range(4):
            E = acc(2 * p, tb); F = acc(2 * p + 1, tb)
            prs = [E, E + 2, F, F + 2]
            for k, R in enumerate(prs): A(f"v_pk_mul_f32 {v(TP[k], 2)}, {v(R, 2)}, s[44:45]")
            for k in range(4):
                A(f"v_exp_f32 {v(TP[k])}, {v(TP[k])}"); A(f"v_exp_f32 {v(TP[k] + 1)}, {v(TP[k] + 1)}")
            for k in range(4): A(f"v_pk_add_f32 {v(TP[k], 2)}, {v(TP[k], 2)}, s[46:47]")
            for k in range(4):
                A(f"v_rcp_f32 {v(TP[k])}, {v(TP[k])}"); A(f"v_rcp_f32 {v(TP[k] + 1)}, {v(TP[k] + 1)}")
            if not ((4 * p + tb) & 1 and opt("hdefer", 1)):
                A(f"s_add_u32 s{S_T2}, s{S_T1}, {(tb >> 1) * AH_TB + p * 2048 + (tb & 1) * 256}")
            for k, R in enumerate(prs): A(f"v_pk_mul_f32 {v(R, 2)}, {v(R, 2)}, {v(TP[k], 2)}")
            A(f"v_cvt_pk_bf16_f32 {v(E)}, {v(E)}, {v(E + 1)}")
            A(f"v_cvt_pk_bf16_f32 {v(E + 1)}, {v(E + 2)}, {v(E + 3)}")
            A(f"v_cvt_pk_bf16_f32 {v(E + 2)}, {v(F)}, {v(F + 1)}")
            A(f"v_cvt_pk_bf16_f32 {v(E + 3)}, {v(F + 2)}, {v(F + 3)}")
            q = 4 * p + tb
            if q & 1 and opt("hdefer", 1):
                for r in range(4): A(f"v_accvgpr_write_b32 {a(128 + 4 * (q >> 1) + r)}, {v(E + r)}")
            else:
                A(f"buffer_store_dwordx4 {v(E, 4)}, v7, s[{S_O}:{S_O+3}], s{S_T2} offen{sc}")
    A(f"s_mov_b32 s55, s{S_T1}")
    A(f"s_mov_b32 s{S_HSIG}, s{S_MT}")
    A(f"s_branch {fin}")
    A.label(f"L_{name}_sigqkv")
    A(f"s_add_u32 s4, s{S_WS}, {FLAGS_OFF + PRIV_LINE * 128}"); A(f"s_addc_u32 s5, s{S_WS+1}, 0")
    srd(A, S_N, "s4", "s5", 256 * 128)
    A(f"s_mul_i32 s{S_T0}, s{S_NT}, 6")
    A("v_lshrrev_b32 v3, 3, v17"); A(f"v_add_u32 v3, s{S_T0}, v3")
    A("v_cmp_gt_u32 vcc, 48, v17"); A("s_nop 3"); A("s_mov_b64 s[44:45], vcc")
    A("v_and_b32 v3, 31, v3")
    A("v_lshrrev_b32 v4, 2, v3")
    A("v_and_b32 v3, 3, v3"); A("v_lshlrev_b32 v3, 3, v3"); A("v_and_b32 v5, 7, v17"); A("v_or_b32 v3, v3, v5")
    A("v_lshl_add_u32 v3, v3, 3, v4"); A("v_lshlrev_b32 v3, 7, v3")
    A("v_mov_b32 v4, 1")
    A("s_waitcnt vmcnt(0)")
    A("s_barrier")
    A(f"s_cmp_eq_u32 s{S_WV}, 0")
    A(f"s_cbranch_scc0 L_{name}_nosq")
    A("s_mov_b64 exec, s[44:45]")
    A(f"s_cbranch_execz L_{name}_nosq2")
    A(f"buffer_atomic_add v4, v3, s[{S_N}:{S_N+3}], 0 offen")
    A.label(f"L_{name}_nosq2")
    A("s_mov_b64 exec, -1")
    A.label(f"L_{name}_nosq")
    A(f"s_mov_b32 s{S_HSIG}, -1")
    A(f"s_load_dwordx2 s[4:5], s[0:1], {KARG['wo']}")
    A(f"s_load_dwordx2 s[6:7], s[0:1], {KARG['w2']}")
    A(f"s_lshl_b32 s{S_T0}, s{S_NT}, 3"); A(f"s_add_u32 s{S_T0}, s{S_T0}, s{S_MT}")
    A(f"s_lshl_b32 s{S_T1}, s{S_WV}, 6"); A(f"v_add_u32 v9, s{S_T1}, v17"); A("v_lshlrev_b32 v9, 7, v9")
    A("s_waitcnt lgkmcnt(0)")
    A(f"s_mul_i32 s{S_T1}, s{S_T0}, 16384"); A(f"s_add_u32 s4, s4, s{S_T1}"); A("s_addc_u32 s5, s5, 0")
    srd(A, S_W, "s4", "s5", 16384)
    A(f"buffer_load_dword v10, v9, s[{S_W}:{S_W+3}], 0 offen")
    A(f"s_mul_i32 s{S_T1}, s{S_T0}, 57344"); A(f"s_add_u32 s6, s6, s{S_T1}"); A("s_addc_u32 s7, s7, 0")
    srd(A, S_W, "s6", "s7", 57344)
    A(f"buffer_load_dword v10, v9, s[{S_W}:{S_W+3}], 0 offen")
    A(f"s_mov_b32 s{S_T1}, 32768")
    A(f"buffer_load_dword v10, v9, s[{S_W}:{S_W+3}], s{S_T1} offen")
    A.label(fin)
    stamp(A, 'epi_end')
```

```python
from asmlib import *
from layout import *
from vmsim import VmSim
import math

R = 8
V_L16 = 2
Q = {'a': 8, 'b': 16}
S = {'a': 32, 'b': 48}
P = {'a': 64, 'b': 72}
O = {'a': 80, 'b': 96}
L = {'a': 112, 'b': 128}
SEL = 144
M = {'a': 148, 'b': 149}
LS = {'a': 150, 'b': 151}
def kreg(slot, j): return slot * 16 + j * 4
def vreg(slot, j): return slot * 16 + 8 + j * 4
ACC = 152
def gacc(cb): return ACC + cb * 16
V_TR = 216
V_WD = 232
V_F = 221
V_FA = 222
NV = 232
def areg(slot, j): return (128 + (slot * 2 + j) * 4) if slot < 8 else ((slot - 8) * 2 + j) * 4
def wreg(buf, j, cb): return 192 + (buf * 8 + j * 4 + cb) * 4
WSLOT = 32768
LDS_BYTES = 4 * WSLOT
S_K = 8; S_V = 12; S_Q = 16; S_O = 20; S_N = 24
S_KOFF = 28; S_IT = 29; S_WV = 30; S_HEAD = 31; S_TB = 32
S_WS = 34
S_GW = 40; S_GA = 44; S_F = 48
S_WO = 52
S_WOFF = 56; S_AOFF = 57; S_M0 = 58; S_WST = 59; S_AST = 60; S_HALF = 61; S_MT = 62; S_NT = 63
S_WSW = 88; S_ASW = 89; S_AEND = 90; S_FIRST = 91; S_GOTP = 92; S_TD = 93; S_NIT = 94
S_QT = 33

def qk(x, slot, j):
    c = "0" if j == 0 else v(S[x], 16)
    return f"v_mfma_f32_32x32x16_bf16 {v(S[x],16)}, {a(kreg(slot, j),4)}, {v(Q[x]+4*j,4)}, {c}"
def pv(x, slot, j):
    return f"v_mfma_f32_32x32x16_bf16 {v(O[x],16)}, {a(vreg(slot, j),4)}, {v(P[x]+4*j,4)}, {v(O[x],16)}"
def rs(x, j):
    if opt("rs32", 0):
        return f"v_mfma_f32_32x32x16_bf16 {v(L[x],16)}, {v(SEL,4)}, {v(P[x]+4*j,4)}, {v(L[x],16)}"
    return f"v_mfma_f32_16x16x32_bf16 {v(L[x],4)}, {v(SEL,4)}, {v(P[x]+4*j,4)}, {v(L[x],4)}"
def kload(slot, j, off, so=None):
    return f"buffer_load_dwordx4 {a(kreg(slot, j),4)}, {v(V_L16)}, s[{S_K}:{S_K+3}], s{so or S_KOFF} offen offset:{off + j*1024} sc1"
def vload(slot, j, off, so=None):
    return f"buffer_load_dwordx4 {a(vreg(slot, j),4)}, {v(V_L16)}, s[{S_V}:{S_V+3}], s{so or S_KOFF} offen offset:{off + j*1024} sc1"

def half(A, x, mf, extra):
    e = [f"v_exp_f32 {v(S[x]+i)}, {v(S[x]+i)}" for i in range(16)]
    c = [f"v_cvt_pk_bf16_f32 {v(P[x]+i)}, {v(S[x]+2*i)}, {v(S[x]+2*i+1)}" for i in range(8)]
    seq = [e[0], e[1], e[2], e[3], c[0], e[4], e[5], c[1], e[6], e[7], c[2], e[8], e[9], c[3],
           e[10], e[11], c[4], e[12], e[13], c[5], e[14], e[15], c[6], c[7]]
    mpos = opt("mpos", [0, 3, 8, 12, 17, 21]) if not opt("rs32", 0) else [0, 4, 8, 12, 16, 20]
    k = 0
    for i, ins in enumerate(seq):
        if k < len(mf) and i == mpos[k]:
            A(mf[k]); k += 1
        A(ins)
        for z in extra.get(i, []): A(z)

def g_tr(n):
    st = (n >> 2) & 1; sub = n & 3
    out = []
    for j in range(2):
        for cb in range(4):
            for h in range(2):
                out.append(f"ds_read_b64_tr_b16 {a(wreg(n & 1, j, cb) + 2 * h, 2)}, {v(V_TR + cb)} offset:{st * WSLOT + sub * 8192 + j * 2048 + h * 4096}")
    return out
def g_aload(slot, j, imm):
    return f"buffer_load_dwordx4 {a(areg(slot, j), 4)}, {v(V_L16)}, s[{S_GA}:{S_GA+3}], s{S_AOFF} offen offset:{imm} sc1"
def g_dma(i):
    pre = [f"s_add_u32 m0, s{S_M0}, 4096", "s_nop 0"] if i == 4 else []
    return pre + [f"buffer_load_dwordx4 {v(V_WD + i)}, s[{S_GW}:{S_GW+3}], s{S_WOFF} offen offset:{(i & 3) * 1024} lds"]
def g_next_stage(switch=False):
    out = [f"s_add_u32 s{S_WOFF}, s{S_WOFF}, {128 * 2048}"]
    if switch:
        out += [f"s_cmp_eq_u32 s{S_IT}, 2",
                f"s_cselect_b32 s{S_WOFF}, s{S_WSW}, s{S_WOFF}",
                f"s_cselect_b32 s{S_GW}, s{S_WO}, s{S_GW}",
                f"s_cselect_b32 s{S_GW+1}, s{S_WO+1}, s{S_GW+1}",
                f"s_cselect_b32 s{S_GW+2}, s{S_WO+2}, s{S_GW+2}"]
    out += [f"s_add_u32 s{S_M0}, s{S_M0}, {WSLOT}",
            f"s_and_b32 s{S_M0}, s{S_M0}, {4 * WSLOT - 1}",
            f"s_mov_b32 m0, s{S_M0}", "s_nop 0"]
    return out
def g_flagload():
    return f"buffer_load_dword {v(V_F)}, {v(V_FA)}, s[{S_F}:{S_F+3}], 0 offen sc1"

def spin(A, name, tag, lane, target, st1, st2):
    A(f"s_mov_b32 s{st1}, 0x8000")
    A.label(f"L_{name}_spin{tag}")
    A(g_flagload())
    A("s_waitcnt vmcnt(0)")
    A(f"v_readlane_b32 s{st2}, {v(V_F)}, {lane}")
    A(f"s_sub_u32 s{st1}, s{st1}, 1")
    A(f"s_cmp_eq_u32 s{st1}, 0")
    A(f"s_cbranch_scc1 L_{name}_spun{tag}")
    A(f"s_cmp_ge_u32 s{st2}, {target}")
    A(f"s_cbranch_scc1 L_{name}_spun{tag}")
    A("s_sleep 4")
    A(f"s_branch L_{name}_spin{tag}")
    A.label(f"L_{name}_spun{tag}")

S_HSIG = 100
V_H = 231
V_HA = 230
def gen_l2(name, A):
    PD = 4; XD = 15; NB = 24
    fin = f"L_{name}_fin"
    GS = opt("g_stamps")
    A(f"s_load_dwordx2 s[{S_WS}:{S_WS+1}], s[0:1], {KARG['ws']}")
    A(f"s_load_dwordx2 s[{S_WO}:{S_WO+1}], s[0:1], {KARG['wo']}")
    A(f"s_load_dwordx2 s[4:5], s[0:1], {KARG['w2']}")
    A(f"s_load_dwordx2 s[96:97], s[0:1], {KARG['x']}")
    A(f"s_load_dwordx2 s[98:99], s[0:1], {KARG['out']}")
    A("s_and_b32 s3, s2, 7")
    A("s_lshr_b32 s6, s2, 3")
    A("s_lshl_b32 s7, s3, 2")
    A("s_lshr_b32 s36, s6, 3")
    A(f"s_add_u32 s{S_HEAD}, s7, s36")
    A(f"s_and_b32 s{S_QT}, s6, 7")
    A(f"s_and_b32 s{S_HALF}, s6, 1")
    A("s_lshr_b32 s6, s6, 1")
    A("s_and_b32 s7, s3, 3"); A("s_lshl_b32 s7, s7, 2"); A("s_and_b32 s36, s6, 3")
    A(f"s_add_u32 s{S_MT}, s7, s36")
    A("s_lshr_b32 s7, s3, 2"); A("s_lshl_b32 s7, s7, 2"); A("s_lshr_b32 s36, s6, 2")
    A(f"s_add_u32 s{S_NT}, s7, s36")
    A("v_mbcnt_lo_u32_b32 v1, -1, 0"); A("v_mbcnt_hi_u32_b32 v1, -1, v1")
    A(f"v_lshlrev_b32 {v(V_L16)}, 4, v1")
    A(f"s_lshl_b32 s6, s{S_QT}, 3")
    A(f"s_lshl_b32 s7, s{S_WV}, 1")
    A(f"s_add_u32 s{S_TB}, s6, s7")
    A("s_waitcnt lgkmcnt(0)")
    WS = f"s{S_WS}"; WS1 = f"s{S_WS+1}"
    A(f"s_lshl_b32 s6, s{S_HEAD}, 17")
    A(f"s_add_u32 s36, {WS}, {QKV_OFF}"); A(f"s_addc_u32 s37, {WS1}, 0")
    A("s_add_u32 s36, s36, s6"); A("s_addc_u32 s37, s37, 0")
    srd(A, S_Q, "s36", "s37", 131072)
    A(f"s_add_u32 s36, s36, {32*131072}"); A("s_addc_u32 s37, s37, 0")
    srd(A, S_K, "s36", "s37", 131072)
    A(f"s_add_u32 s36, s36, {32*131072}"); A("s_addc_u32 s37, s37, 0")
    A("s_sub_u32 s38, s36, 2048"); A("s_subb_u32 s39, s37, 0")
    srd(A, S_V, "s38", "s39", 131072 + 2048)
    A(f"s_add_u32 s36, {WS}, {NRM_OFF}"); A(f"s_addc_u32 s37, {WS1}, 0")
    srd(A, S_N, "s36", "s37", 512*1024)
    A(f"s_lshl_b32 s6, s{S_NT}, 8")
    A(f"s_add_u32 s{S_WO}, s{S_WO}, s6"); A(f"s_addc_u32 s{S_WO+1}, s{S_WO+1}, 0")
    A(f"s_and_b32 s{S_WO+1}, s{S_WO+1}, 0xffff")
    A(f"s_sub_u32 s{S_WO+2}, {1024*2048}, s6")
    A("s_add_u32 s4, s4, s6"); A("s_addc_u32 s5, s5, 0")
    A(f"s_sub_u32 s7, {3584*2048}, s6")
    srd(A, S_GW, "s4", "s5", "s7")
    A(f"s_add_u32 s36, {WS}, {AH_OFF}"); A(f"s_addc_u32 s37, {WS1}, 0")
    A(f"s_lshl_b32 s6, s{S_MT}, 2"); A(f"s_add_u32 s6, s6, s{S_WV}")
    A(f"s_mul_i32 s6, s6, {AH_TB}")
    A("s_add_u32 s36, s36, s6"); A("s_addc_u32 s37, s37, 0")
    srd(A, S_GA, "s36", "s37", AH_TB)
    A(f"s_add_u32 s36, {WS}, {FLAGS_OFF}"); A(f"s_addc_u32 s37, {WS1}, 0")
    srd(A, S_F, "s36", "s37", NFLAGS * 128)
    A(f"s_mul_i32 s6, s{S_HALF}, 56"); A("s_add_u32 s6, s6, 32"); A(f"s_lshl_b32 s{S_AOFF}, s6, 11")
    A(f"s_mul_i32 s{S_WOFF}, s{S_HALF}, {1792*2048}")
    A(f"s_lshl_b32 s{S_WSW}, s{S_HALF}, 20")
    A(f"s_lshl_b32 s{S_ASW}, s{S_HALF}, 15")
    A(f"s_add_u32 s6, s{S_HALF}, 1"); A("s_lshl_b32 s6, s6, 20"); A(f"s_lshl_b32 s7, s{S_NT}, 8")
    A(f"s_sub_u32 s{S_WO+2}, s6, s7")
    A(f"s_lshr_b32 s6, s{S_MT}, 1"); A("s_lshl_b32 s6, s6, 7")
    A(f"s_lshl_b32 s7, s{S_MT}, 3"); A(f"s_add_u32 s7, s7, s{S_NT}"); A("s_add_u32 s7, s7, 8"); A("s_lshl_b32 s7, s7, 7")
    A(f"s_xor_b32 s36, s{S_HALF}, 1"); A("s_lshl_b32 s36, s36, 2"); A("s_add_u32 s7, s7, s36")
    A("v_mov_b32 v5, s7"); A("v_mov_b32 v6, s6"); A("v_cmp_eq_u32 vcc, 0, v1"); A("s_nop 1")
    A(f"v_cndmask_b32 {v(V_FA)}, v5, v6, vcc")
    A("v_lshrrev_b32 v5, 4, v1"); A("v_and_b32 v6, 15, v1")
    A("v_lshlrev_b32 v7, 2, v5"); A("v_xor_b32 v7, v7, v6")
    A(f"s_lshl_b32 s6, s{S_WV}, 5")
    A("v_add_u32 v24, s6, v5"); A("v_lshlrev_b32 v24, 11, v24")
    A(f"v_lshl_add_u32 {v(V_WD)}, v7, 4, v24")
    for i in range(1, 8): A(f"v_add_u32 {v(V_WD + i)}, {4 * i * 2048 - (i & 3) * 1024}, {v(V_WD)}")
    A("v_lshrrev_b32 v7, 2, v6")
    A("v_lshrrev_b32 v24, 5, v1"); A("v_lshl_add_u32 v24, v24, 2, v7")
    A("v_lshlrev_b32 v24, 8, v24")
    A("v_and_b32 v25, 1, v5"); A("v_lshl_add_u32 v24, v25, 5, v24")
    A("v_and_b32 v25, 3, v6"); A("v_lshl_add_u32 v24, v25, 3, v24")
    for cb in range(4):
        A(f"v_xor_b32 v25, {cb}, v7"); A(f"v_lshl_add_u32 {v(V_TR+cb)}, v25, 6, v24")
    for x in "ab":
        for r in range(16): A(f"v_mov_b32 {v(O[x]+r)}, 0")
        for r in range(16): A(f"v_mov_b32 {v(L[x]+r)}, 0")
    for r in range(8): A(f"v_mov_b32 {v(P['b']+r)}, 0")
    for r in range(64): A(f"v_mov_b32 {v(ACC+r)}, 0")
    if opt("rs32", 0):
        A("v_and_b32 v5, 31, v1"); A("v_cmp_eq_u32 vcc, 0, v5")
    else:
        A("v_and_b32 v5, 15, v1"); A("v_lshrrev_b32 v6, 4, v1"); A("v_and_b32 v6, 1, v6"); A("v_cmp_eq_u32 vcc, v5, v6")
    A("v_mov_b32 v7, 0x3f803f80")
    A("s_nop 0")
    for r in range(4): A(f"v_cndmask_b32 {v(SEL+r)}, 0, v7, vcc")
    A(f"s_add_u32 s36, {WS}, {FLAGS_OFF + PRIV_LINE * 128}"); A(f"s_addc_u32 s37, {WS1}, 0")
    srd(A, S_O, "s36", "s37", 256 * 128)
    A("s_lshl_b32 s101, s2, 7")
    stamp(A, 'pre_poll')
    A("s_mov_b32 s6, 0x8000")
    A.label(f"L_{name}_pq")
    A(f"buffer_load_dword v4, off, s[{S_O}:{S_O+3}], s101 sc1")
    A("s_waitcnt vmcnt(0)")
    A("v_readfirstlane_b32 s7, v4")
    A("s_sub_u32 s6, s6, 1")
    A("s_cmp_eq_u32 s6, 0")
    A(f"s_cbranch_scc1 L_{name}_pqd")
    A("s_cmp_ge_u32 s7, 24")
    A(f"s_cbranch_scc1 L_{name}_pqd")
    A("s_sleep 1")
    A(f"s_branch L_{name}_pq")
    A.label(f"L_{name}_pqd")
    stamp(A, 'poll_done')
    A(f"s_add_u32 s36, {WS}, {AH_OFF}"); A(f"s_addc_u32 s37, {WS1}, 0")
    srd(A, S_O, "s36", "s37", 64*AH_TB)
    A(f"s_lshl_b32 s6, s{S_TB}, 11")
    for xi, x in enumerate("ab"):
        for j in range(2):
            A(f"buffer_load_dwordx4 {v(Q[x]+4*j,4)}, {v(V_L16)}, s[{S_Q}:{S_Q+3}], s6 offen offset:{xi*2048 + j*1024} sc1")
    A(f"s_mov_b32 s{S_KOFF}, 0")
    A(kload(0, 0, 0)); A(kload(0, 1, 0))
    A(f"s_lshl_b32 s6, s{S_HEAD}, 13")
    A(f"s_lshl_b32 s7, s{S_TB}, 7")
    A("s_add_u32 s7, s7, s6")
    A("v_lshlrev_b32 v3, 2, v1")
    A(f"buffer_load_dword v4, v3, s[{S_N}:{S_N+3}], s7 offen sc1")
    A(f"s_add_u32 s6, s6, {32*8192}")
    for i in range(8):
        A(f"buffer_load_dwordx4 {v(32+4*i,4)}, {v(V_L16)}, s[{S_N}:{S_N+3}], s6 offen offset:{(i&3)*1024} sc1")
        if i == 3: A("s_add_u32 s6, s6, 4096")
    A(f"s_add_u32 s36, {WS}, {FLAGS_OFF + PRIV_LINE * 128}"); A(f"s_addc_u32 s37, {WS1}, 0")
    srd(A, S_N, "s36", "s37", 256 * 128)
    A("s_add_u32 s101, s101, 4")
    for r in range(8):
        A(f"v_accvgpr_write_b32 {a(vreg(7,0)+r)}, 0")
    for kb in range(-7, 0):
        kk = kb + 8; vv = kb + 7
        A(f"s_mov_b32 s{S_KOFF}, {kk * 2048}")
        A(kload(kk % R, 0, 0)); A(kload(kk % R, 1, 0))
        A(vload(vv % R, 0, 0)); A(vload(vv % R, 1, 0))
    A("v_and_b32 v5, 15, v1"); A("v_lshrrev_b32 v6, 4, v1")
    A("v_lshrrev_b32 v7, 1, v6"); A("v_lshlrev_b32 v7, 10, v7"); A("v_and_b32 v6, 1, v6"); A("v_lshl_add_u32 v7, v6, 9, v7")
    A(f"v_lshl_add_u32 {v(V_HA)}, v5, 4, v7")
    A(f"s_mov_b32 s{S_Q}, s{S_O}"); A(f"s_mov_b32 s{S_Q+1}, s{S_O+1}"); A(f"s_mov_b32 s{S_Q+3}, 0x00020000")
    A(f"s_cmp_lt_i32 s{S_HSIG}, 0")
    A(f"s_cselect_b32 s{S_Q+2}, 0, s{S_O+2}")
    A("s_waitcnt vmcnt(28)")
    stamp(A, 'norm_ok')
    for i in range(16): A(f"v_max_f32 {v(32+i)}, {v(32+i)}, {v(48+i)}")
    n = 16
    while n > 1:
        n //= 2
        for i in range(n): A(f"v_max_f32 {v(32+i)}, {v(32+i)}, {v(32+i+n)}")
    def wave_max(r, sd):
        for sh in (8, 4, 2, 1):
            A("s_nop 1")
            A(f"v_max_f32_dpp {v(r)}, {v(r)}, {v(r)} row_ror:{sh} row_mask:0xf bank_mask:0xf")
        A("s_nop 1")
        for k, ln in enumerate((0, 16, 32, 48)): A(f"v_readlane_b32 s{36+k}, {v(r)}, {ln}")
        A("s_nop 1")
        A("s_max_u32 s36, s36, s37"); A("s_max_u32 s38, s38, s39"); A(f"s_max_u32 s{sd}, s36, s38")
    wave_max(32, 6); wave_max(4, 7)
    A("v_mov_b32 v5, s6"); A("v_mul_f32 v5, s7, v5")
    A(f"v_mov_b32 v6, {fbits(4000.0)}")
    A("v_cmp_le_f32 vcc, v5, v6")
    A("s_nop 4")
    A(f"s_cbranch_vccz L_{name}_slow")
    def hspin(tag):
        A("s_mov_b32 s7, 0x8000")
        A.label(f"L_{name}_hs{tag}")
        A(f"buffer_load_dword {v(V_H)}, off, s[{S_N}:{S_N+3}], s101 sc1")
        A("s_waitcnt vmcnt(0)")
        A(f"v_readfirstlane_b32 s6, {v(V_H)}")
        A("s_sub_u32 s7, s7, 1"); A("s_cmp_eq_u32 s7, 0"); A(f"s_cbranch_scc1 L_{name}_hsd{tag}")
        A("s_cmp_ge_u32 s6, 64"); A(f"s_cbranch_scc1 L_{name}_hsd{tag}")
        A("s_sleep 4"); A(f"s_branch L_{name}_hs{tag}")
        A.label(f"L_{name}_hsd{tag}")
    def hsignal(back):
        A(f"s_cmp_lt_i32 s{S_HSIG}, 0")
        A(f"s_cbranch_scc1 {back}")
        A(f"s_lshl_b32 s6, s{S_HSIG}, 1")
        A("v_lshrrev_b32 v4, 4, v1"); A("v_and_b32 v4, 1, v4"); A("v_add_u32 v4, s6, v4")
        A("v_lshrrev_b32 v5, 3, v1"); A("v_and_b32 v5, 1, v5"); A("v_lshlrev_b32 v5, 2, v5")
        A("v_lshrrev_b32 v6, 2, v4"); A("v_or_b32 v5, v5, v6")
        A("v_lshrrev_b32 v6, 1, v1"); A("v_and_b32 v6, 3, v6"); A("v_lshlrev_b32 v6, 2, v6")
        A("v_and_b32 v4, 3, v4"); A("v_or_b32 v6, v6, v4")
        A("v_and_b32 v4, 1, v1"); A("v_lshl_add_u32 v6, v6, 1, v4")
        A("v_lshl_add_u32 v6, v6, 3, v5"); A("v_lshlrev_b32 v6, 7, v6")
        A("v_mov_b32 v4, 1")
        A("s_mov_b64 s[36:37], exec"); A("s_mov_b32 exec_lo, -1"); A("s_mov_b32 exec_hi, 0")
        A(f"buffer_atomic_add v4, v6, s[{S_N}:{S_N+3}], 0 offen offset:4")
        A("s_mov_b64 exec, s[36:37]")
    def gemm_prologue_groups():
        g = []
        first = [f"s_lshl_b32 s{S_M0}, s{S_WV}, 13", f"s_mov_b32 m0, s{S_M0}", "s_nop 0"]
        for i in range(8): g.append((first if i == 0 else []) + g_dma(i))
        for s_ in range(7):
            for j in range(2):
                grp = [g_aload(s_, j, (s_ % 2) * 2048 + j * 1024)]
                if s_ % 2 == 1 and j == 1: grp.append(f"s_add_u32 s{S_AOFF}, s{S_AOFF}, 4096")
                g.append(grp)
        for i in range(8): g.append((g_next_stage() if i == 0 else []) + g_dma(i))
        return g
    def gemm_prologue_rest():
        for s_ in range(7, XD):
            for j in range(2):
                A(g_aload(s_, j, (s_ % 2) * 2048 + j * 1024))
            if s_ % 2 == 1: A(f"s_add_u32 s{S_AOFF}, s{S_AOFF}, 4096")
        for st in (2, 3):
            for i in range(8 if st == 2 else 2):
                for z in (g_next_stage() if i == 0 else []) + g_dma(i): A(z)
    A(qk('a', 0, 0)); A(qk('a', 0, 1))
    A(f"s_mov_b32 s{S_KOFF}, {8*2048}")
    A(f"s_movk_i32 s{S_IT}, 6")
    A("s_nop 7"); A("s_nop 7")
    stamp(A, 3)
    KB4 = [S_KOFF, 36, 37, 38]
    def kv_bases(): return [f"s_add_u32 s{KB4[i]}, s{S_KOFF}, {i * 4096}" for i in range(1, 4)]
    p0, p1 = opt("kvp0", 9), opt("kvp1", 20)
    def hstore(i):
        q = 2 * i + 1; p, tb = q >> 2, q & 3
        return [f"s_add_u32 s6, s55, {(tb >> 1) * AH_TB + p * 2048 + (tb & 1) * 256}",
                f"buffer_store_dwordx4 {a(128 + 4 * i, 4)}, {v(V_HA)}, s[{S_Q}:{S_Q+3}], s6 offen sc1"]
    HD = opt("hdefer", 1)
    sim = VmSim()
    for kb in range(-7, 0):
        for j in range(2): sim.issue(('K', kb + 8, j))
        for j in range(2): sim.issue(('V', kb + 7, j))
    kvw = {}
    for kb in range(64):
        u = kb & 7; kind = 'first' if kb < 8 else 'last' if kb >= 56 else 'mid'
        if kind == 'mid' and u == 0: sim.issue(('H', kb))
        if kind == 'last':
            sim.issue(('G', kb, 0)); sim.issue(('G', kb, 1))
        else:
            sim.issue(('K', kb + 8, 0))
            if kind == 'first' and HD and u < 7: sim.issue(('HS', kb, 0))
            sim.issue(('K', kb + 8, 1))
        need = sim.need(lambda t: t[0] == 'V' and t[1] == kb)
        if kb + 1 < 64: need = min(need, sim.need(lambda t: t[0] == 'K' and t[1] == kb + 1) if kb + 1 > 0 else need)
        kvw[(kind, u)] = min(kvw.get((kind, u), 63), need)
        if kind == 'last' and u > 0:
            sim.issue(('G', kb, 2)); sim.issue(('G', kb, 3))
        else:
            sim.issue(('V', kb + 7, 0))
            if kind == 'first' and HD and u < 7: sim.issue(('HS', kb, 1))
            sim.issue(('V', kb + 7, 1))
    def attn_body(kind):
        last = kind == 'last'
        gp = gemm_prologue_groups() if last else None
        for u in range(R):
            if last: ea = {p0: gp.pop(0), p1: gp.pop(0)}
            else: ea = {p0: [kload(u, 0, (u & 1) * 2048, KB4[u >> 1])], p1: [kload(u, 1, (u & 1) * 2048, KB4[u >> 1])]}
            if u == 0 and not last: ea[1] = kv_bases()
            if u == 0 and kind == 'mid': ea[2] = [f"buffer_load_dword {v(V_H)}, off, s[{S_N}:{S_N+3}], s101 sc1"]
            if kind == 'first' and HD and u < 7: ea[15] = hstore(2 * u)
            half(A, 'a', [qk('b', u, 0), qk('b', u, 1), pv('b', (u-1) % R, 0), pv('b', (u-1) % R, 1), rs('b', 0), rs('b', 1)], ea)
            A(f"s_waitcnt vmcnt({min(kvw[(kind, u)], 63)})")
            if last and u > 0: eb = {p0: gp.pop(0), p1: gp.pop(0)}
            elif last: eb = {p0: [vload((u-1) % R, 0, 0, S_KOFF)], p1: [vload((u-1) % R, 1, 0, S_KOFF)]}
            else: eb = {p0: [vload((u-1) % R, 0, (u & 1) * 2048, KB4[u >> 1])], p1: [vload((u-1) % R, 1, (u & 1) * 2048, KB4[u >> 1])]}
            if kind == 'first' and HD and u < 7: eb[15] = hstore(2 * u + 1)
            mf = [qk('a', (u+1) % R, 0), qk('a', (u+1) % R, 1), pv('a', u, 0), pv('a', u, 1), rs('a', 0), rs('a', 1)]
            if last and u == R - 1: mf[0] = "s_nop 0"; mf[1] = "s_nop 0"
            half(A, 'b', mf, eb)
        if last: assert not gp
    attn_body('first')
    A(f"s_add_u32 s{S_KOFF}, s{S_KOFF}, {R*2048}")
    A.raw(".p2align 6")
    A.label(f"L_{name}_loop")
    attn_body('mid')
    A(f"s_add_u32 s{S_KOFF}, s{S_KOFF}, {R*2048}")
    A(f"s_sub_u32 s{S_IT}, s{S_IT}, 1")
    A(f"s_cmp_eq_u32 s{S_IT}, 5")
    A(f"s_cbranch_scc1 L_{name}_hsig")
    A.label(f"L_{name}_hback")
    A(f"s_cmp_lg_u32 s{S_IT}, 0")
    A(f"s_cbranch_scc1 L_{name}_loop")
    A(f"v_readfirstlane_b32 s6, {v(V_H)}")
    A("s_nop 3")
    A("s_cmp_ge_u32 s6, 64")
    A(f"s_cbranch_scc1 L_{name}_hok")
    hspin("f")
    A.label(f"L_{name}_hok")
    attn_body('last')
    stamp(A, 4)
    A("s_nop 1")
    A(pv('b', 7, 0)); A(pv('b', 7, 1)); A(rs('b', 0)); A(rs('b', 1))
    gemm_prologue_rest()
    A("s_nop 7")
    if opt("rs32", 0):
        for x in "ab":
            A(f"v_mov_b32 {v(LS[x])}, {v(L[x])}"); A(f"v_mov_b32 v5, {v(L[x])}"); A("s_nop 1")
            A(f"v_permlane32_swap_b32 {v(LS[x])}, v5")
    else:
        A("v_and_b32 v3, 15, v1"); A("v_lshlrev_b32 v3, 2, v3")
        A("v_lshrrev_b32 v4, 4, v1"); A("v_and_b32 v4, 1, v4"); A("v_cmp_eq_u32 vcc, 1, v4")
        for x in "ab":
            A(f"ds_bpermute_b32 v5, v3, {v(L[x])}"); A(f"ds_bpermute_b32 v6, v3, {v(L[x]+1)}")
            A("s_waitcnt lgkmcnt(0)")
            A(f"v_cndmask_b32 {v(LS[x])}, v5, v6, vcc")
    A(f"s_branch L_{name}_afin")
    A.label(f"L_{name}_hsig")
    hsignal(f"L_{name}_hback")
    A(f"s_branch L_{name}_hback")
    A.label(f"L_{name}_slow")
    if opt("hdefer", 1):
        for i in range(14):
            for z in hstore(i): A(z)
    A("s_waitcnt vmcnt(0)")
    hsignal(f"L_{name}_slow2")
    A.label(f"L_{name}_slow2")
    for x in "ab":
        A(f"v_mov_b32 {v(M[x])}, 0xff800000"); A(f"v_mov_b32 {v(LS[x])}, 0")
    A(f"s_mov_b32 s{S_KOFF}, 0")
    A(f"s_movk_i32 s{S_IT}, 64")
    A.label(f"L_{name}_sloop")
    A(kload(0, 0, 0)); A(kload(0, 1, 0)); A(vload(0, 0, 2048)); A(vload(0, 1, 2048))
    A("s_waitcnt vmcnt(0)")
    for x in "ab":
        A(qk(x, 0, 0)); A(qk(x, 0, 1))
        A("s_nop 7"); A("s_nop 7")
        A(f"v_max3_f32 v3, {v(S[x])}, {v(S[x]+1)}, {v(M[x])}")
        for i in range(2, 16, 2): A(f"v_max3_f32 v3, {v(S[x]+i)}, {v(S[x]+i+1)}, v3")
        A("v_mov_b32 v4, v3"); A("s_nop 1")
        A("v_permlane32_swap_b32 v3, v4"); A("s_nop 1")
        A("v_max_f32 v3, v3, v4")
        A(f"v_sub_f32 v4, {v(M[x])}, v3")
        A("v_exp_f32 v4, v4")
        A(f"v_mov_b32 {v(M[x])}, v3")
        for i in range(16): A(f"v_sub_f32 {v(S[x]+i)}, {v(S[x]+i)}, v3")
        for i in range(16): A(f"v_exp_f32 {v(S[x]+i)}, {v(S[x]+i)}")
        for i in range(16): A(f"v_mul_f32 {v(O[x]+i)}, {v(O[x]+i)}, v4")
        for i in range(8): A(f"v_cvt_pk_bf16_f32 {v(P[x]+i)}, {v(S[x]+2*i)}, {v(S[x]+2*i+1)}")
        A(f"v_mul_f32 {v(LS[x])}, {v(LS[x])}, v4")
        for i in range(16): A(f"v_add_f32 {v(LS[x])}, {v(LS[x])}, {v(S[x]+i)}")
        A(pv(x, 0, 0)); A(pv(x, 0, 1))
        A("s_nop 7"); A("s_nop 7")
    A(f"s_add_u32 s{S_KOFF}, s{S_KOFF}, 2048")
    A(f"s_sub_u32 s{S_IT}, s{S_IT}, 1")
    A(f"s_cmp_lg_u32 s{S_IT}, 0")
    A(f"s_cbranch_scc1 L_{name}_sloop")
    for x in "ab":
        A(f"v_mov_b32 v4, {v(LS[x])}"); A("s_nop 1")
        A(f"v_permlane32_swap_b32 {v(LS[x])}, v4"); A("s_nop 1")
        A(f"v_add_f32 {v(LS[x])}, {v(LS[x])}, v4")
    hspin("s")
    for grp in gemm_prologue_groups():
        for z in grp: A(z)
    gemm_prologue_rest()
    A.label(f"L_{name}_afin")
    A(f"s_mul_i32 s6, s{S_TB}, {AH_TB}")
    A(f"s_lshl_b32 s7, s{S_HEAD}, 11"); A("s_add_u32 s6, s6, s7")
    for xi, x in enumerate("ab"):
        A(f"v_rcp_f32 v4, {v(LS[x])}"); A("s_nop 0")
        for i in range(16): A(f"v_mul_f32 {v(O[x]+i)}, {v(O[x]+i)}, v4")
        T = S[x]
        for j in range(2):
            A(f"v_cvt_pk_bf16_f32 {v(T+4*j)}, {v(O[x]+4*j)}, {v(O[x]+4*j+1)}")
            A(f"v_cvt_pk_bf16_f32 {v(T+4*j+1)}, {v(O[x]+4*j+2)}, {v(O[x]+4*j+3)}")
            A(f"v_cvt_pk_bf16_f32 {v(T+4*j+2)}, {v(O[x]+8+4*j)}, {v(O[x]+8+4*j+1)}")
            A(f"v_cvt_pk_bf16_f32 {v(T+4*j+3)}, {v(O[x]+8+4*j+2)}, {v(O[x]+8+4*j+3)}")
            A(f"buffer_store_dwordx4 {v(T+4*j,4)}, {v(V_L16)}, s[{S_O}:{S_O+3}], s6 offen offset:{j*1024} sc1")
        if xi == 0: A(f"s_add_u32 s6, s6, {AH_TB}")
    srd(A, S_V, "s96", "s97", 4*MB)
    srd(A, S_Q, "s98", "s99", 4*MB)
    A("v_lshrrev_b32 v5, 3, v1"); A("v_and_b32 v6, 7, v1")
    A("v_lshlrev_b32 v3, 11, v5"); A("v_lshl_add_u32 v3, v6, 4, v3")
    A(f"s_lshl_b32 s7, s{S_MT}, 7"); A(f"s_lshl_b32 s36, s{S_WV}, 5"); A("s_add_u32 s7, s7, s36")
    A("s_lshl_b32 s7, s7, 11"); A(f"s_lshl_b32 s36, s{S_NT}, 8"); A("s_add_u32 s7, s7, s36")
    A(f"s_lshl_b32 s36, s{S_HALF}, 7"); A("s_add_u32 s95, s7, s36")
    XR = 112
    A("s_mov_b32 s7, s95")
    for i in range(4):
        A(f"buffer_load_dwordx4 {v(XR + 4*i, 4)}, v3, s[{S_V}:{S_V+3}], s7 offen")
        if i < 3: A(f"s_add_u32 s7, s7, {8 * 2048}")
    A("s_waitcnt vmcnt(56)")
    A("s_barrier")
    stamp(A, 'g_start')
    A(f"s_mov_b32 s{S_IT}, 3")
    A(f"s_mov_b32 s{S_FIRST}, 1")
    for r in g_tr(0): A(r)
    def body_ops(it):
        ops = []
        for n in range(NB):
            ph = (n + 1) % 4
            st = (NB // 4) * it + ((n + 1) >> 2) - 1 + PD
            if n == 2: ops.append((n, ('F', it)))
            ops.append((n, ('A', NB * it + n + XD, 0))); ops.append((n, ('W', st, 2 * ph)))
            ops.append((n, ('A', NB * it + n + XD, 1))); ops.append((n, ('W', st, 2 * ph + 1)))
        return ops
    waits = {n: 63 for n in range(NB)}
    sim = VmSim()
    for t in [('W', 0, i) for i in range(8)] + [('A', s_, j) for s_ in range(7) for j in range(2)] + [('W', 1, i) for i in range(8)] + \
             [('A', s_, j) for s_ in range(7, XD) for j in range(2)] + \
             [('W', 2, i) for i in range(8)] + [('W', 3, i) for i in range(2)] + [('S', i) for i in range(4)] + [('X', i) for i in range(4)]: sim.issue(t)
    SIGN = 7; sig_wait = None
    for it in range(3):
        ops = body_ops(it)
        for n in range(NB):
            g = NB * it + n
            need = sim.need(lambda t: t[0] == 'A' and t[1] == g)
            if n % 4 == 3:
                need = min(need, sim.need(lambda t: t[0] == 'W' and t[1] == (NB // 4) * it + (n >> 2) + 1))
            if n == 17: need = min(need, sim.need(lambda t: t[0] == 'F' and t[1] == it))
            if n == SIGN and it == 0: sig_wait = sim.need(lambda t: t[0] == 'S')
            waits[n] = min(waits[n], need)
            for (s_, t) in ops:
                if s_ == n: sim.issue(t)
    assert max(waits.values()) <= 63
    PR = 32
    A.raw(".p2align 6")
    A.label(f"L_{name}_gloop")
    for n in range(NB):
        A.c(f"gemm step {n}")
        A(f"s_waitcnt vmcnt({waits[n]}) lgkmcnt(0)")
        if n % 4 == 3 and not opt("g_nobar"): A("s_barrier")
        fill = [[] for _ in range(8)]
        reads = []
        if n % 8 == 7: reads += [f"v_xor_b32 {v(V_TR+cb)}, 0x10000, {v(V_TR+cb)}" for cb in range(4)]
        reads += g_tr(n + 1) if not opt("g_notr") else []
        k = 0; m = 0
        while k < len(reads):
            cnt = 4 if m < 1 and n % 8 == 7 else 3
            fill[m] += reads[k:k + cnt]; k += cnt; m += 1
        tgt = n + XD
        pre = []
        if n == 17:
            pre += [f"s_cmp_eq_u32 s{S_IT}, 2", ("BR", f"s_cbranch_scc1 L_{name}_asw", f"L_{name}_aback")]
        if n == 9:
            pre += [f"s_cmp_eq_u32 s{S_IT}, 1", f"s_cselect_b32 s{S_GA+2}, 0, s{S_GA+2}"]
        if n == 2: pre += [g_flagload()]
        if n == SIGN:
            pre += [f"s_cmp_eq_u32 s{S_FIRST}, 1", ("BR", f"s_cbranch_scc1 L_{name}_sig", f"L_{name}_sigback")]
        ph = (n + 1) % 4
        ns = g_next_stage(n == 19) if ph == 0 else []
        imm = (tgt % 2) * 2048
        fill[0] = pre + fill[0]
        fill[1].append(g_aload(tgt % NB, 0, imm))
        fill[2] += ns
        fill[3] += g_dma(2 * ph)
        fill[5].append(g_aload(tgt % NB, 1, imm + 1024))
        if tgt % 2 == 1: fill[5].append(f"s_add_u32 s{S_AOFF}, s{S_AOFF}, 4096")
        fill[7] += g_dma(2 * ph + 1)
        if opt("g_novm"):
            fill = [[z for z in f if isinstance(z, tuple) or not z.startswith("buffer_load")] for f in fill]
        for m in range(8):
            j, cb = m // 4, m % 4
            d = v(gacc(cb), 16)
            A(f"v_mfma_f32_32x32x16_bf16 {d}, {a(wreg(n & 1, j, cb), 4)}, {a(areg(n, j), 4)}, {d}")
            for z in fill[m]:
                if isinstance(z, tuple):
                    A(z[1]); A.label(z[2])
                else: A(z)
    A(f"s_sub_u32 s{S_IT}, s{S_IT}, 1")
    A(f"s_cmp_lg_u32 s{S_IT}, 0")
    A(f"s_cbranch_scc1 L_{name}_gloop")
    A(f"s_branch L_{name}_gdone")
    A.label(f"L_{name}_asw")
    A(f"v_readlane_b32 s6, {v(V_F)}, 0")
    A("s_nop 3")
    A("s_cmp_ge_u32 s6, 128")
    A(f"s_cbranch_scc1 L_{name}_asw2")
    spin(A, name, "o", 0, 128, 7, 6)
    A.label(f"L_{name}_asw2")
    A(f"s_mov_b32 s{S_AOFF}, s{S_ASW}")
    A(f"s_branch L_{name}_aback")
    A.label(f"L_{name}_sig")
    A(f"s_mov_b32 s{S_FIRST}, 0")
    A(f"s_waitcnt vmcnt({sig_wait})")
    A(f"s_lshl_b32 s6, s{S_QT}, 7")
    A("v_mov_b32 v4, 1")
    A("s_mov_b64 s[36:37], exec"); A("s_mov_b64 exec, 1")
    A(f"buffer_atomic_add v4, off, s[{S_F}:{S_F+3}], s6")
    A("s_mov_b64 exec, s[36:37]")
    A(f"s_branch L_{name}_sigback")
    A.label(f"L_{name}_gdone")
    stamp(A, 'g_end')
    A(f"s_lshl_b32 s6, s{S_MT}, 3"); A(f"s_add_u32 s6, s6, s{S_NT}")
    A(f"s_add_u32 s36, {WS}, {PART_OFF}"); A(f"s_addc_u32 s37, {WS1}, 0")
    A("s_lshl_b32 s7, s6, 16"); A(f"s_lshl_b32 s38, s{S_WV}, 13"); A("s_add_u32 s7, s7, s38")
    A("s_add_u32 s36, s36, s7"); A("s_addc_u32 s37, s37, 0")
    srd(A, S_K, "s36", "s37", 65536)
    A(f"s_lshl_b32 s38, s{S_HALF}, 15")
    A("s_xor_b32 s39, s38, 0x8000")
    A("s_add_u32 s6, s6, 8"); A("s_lshl_b32 s6, s6, 7"); A(f"s_lshl_b32 s7, s{S_HALF}, 2"); A("s_add_u32 s6, s6, s7")
    PR = 32
    def finish(h):
        keep = gacc(2 * h); send = gacc(2 * (1 - h))
        for i in range(8):
            if i == 4: A("s_add_u32 s38, s38, 4096")
            A(f"buffer_store_dwordx4 {v(send + 4*i, 4)}, {v(V_L16)}, s[{S_K}:{S_K+3}], s38 offen offset:{(i % 4) * 1024} sc1")
        A("v_and_b32 v5, 31, v1"); A("v_lshrrev_b32 v6, 5, v1")
        A("v_lshlrev_b32 v7, 8, v5"); A(f"s_lshl_b32 s7, s{S_WV}, 13"); A("v_add_u32 v7, s7, v7")
        A("v_and_b32 v5, 7, v5")
        for cq in range(8):
            A(f"v_add_u32 {v(64 + cq)}, {2 * cq}, v6"); A(f"v_xor_b32 {v(64 + cq)}, {v(64 + cq)}, v5")
            A(f"v_lshl_add_u32 {v(64 + cq)}, {v(64 + cq)}, 4, v7")
        A("v_lshrrev_b32 v5, 3, v1"); A("v_and_b32 v6, 7, v1"); A("v_lshlrev_b32 v6, 1, v6"); A("v_xor_b32 v6, v6, v5")
        A("v_lshlrev_b32 v7, 8, v5"); A("v_add_u32 v7, s7, v7"); A("v_lshl_add_u32 v72, v6, 4, v7"); A("v_xor_b32 v73, 16, v72")
        A("s_waitcnt vmcnt(0)")
        A("s_barrier")
        A(f"s_cmp_eq_u32 s{S_WV}, 0")
        A(f"s_cbranch_scc0 L_{name}_nf{h}")
        A("v_mov_b32 v4, 1")
        A("s_mov_b64 exec, 1")
        A(f"buffer_store_dword v4, off, s[{S_F}:{S_F+3}], s6 sc1")
        A("s_mov_b64 exec, -1")
        A.label(f"L_{name}_nf{h}")
        spin(A, name, f"p{h}", 1, 1, 7, 36)
        for i in range(8):
            if i == 4: A("s_add_u32 s39, s39, 4096")
            A(f"buffer_load_dwordx4 {v(PR + 4*i, 4)}, {v(V_L16)}, s[{S_K}:{S_K+3}], s39 offen offset:{(i % 4) * 1024} sc1")
        for i in range(8):
            A(f"s_waitcnt vmcnt({7 - i})")
            A(f"v_pk_add_f32 {v(keep + 4*i, 2)}, {v(keep + 4*i, 2)}, {v(PR + 4*i, 2)}")
            A(f"v_pk_add_f32 {v(keep + 4*i + 2, 2)}, {v(keep + 4*i + 2, 2)}, {v(PR + 4*i + 2, 2)}")
            A(f"ds_write_b128 {v(64 + i)}, {v(keep + 4*i, 4)}")
        stamp(A, 'p_ready')
        A("s_waitcnt lgkmcnt(0)")
        for i in range(4):
            A(f"ds_read_b128 {v(PR + 8*i, 4)}, v72 offset:{i * 2048}")
            A(f"ds_read_b128 {v(PR + 8*i + 4, 4)}, v73 offset:{i * 2048}")
        stamp(A, 't_done')
        A("s_mov_b32 s39, 0xffff0000")
        A("s_mov_b32 s7, s95")
        for i in range(4):
            A(f"s_waitcnt lgkmcnt({6 - 2*i})")
            b = PR + 8*i; xr = XR + 4*i
            for r in range(4):
                A(f"v_lshlrev_b32 v24, 16, {v(xr+r)}"); A(f"v_and_b32 v25, s39, {v(xr+r)}")
                A(f"v_pk_add_f32 {v(b+2*r, 2)}, {v(b+2*r, 2)}, v[24:25]")
            for r in range(4): A(f"v_cvt_pk_bf16_f32 {v(xr+r)}, {v(b+2*r)}, {v(b+2*r+1)}")
            A(f"buffer_store_dwordx4 {v(xr, 4)}, v3, s[{S_Q}:{S_Q+3}], s7 offen{' sc1' if opt('out_sc1', 1) else ''}")
            if i < 3: A(f"s_add_u32 s7, s7, {8 * 2048}")
    A(f"s_cmp_eq_u32 s{S_HALF}, 0")
    A(f"s_cbranch_scc0 L_{name}_fin1")
    finish(0)
    A(f"s_branch {fin}")
    A.label(f"L_{name}_fin1")
    finish(1)
    A.label(fin)
```

```python
import sys
import asmlib
from asmlib import *
import k_l1, k_l2
NAME = "parallel_sum__softmax_full_mha__dense_activation_silu__prompt"
DESC = """;
"""
def build(path):
    ref = open(f"cdna_kernels/{NAME}.s.ref").read().split("\n")
    head = [l for l in ref if l.startswith(";") and "@launch" not in l and "Override launch" not in l and "grid=ceil" not in l]
    kn = NAME + "_kernel"
    A = Asm()
    kernel_begin(A, kn)
    end = "L_end"
    k_l1.gen_l1("p1", A, end)
    k_l2.gen_l2("p2", A)
    if PROF["on"]:
        A("s_waitcnt vmcnt(0)")
        stamp(A, 5)
        if OPT.get('dbgprof'): dbg_flush(A, 30)
        else: prof_flush(A, 0, 8, 30)
    A.label(end)
    A("s_endpgm")
    kernel_end(A, kn, 512, 256, 102)
    lds = max(k_l1.LDS_BYTES, k_l2.LDS_BYTES)
    out = "\n".join(head) + f"\n; @launch grid=(256,1,1) block=(256,1,1) lds={lds}\n" + DESC + '.amdgcn_target "amdgcn-amd-amdhsa--gfx950"\n' + A.text()
    open(path, "w").write(out)
if __name__ == "__main__":
    if "--prof" in sys.argv:
        asmlib.PROF["on"] = True
        sys.argv.remove("--prof")
    for x in list(sys.argv):
        if x.startswith("--opt="):
            k, val = x[6:].split("=")
            asmlib.OPT[k] = int(val)
            sys.argv.remove(x)
    build(sys.argv[1] if len(sys.argv) > 1 else f"cdna_kernels/{NAME}.s")
```

```python
class Asm:
    def __init__(self):
        self.lines = []
    def __call__(self, s=""):
        for l in s.split("\n"):
            l = l.strip()
            if l:
                self.lines.append("    " + l)
    def label(self, l):
        self.lines.append(l + ":")
    def raw(self, s):
        self.lines.append(s)
    def c(self, s):
        self.lines.append("    ; " + s)
    def text(self):
        return "\n".join(self.lines) + "\n"

def v(i, n=1):
    return f"v{i}" if n == 1 else f"v[{i}:{i+n-1}]"
def a(i, n=1):
    return f"a{i}" if n == 1 else f"a[{i}:{i+n-1}]"
def s(i, n=1):
    return f"s{i}" if n == 1 else f"s[{i}:{i+n-1}]"

def kernel_begin(A, name):
    A.raw(".text")
    A.raw(f".globl {name}")
    A.raw(".p2align 8")
    A.raw(f".type {name},@function")
    A.label(name)

def kernel_end(A, name, vgpr, accum, sgpr=102):
    A.raw('.section .rodata,"a"')
    A.raw(".p2align 6")
    A.raw(f".amdhsa_kernel {name}")
    A.raw(f"  .amdhsa_next_free_vgpr {vgpr}")
    A.raw(f"  .amdhsa_next_free_sgpr {sgpr}")
    A.raw(f"  .amdhsa_accum_offset {accum}")
    A.raw("  .amdhsa_group_segment_fixed_size 0")
    A.raw("  .amdhsa_kernarg_size 72")
    A.raw("  .amdhsa_user_sgpr_count 2")
    A.raw("  .amdhsa_user_sgpr_kernarg_segment_ptr 1")
    A.raw("  .amdhsa_system_sgpr_workgroup_id_x 1")
    A.raw("  .amdhsa_float_denorm_mode_32 3")
    A.raw(".end_amdhsa_kernel")

def srd(A, d, base_lo, base_hi, nbytes):
    A(f"s_mov_b32 s{d}, {base_lo}")
    A(f"s_and_b32 s{d+1}, {base_hi}, 0xffff")
    A(f"s_mov_b32 s{d+2}, {nbytes}")
    A(f"s_mov_b32 s{d+3}, 0x00020000")

def fbits(x):
    import struct
    return "0x%08x" % struct.unpack("<I", struct.pack("<f", x))[0]

PROF = {"on": False}
PROF_OFF = 60 << 20
OPT = {}
STAMPMAP = {}
def stamp(A, i, real=False):
    if not PROF["on"] or i is None: return
    m = STAMPMAP.get(OPT.get("fine", 0), None)
    if m is not None:
        if i not in m: return
        i = m[i]
    elif not isinstance(i, int): return
    A(f"s_memtime s[{64+4*i}:{65+4*i}]")
    A(f"s_memrealtime s[{66+4*i}:{67+4*i}]")
def prof_flush(A, kidx, nst, wave_sgpr, ws_lo=None):
    if not PROF["on"]: return
    A("s_waitcnt lgkmcnt(0) vmcnt(0)")
    A("s_load_dwordx2 s[4:5], s[0:1], 64")
    A("s_waitcnt lgkmcnt(0)")
    A(f"s_add_u32 s4, s4, {PROF_OFF + kidx * (1 << 18)}")
    A("s_addc_u32 s5, s5, 0")
    A("s_mov_b32 s8, s4"); A("s_and_b32 s9, s5, 0xffff"); A(f"s_mov_b32 s10, {1 << 18}"); A("s_mov_b32 s11, 0x00020000")
    A("s_lshl_b32 s6, s2, 3")
    A(f"s_add_u32 s6, s6, s{wave_sgpr}")
    A("s_lshl_b32 s6, s6, 6")
    A("s_mov_b64 exec, 1")
    for i in range(6):
        for k in range(2):
            A(f"v_mov_b32 v1, s{64+4*i+2*k}")
            A(f"v_mov_b32 v2, {8*i+4*k}")
            A("s_nop 1")
            A("buffer_store_dword v1, v2, s[8:11], s6 offen")
            A("s_nop 1")
    A("s_waitcnt vmcnt(0)")

STAMPMAP[1] = {2: 0, 'epi_end': 1, 'pre_poll': 2, 'poll_done': 3, 'norm_ok': 4, 3: 5}
STAMPMAP[2] = {0: 0, 'ln_loaded': 1, 'ln_stored': 2, 'ln_drained': 3, 'ln_got': 4, 1: 5}
STAMPMAP[3] = {4: 0, 'g_start': 1, 'g_end': 2, 'p_ready': 3, 't_done': 4, 5: 5}
def opt(k, d=None): return OPT.get(k, d)

def dbg_flush(A, wave_sgpr):
    if not PROF["on"]: return
    A("s_waitcnt lgkmcnt(0) vmcnt(0)")
    A(f"s_cmp_eq_u32 s{wave_sgpr}, 0"); A("s_cbranch_scc0 L_dbgdone")
    A("s_cmp_eq_u32 s2, 200"); A("s_cselect_b32 s6, 4, 0")
    A("s_cmp_eq_u32 s2, 8"); A("s_cselect_b32 s6, 36, s6")
    A("s_cmp_eq_u32 s6, 0"); A("s_cbranch_scc1 L_dbgdone")
    A("s_load_dwordx2 s[4:5], s[0:1], 56")
    A("s_waitcnt lgkmcnt(0)")
    A("s_mov_b32 s8, s4"); A("s_and_b32 s9, s5, 0xffff"); A("s_mov_b32 s10, 256"); A("s_mov_b32 s11, 0x00020000")
    A("s_mov_b64 exec, 1")
    for i in range(1, 6):
        A(f"s_sub_u32 s7, s{66+4*i}, s66")
        A("v_mov_b32 v1, s7")
        A("s_nop 1")
        A(f"buffer_store_dword v1, off, s[8:11], s6 offset:{4*(i-1)}")
        A("s_nop 1")
    A("s_waitcnt vmcnt(0)")
    A.label("L_dbgdone")
```

```python
from asmlib import *
from layout import *
from vmsim import VmSim
import math

NCB = 14
def acc(cb, tb): return 32 + 4 * (cb * 4 + tb)
def xreg(slot, tb): return (slot * 4 + tb) * 4
def wreg(buf, cb): return 64 + (buf * NCB + cb) * 4
NAGPR = 176
SLOT = 32768
PITCH = 448
LN_LDS = 4 * SLOT
LDS_BYTES = 4 * SLOT + 256
V_X = 0; V_DMA = 1; V_TRE = 8; V_TRO = 9
S_W = 8; S_X = 12; S_O = 16; S_N = 20
S_WOFF = 24; S_XO = 25; S_IT = 29; S_WV = 30; S_MT = 31; S_BLK0 = 32; S_TYPE = 33
S_T0, S_T1, S_T2, S_T3 = 34, 35, 36, 37
S_M0CUR = 38; S_TOK = 39; S_WS = 40; S_LDW = 42; S_STG = 43; S_D = 52; S_M0A = 56; S_SLOT = 57; S_NT = 58

def tr_main(n, ncb=NCB):
    par = (n >> 1) & 1; sub = n & 1
    out = []
    for cb in range(ncb):
        for h in range(2):
            off = par * SLOT + sub * 32 * PITCH + h * 4 * PITCH + cb * 32
            ad = V_TRE if cb % 2 == 0 else V_TRO
            out.append(f"ds_read_b64_tr_b16 {a(wreg(n & 1, cb) + 2 * h, 2)}, {v(ad)} offset:{off}")
    return out
def x_load(slot, tb, imm):
    return f"buffer_load_dwordx4 {a(xreg(slot, tb), 4)}, {v(V_X)}, s[{S_X}:{S_X+3}], s{S_XO + tb} offen offset:{imm}{' sc1' if opt('x_sc1', 1) else ''}"
def dma(i):
    return f"buffer_load_dwordx4 {v(V_DMA + i)}, s[{S_W}:{S_W+3}], s{S_WOFF} offen offset:{(i & 3) * 1024} lds"
def w_next_stage():
    return [f"s_add_u32 s{S_WOFF}, s{S_WOFF}, s{S_STG}",
            f"s_add_u32 s{S_M0CUR}, s{S_M0CUR}, {SLOT}",
            f"s_and_b32 s{S_M0CUR}, s{S_M0CUR}, {4 * SLOT - 1}",
            f"s_mov_b32 m0, s{S_M0CUR}"]
def w_hi():
    return [f"s_add_u32 s{S_T0}, s{S_M0CUR}, 4096", f"s_mov_b32 m0, s{S_T0}"]

def body_vm_ops(it, PD, XD):
    ops = []
    for n in range(4):
        tgt = 4 * it + n + XD
        for tb in range(4): ops.append((n, ('X', tgt, tb)))
        if n & 1:
            st = 2 * it + (n >> 1) + PD
            for i in range(4): ops.append((n, ('W', st, i)))
        else:
            st = 2 * it + (n >> 1) - 1 + PD
            for i in range(4, 7): ops.append((n, ('W', st, i)))
    return ops

def gen_mainloop(A, name, ncb, swap, PD, XD, prologue_ops):
    NM = 4 * ncb
    waits = {n: 63 for n in range(4)}
    sim = VmSim()
    for t in prologue_ops: sim.issue(t)
    for it in range(4):
        ops = body_vm_ops(it, PD, XD)
        for n in range(4):
            g = 4 * it + n
            need = sim.need(lambda t: t[0] == 'X' and t[1] == g)
            if n & 1:
                st = 2 * it + (n >> 1) + 1
                nw = sim.need(lambda t: t[0] == 'W' and t[1] == st)
                if nw is not None: need = nw if need is None else min(need, nw)
            if need is not None: waits[n] = min(waits[n], need)
            for (s_, t) in ops:
                if s_ == n: sim.issue(t)
    A.raw(".p2align 6")
    A.label(f"L_{name}_loop")
    for n in range(4):
        A.c(f"---- step {n}")
        A(f"s_waitcnt vmcnt({waits[n]}) lgkmcnt(0)")
        if n & 1: A("s_barrier")
        reads = []
        if n == 3:
            reads += [f"v_xor_b32 {v(r)}, 0x10000, {v(r)}" for r in (V_TRE, V_TRO)]
        reads += tr_main(n + 1, ncb)
        tail = []
        tgt = n + XD
        if tgt == 4:
            tail += [f"s_add_u32 s{S_XO + tb}, s{S_XO + tb}, 2048" for tb in range(4)]
            tail += [f"s_cmp_eq_u32 s{S_IT}, 1", f"s_cselect_b32 s{S_X+2}, 0, s{S_X+2}"]
        xl = [x_load(tgt % 4, tb, (tgt % 4) * 512) for tb in range(4)]
        if n & 1:
            pre = w_next_stage() + ["s_nop 0"]; dm = [dma(i) for i in range(4)]
        else:
            pre = w_hi() + ["s_nop 0"]; dm = [dma(i) for i in range(4, 7)]
        fill = [[] for _ in range(NM)]
        for k, z in enumerate(reads): fill[k].append(z)
        k0 = 2
        for z in tail: fill[k0].append(z); k0 += 1
        vm = [[z] for z in xl]
        vm.append(pre + [dm[0]])
        vm += [[z] for z in dm[1:]]
        sp = opt("l1_vmsp", 5) if ncb == 14 else 4
        pos = max(k0, 10)
        for grp in vm:
            fill[min(pos, NM - 1)] += grp
            pos += sp
        for m in range(NM):
            cb, tb = (m // 4, m % 4) if not opt("l1_tbouter") else (m % ncb, m // ncb)
            if opt("l1_snake") and not opt("l1_tbouter") and (cb & 1): tb = 3 - tb
            d = v(acc(cb, tb), 4); w = a(wreg(n & 1, cb), 4); x = a(xreg(n, tb), 4)
            A(f"v_mfma_f32_16x16x32_bf16 {d}, {x}, {w}, {d}" if swap(cb) else f"v_mfma_f32_16x16x32_bf16 {d}, {w}, {x}, {d}")
            for z in fill[m]: A(z)
    A(f"s_sub_u32 s{S_IT}, s{S_IT}, 1")
    A(f"s_cmp_lg_u32 s{S_IT}, 0")
    A(f"s_cbranch_scc1 L_{name}_loop")

def ln_loads(A):
    A("v_and_b32 v3, 7, v1"); A("v_lshrrev_b32 v4, 3, v1")
    A("v_lshlrev_b32 v5, 11, v3"); A("v_lshl_add_u32 v5, v4, 4, v5")
    A(f"s_lshl_b32 s{S_T0}, s{S_WV}, 9")
    A(f"v_add_u32 v5, s{S_T0}, v5")
    A(f"s_lshl_b32 s{S_T1}, s2, 14")
    A("v_lshlrev_b32 v6, 11, v3")
    A(f"buffer_load_ushort v30, v6, s[{S_N}:{S_N+3}], s{S_T1} offen")
    for i in range(4):
        A(f"buffer_load_dwordx4 {v(32+4*i,4)}, v5, s[{S_N}:{S_N+3}], s{S_T1} offen offset:{i*128}")

def ln_compute(A, nafter, tag, zero_acc=False, pre_signal=None):
    A("v_and_b32 v24, 7, v1"); A("v_lshlrev_b32 v24, 3, v24")
    A(f"v_add_u32 v24, {LN_LDS}, v24")
    A(f"s_lshl_b32 s{S_T0}, s{S_WV}, 6")
    A(f"v_add_u32 v25, s{S_T0}, v24")
    A("s_mov_b32 s44, 0xffff0000")
    A(f"s_waitcnt vmcnt({nafter + 4})")
    A("v_lshlrev_b32 v30, 16, v30"); A("v_sub_f32 v30, 0, v30"); A("v_mov_b32 v31, v30")
    for i in range(4):
        A(f"s_waitcnt vmcnt({nafter + 3 - i})")
        for r in range(4):
            src = 32 + 4 * i + r
            A(f"v_lshlrev_b32 {v(64+2*(4*i+r))}, 16, {v(src)}")
            A(f"v_and_b32 {v(65+2*(4*i+r))}, s44, {v(src)}")
        for r in range(4):
            A(f"v_pk_add_f32 {v(64+2*(4*i+r),2)}, {v(64+2*(4*i+r),2)}, v[30:31]")
    stamp(A, 'ln_loaded')
    A("v_pk_add_f32 v[32:33], v[64:65], v[66:67]"); A("v_pk_mul_f32 v[34:35], v[64:65], v[64:65]")
    A("v_pk_add_f32 v[36:37], v[68:69], v[70:71]"); A("v_pk_mul_f32 v[38:39], v[66:67], v[66:67]")
    for i in range(2, 16):
        A(f"v_pk_fma_f32 {v(34+4*(i%2),2)}, {v(64+2*i,2)}, {v(64+2*i,2)}, {v(34+4*(i%2),2)}")
        if i >= 4: A(f"v_pk_add_f32 {v(32+4*(i%2),2)}, {v(32+4*(i%2),2)}, {v(64+2*i,2)}")
    A("v_pk_add_f32 v[32:33], v[32:33], v[36:37]"); A("v_pk_add_f32 v[34:35], v[34:35], v[38:39]")
    A("v_add_f32 v26, v32, v33"); A("v_add_f32 v27, v34, v35")
    A("s_nop 0")
    for r in (26, 27):
        A(f"v_add_f32_dpp {v(r)}, {v(r)}, {v(r)} row_ror:8 row_mask:0xf bank_mask:0xf")
    A("v_mov_b32 v28, v26"); A("v_mov_b32 v29, v27"); A("s_nop 0")
    A("v_permlane16_swap_b32 v26, v28"); A("v_permlane16_swap_b32 v27, v29"); A("s_nop 0")
    A("v_add_f32 v26, v26, v28"); A("v_add_f32 v27, v27, v29")
    A("v_mov_b32 v28, v26"); A("v_mov_b32 v29, v27"); A("s_nop 0")
    A("v_permlane32_swap_b32 v26, v28"); A("v_permlane32_swap_b32 v27, v29"); A("s_nop 0")
    A("v_add_f32 v26, v26, v28"); A("v_add_f32 v27, v27, v29")
    A("ds_write_b64 v25, v[26:27]")
    A("s_waitcnt lgkmcnt(0)")
    A("s_barrier")
    for w_ in range(4): A(f"ds_read_b64 {v(32+2*w_,2)}, v24 offset:{64*w_}")
    A("s_waitcnt lgkmcnt(0)")
    A("v_pk_add_f32 v[32:33], v[32:33], v[34:35]"); A("v_pk_add_f32 v[36:37], v[36:37], v[38:39]")
    A("v_pk_add_f32 v[32:33], v[32:33], v[36:37]")
    A(f"v_mul_f32 v32, {fbits(1.0/1024)}, v32")
    A(f"v_mov_b32 v30, {fbits(1e-5)}")
    A(f"v_fmac_f32 v30, {fbits(1.0/1024)}, v33")
    A("v_fma_f32 v30, -v32, v32, v30")
    A(f"v_max_f32 v30, {fbits(1e-5)}, v30")
    A("v_rsq_f32 v30, v30"); A("s_nop 0")
    A("v_mul_f32 v32, -v32, v30"); A("v_mov_b32 v31, v30"); A("v_mov_b32 v33, v32")
    for i in range(16): A(f"v_pk_fma_f32 {v(64+2*i,2)}, {v(64+2*i,2)}, v[30:31], v[32:33]")
    for i in range(16): A(f"v_cvt_pk_bf16_f32 {v(40+i)}, {v(64+2*i)}, {v(65+2*i)}")
    A("v_lshlrev_b32 v24, 4, v1")
    A(f"s_lshl_b32 s{S_T0}, s{S_WV}, 12")
    A(f"v_add_u32 v24, s{S_T0}, v24")
    A(f"s_mul_i32 s{S_T1}, s2, {XN_OCT}")
    for i in range(4):
        A(f"buffer_store_dwordx4 {v(40+4*i,4)}, v24, s[{S_X}:{S_X+3}], s{S_T1} offen offset:{i*1024} sc1")
    if zero_acc:
        for r in list(range(64, 256)) + list(range(32, 40)): A(f"v_mov_b32 {v(r)}, 0")
    if pre_signal: pre_signal()
    stamp(A, 'ln_stored')
    A("s_waitcnt vmcnt(0)")
    A("s_barrier")
    stamp(A, 'ln_drained')
    if zero_acc:
        for r in range(40, 64): A(f"v_mov_b32 {v(r)}, 0")
    A(f"s_cmp_eq_u32 s{S_WV}, 0")
    A(f"s_cbranch_scc0 L_l1_nosig{tag}")
    A(f"s_lshr_b32 s{S_T0}, s2, 5"); A(f"s_lshl_b32 s{S_T0}, s{S_T0}, 5")
    A("v_mov_b32 v24, 1")
    A("s_mov_b64 s[44:45], exec"); A("s_mov_b64 exec, 1")
    A(f"buffer_atomic_add v24, off, s[{S_D}:{S_D+3}], s{S_T0}")
    A("s_mov_b64 exec, s[44:45]")
    A.label(f"L_l1_nosig{tag}")

S_HSIG = 100
def gen_l1(name, A=None, end=None):
    PD = opt("l1_pd", 3); XD = opt("l1_xd", 3)
    fin = f"L_{name}_fin"
    A("s_cmp_ge_u32 s2, 256")
    A(f"s_cbranch_scc1 {end}")
    stamp(A, 0)
    A(f"s_load_dwordx2 s[4:5], s[0:1], {KARG['wqkv']}")
    A(f"s_load_dwordx2 s[6:7], s[0:1], {KARG['w1']}")
    A(f"s_load_dwordx2 s[{S_WS}:{S_WS+1}], s[0:1], {KARG['ws']}")
    A(f"s_load_dwordx2 s[44:45], s[0:1], {KARG['x']}")
    A(f"s_load_dwordx2 s[46:47], s[0:1], {KARG['dbg']}")
    A("v_mov_b32 v2, v0")
    A("v_and_b32 v1, 63, v0")
    A("v_lshrrev_b32 v3, 6, v0")
    A("s_and_b32 s3, s2, 7")
    A(f"v_readfirstlane_b32 s{S_WV}, v3")
    A(f"s_lshr_b32 s{S_SLOT}, s2, 3")
    A("s_and_b32 s48, s3, 1"); A("s_lshl_b32 s48, s48, 2")
    A(f"s_and_b32 s{S_T0}, s{S_SLOT}, 3")
    A(f"s_add_u32 s{S_MT}, s48, s{S_T0}")
    A("s_lshr_b32 s3, s3, 1"); A("s_lshl_b32 s3, s3, 2")
    A(f"s_lshr_b32 s{S_T0}, s{S_SLOT}, 2")
    A(f"s_and_b32 s{S_T1}, s{S_T0}, 3"); A(f"s_add_u32 s3, s3, s{S_T1}")
    A(f"s_lshr_b32 s{S_T0}, s{S_T0}, 2"); A(f"s_lshl_b32 s{S_T0}, s{S_T0}, 4")
    A(f"s_add_u32 s3, s3, s{S_T0}")
    A(f"s_mov_b32 s{S_NT}, s3")
    A(f"s_lshl_b32 s{S_TOK}, s{S_MT}, 8")
    A(f"s_lshl_b32 s{S_T0}, s{S_WV}, 6")
    A(f"s_add_u32 s{S_TOK}, s{S_TOK}, s{S_T0}")
    A("s_waitcnt lgkmcnt(0)")
    srd(A, S_N, "s44", "s45", 4 * MB)
    srd(A, S_D, "s46", "s47", 256)
    ln_loads(A)
    A(f"s_add_u32 s44, s{S_WS}, {XN_OFF}"); A(f"s_addc_u32 s45, s{S_WS+1}, 0")
    srd(A, S_X, "s44", "s45", 256 * XN_OCT)
    A("s_cmp_lt_u32 s3, 16")
    A(f"s_cbranch_scc1 L_{name}_qkv")
    A(f"s_mov_b32 s{S_TYPE}, 2")
    A("s_sub_u32 s3, s3, 16")
    A(f"s_mul_i32 s{S_BLK0}, s3, 7")
    A(f"s_mov_b32 s{S_LDW}, 7168")
    A("s_mov_b32 s4, s6"); A("s_mov_b32 s5, s7")
    A(f"s_mov_b32 s{S_T1}, {1024 * 7168}")
    A("s_movk_i32 s59, 28")
    A(f"s_branch L_{name}_common")
    A.label(f"L_{name}_qkv")
    A(f"s_mov_b32 s{S_LDW}, 6144")
    A(f"s_mov_b32 s{S_T1}, {1024 * 6144}")
    A(f"s_mul_i32 s{S_BLK0}, s3, 6")
    A("s_movk_i32 s59, 24")
    A("s_cmp_lt_u32 s3, 10"); A(f"s_cselect_b32 s{S_TYPE}, 0, 1")
    A("s_cmp_eq_u32 s3, 10"); A(f"s_cselect_b32 s{S_TYPE}, 3, s{S_TYPE}")
    A.label(f"L_{name}_common")
    A(f"s_lshl_b32 s{S_T0}, s{S_BLK0}, 6")
    A(f"s_add_u32 s4, s4, s{S_T0}")
    A("s_addc_u32 s5, s5, 0")
    A(f"s_sub_u32 s{S_T1}, s{S_T1}, s{S_T0}")
    srd(A, S_W, "s4", "s5", f"s{S_T1}")
    A(f"s_lshl_b32 s{S_STG}, s{S_LDW}, 6")
    A(f"s_lshl_b32 s{S_T0}, s{S_WV}, 4")
    A(f"s_movk_i32 s{S_T2}, 2341")
    for i in range(7):
        A(f"v_add_u32 v3, {64 * i}, v1")
        A(f"v_mul_u32_u24 v4, s{S_T2}, v3")
        A("v_lshrrev_b32 v4, 16, v4")
        A("v_mul_u32_u24 v6, 28, v4")
        A("v_sub_u32 v6, v3, v6")
        A("v_lshrrev_b32 v7, 3, v4")
        A("v_lshlrev_b32 v7, 1, v7")
        A("v_xor_b32 v6, v6, v7")
        A(f"v_add_u32 v4, s{S_T0}, v4")
        A(f"v_mul_lo_u32 v4, v4, s{S_LDW}")
        A(f"v_lshl_add_u32 v4, v6, 4, v4")
        if i & 3: A(f"v_subrev_u32 v4, {(i & 3) * 1024}, v4")
        A("v_cmp_gt_u32 vcc, s59, v6"); A("v_mov_b32 v7, 0x7ffff000"); A("s_nop 0")
        A(f"v_cndmask_b32 {v(10 + i)}, v7, v4, vcc")
    A(f"s_mul_i32 s{S_M0A}, s{S_WV}, {16 * PITCH}")
    prol = []
    def dma_p(i, base):
        return f"buffer_load_dwordx4 {v(base + i)}, s[{S_W}:{S_W+3}], s{S_WOFF} offen offset:{(i & 3) * 1024} lds"
    def stage_dma(st, lo, hi, base):
        for i in range(lo, hi):
            if i == 0:
                A(f"s_mul_i32 s{S_WOFF}, s{S_STG}, {st}")
                A(f"s_add_u32 s{S_M0CUR}, s{S_M0A}, {(st & 3) * SLOT}")
                A(f"s_mov_b32 m0, s{S_M0CUR}"); A("s_nop 0")
            if i == 4:
                for z in w_hi(): A(z)
                A("s_nop 0")
            A(dma_p(i, base)); prol.append(('W', st, i))
    NPRE = opt("l1_npre", 0)
    for st in range(NPRE):
        stage_dma(st, 0, 7 if st < PD - 1 else 4, 10)
    ntouch = len(prol) - 7
    def zero_flags():
        A("s_cmp_lt_u32 s2, 8")
        A(f"s_cbranch_scc0 L_{name}_nz2")
        A(f"s_add_u32 s44, s{S_WS}, {FLAGS_OFF}"); A(f"s_addc_u32 s45, s{S_WS+1}, 0")
        srd(A, S_N, "s44", "s45", NFLAGS * 128)
        A("v_mov_b32 v20, 0"); A("v_mov_b32 v21, 0"); A("v_mov_b32 v22, 0"); A("v_mov_b32 v23, 0")
        A("v_lshlrev_b32 v9, 4, v2")
        A(f"s_mul_i32 s{S_T1}, s2, {49 * 128}")
        A(f"buffer_store_dwordx4 v[20:23], v9, s[{S_N}:{S_N+3}], s{S_T1} offen sc1")
        A(f"s_add_u32 s{S_T1}, s{S_T1}, 4096")
        A("v_cmp_gt_u32 vcc, 136, v2")
        A("s_and_saveexec_b64 s[44:45], vcc")
        A(f"s_cbranch_execz L_{name}_nz")
        A(f"buffer_store_dwordx4 v[20:23], v9, s[{S_N}:{S_N+3}], s{S_T1} offen sc1")
        A.label(f"L_{name}_nz")
        A("s_mov_b64 exec, s[44:45]")
        A.label(f"L_{name}_nz2")
    ln_compute(A, 7 + ntouch, 't', True, zero_flags)
    prol.clear()
    for st in range(NPRE, PD):
        stage_dma(st, 0, 7 if st < PD - 1 else 4, 10)
    T3 = opt("l1_touch3", 0)
    if T3:
        A(f"s_cmp_eq_u32 s{S_WV}, 0"); A(f"s_cbranch_scc1 L_{name}_nt")
        A(f"s_cmp_eq_u32 s{S_TYPE}, 2"); A(f"s_cbranch_scc1 L_{name}_nt")
        A(f"s_load_dwordx2 s[44:45], s[0:1], {KARG['w1']}")
        A("v_lshrrev_b32 v3, 2, v1"); A("v_lshlrev_b32 v3, 3, v3"); A(f"v_add_u32 v3, s{S_MT}, v3")
        A("v_and_b32 v4, 3, v1"); A("v_lshlrev_b32 v4, 7, v4")
        A(f"s_sub_u32 s{S_T0}, s{S_WV}, 1")
        A(f"s_mul_i32 s{S_T1}, s{S_NT}, 448")
        A("s_waitcnt lgkmcnt(0)")
        A(f"s_add_u32 s44, s44, s{S_T1}"); A("s_addc_u32 s45, s45, 0"); A(f"s_sub_u32 s{S_T1}, {1024 * 7168}, s{S_T1}")
        srd(A, S_O, "s44", "s45", f"s{S_T1}")
        A("v_mul_u32_u24 v5, 7168, v3"); A("v_add_u32 v5, v5, v4")
        A(f"s_mul_i32 s{S_T2}, s{S_T0}, {128 * 7168}")
        for k in range(3):
            A(f"buffer_load_dword v21, v5, s[{S_O}:{S_O+3}], s{S_T2} offen")
            if k < 2: A(f"s_add_u32 s{S_T2}, s{S_T2}, {3 * 128 * 7168}")
        if T3 >= 2:
            A("v_mul_u32_u24 v5, 6144, v3"); A("v_add_u32 v5, v5, v4")
            A(f"s_mul_i32 s{S_T2}, s{S_T0}, {128 * 6144}")
            for k in range(3):
                A(f"buffer_load_dword v21, v5, s[{S_W}:{S_W+3}], s{S_T2} offen")
                if k < 2: A(f"s_add_u32 s{S_T2}, s{S_T2}, {3 * 128 * 6144}")
        A.label(f"L_{name}_nt")
    A("v_and_b32 v3, 15, v1"); A("v_lshrrev_b32 v4, 4, v1")
    A("v_lshrrev_b32 v5, 2, v3"); A("v_lshl_add_u32 v5, v4, 3, v5"); A(f"v_mul_u32_u24 v5, {PITCH}, v5")
    A("v_and_b32 v6, 3, v3"); A("v_lshl_add_u32 v5, v6, 3, v5")
    A("v_and_b32 v6, 1, v4"); A("v_lshlrev_b32 v6, 5, v6")
    A(f"v_add_u32 {v(V_TRE)}, v5, v6"); A(f"v_sub_u32 {v(V_TRO)}, v5, v6")
    A(f"v_lshrrev_b32 v5, 3, v3"); A(f"v_mul_u32_u24 v5, {XN_OCT}, v5")
    A("v_lshl_add_u32 v5, v4, 7, v5"); A("v_and_b32 v6, 7, v3")
    A(f"v_lshl_add_u32 {v(V_X)}, v6, 4, v5")
    A("v_mov_b32 v17, v1")
    for i in range(7): A(f"v_mov_b32 {v(V_DMA + i)}, {v(10 + i)}")
    A(f"s_lshr_b32 s{S_XO}, s{S_TOK}, 3"); A(f"s_mul_i32 s{S_XO}, s{S_XO}, {XN_OCT}")
    for tb in range(1, 4): A(f"s_add_u32 s{S_XO + tb}, s{S_XO}, {tb * 2 * XN_OCT}")
    A(f"s_cmp_eq_u32 s{S_WV}, 0")
    A(f"s_cbranch_scc0 L_{name}_got")
    A(f"s_lshl_b32 s{S_T0}, s{S_MT}, 5")
    A(f"v_mov_b32 v19, s{S_T0}"); A("v_mov_b32 v20, 0"); A("v_cmp_eq_u32 vcc, 0, v17"); A("s_nop 1"); A("v_cndmask_b32 v19, v19, v20, vcc")
    A(f"s_mov_b32 s{S_T1}, 0x8000")
    if opt('lnsleep0', 0): A(f"s_sleep {opt('lnsleep0', 0)}")
    A.label(f"L_{name}_poll")
    A(f"buffer_load_dword v18, v19, s[{S_D}:{S_D+3}], 0 offen sc1")
    A("s_waitcnt vmcnt(0)")
    A("v_cmp_le_u32 vcc, 32, v18")
    A(f"s_sub_u32 s{S_T1}, s{S_T1}, 1")
    A(f"s_cmp_eq_u32 s{S_T1}, 0")
    A(f"s_cbranch_scc1 L_{name}_got")
    A("s_nop 1")
    A("s_cmp_eq_u64 vcc, -1")
    A(f"s_cbranch_scc1 L_{name}_got")
    A(f"s_sleep {opt('lnsleep', 3)}")
    A(f"s_branch L_{name}_poll")
    A.label(f"L_{name}_got")
    A("s_waitcnt vmcnt(0)")
    A("s_barrier")
    stamp(A, 'ln_got')
    prol.clear()
    for s_ in range(XD):
        for tb in range(4):
            A(x_load(s_ % 4, tb, (s_ % 4) * 512))
    A(f"s_movk_i32 s{S_IT}, 8")
    sc = " sc1"
    c = (32 ** -0.5) * math.log2(math.e)
    def start_loop(tag, ncb, swap):
        for r in tr_main(0, ncb): A(r)
        A("s_waitcnt vmcnt(0)")
        stamp(A, 1)
        gen_mainloop(A, name + tag, ncb, swap, PD, XD, prol)
        A("s_barrier")
        stamp(A, 2)
        A("v_and_b32 v3, 15, v17"); A("v_lshrrev_b32 v4, 4, v17")
        A("v_lshrrev_b32 v7, 1, v4"); A("v_lshlrev_b32 v7, 10, v7")
        A("v_and_b32 v8, 1, v4"); A("v_lshl_add_u32 v7, v8, 9, v7")
    def qkv_srd():
        A(f"s_add_u32 s4, s{S_WS}, {QKV_OFF}"); A(f"s_addc_u32 s5, s{S_WS+1}, 0")
        srd(A, S_O, "s4", "s5", 96 * QKV_BLK)
    def qk_epi(ps):
        A(f"s_add_u32 s4, s{S_WS}, {NRM_OFF}"); A(f"s_addc_u32 s5, s{S_WS+1}, 0")
        srd(A, S_N, "s4", "s5", 512 * 1024)
        A("v_lshl_add_u32 v8, v3, 4, v7")
        A("v_lshrrev_b32 v9, 3, v3"); A("v_lshlrev_b32 v9, 8, v9")
        A("v_and_b32 v10, 7, v3"); A("v_lshl_add_u32 v9, v10, 4, v9")
        A("v_add_u32 v9, v9, v7")
        A("v_lshlrev_b32 v10, 2, v17")
        A("v_and_b32 v11, 1, v4"); A("v_cmp_eq_u32 s[48:49], 1, v11")
        A("v_cmp_le_u32 s[60:61], 2, v4")
        N0 = 24
        for p in ps:
            A(f"s_add_u32 s{S_T0}, s{S_BLK0}, {p}")
            A(f"s_cmp_lt_u32 s{S_T0}, 32")
            A(f"s_cselect_b32 s44, {fbits(c)}, 1.0")
            A(f"s_cselect_b32 s46, 0, 1")
            A("s_mov_b32 s45, s44")
            A(f"s_mul_i32 s{S_T1}, s{S_T0}, {QKV_BLK}")
            A(f"s_lshl_b32 s{S_T2}, s{S_TOK}, 6")
            A(f"s_add_u32 s{S_T1}, s{S_T1}, s{S_T2}")
            A(f"s_lshl_b32 s{S_T2}, s{S_T0}, 13")
            A(f"s_lshl_b32 s{S_T3}, s{S_TOK}, 2")
            A(f"s_add_u32 s{S_T2}, s{S_T2}, s{S_T3}")
            A(f"s_cmp_eq_u32 s46, 1")
            A("s_cselect_b64 vcc, -1, 0")
            A("s_lshr_b32 s47, 256, s46")
            A(f"s_add_u32 s47, s47, s{S_T1}")
            A("v_cndmask_b32 v11, v8, v9, vcc")
            EF = [(acc(2 * p, tb), acc(2 * p + 1, tb)) for tb in range(4)]
            for (E, F) in EF:
                for R in (E, E + 2, F, F + 2): A(f"v_pk_mul_f32 {v(R, 2)}, {v(R, 2)}, s[44:45]")
            for tb, (E, F) in enumerate(EF): A(f"v_pk_mul_f32 {v(N0 + 2 * tb, 2)}, {v(E, 2)}, {v(E, 2)}")
            for k in range(3):
                for tb, (E, F) in enumerate(EF):
                    R = (E + 2, F, F + 2)[k]
                    A(f"v_pk_fma_f32 {v(N0 + 2 * tb, 2)}, {v(R, 2)}, {v(R, 2)}, {v(N0 + 2 * tb, 2)}")
            for tb, (E, F) in enumerate(EF):
                A(f"v_cvt_pk_bf16_f32 {v(E)}, {v(E)}, {v(E + 1)}")
                A(f"v_cvt_pk_bf16_f32 {v(E + 1)}, {v(E + 2)}, {v(E + 3)}")
                A(f"v_cvt_pk_bf16_f32 {v(E + 2)}, {v(F)}, {v(F + 1)}")
                A(f"v_cvt_pk_bf16_f32 {v(E + 3)}, {v(F + 2)}, {v(F + 3)}")
                so = "s47" if tb & 1 else f"s{S_T1}"
                A(f"buffer_store_dwordx4 {v(E, 4)}, v11, s[{S_O}:{S_O+3}], {so} offen offset:{(tb >> 1) * 2048}{sc}")
            for tb in range(4): A(f"v_add_f32 {v(N0 + 2 * tb)}, {v(N0 + 2 * tb)}, {v(N0 + 2 * tb + 1)}")
            for tb in range(4): A(f"v_mov_b32 {v(20 + tb)}, {v(N0 + 2 * tb)}")
            for tb in range(4): A(f"v_permlane32_swap_b32 {v(N0 + 2 * tb)}, {v(20 + tb)}")
            for tb in range(4): A(f"v_add_f32 {v(N0 + 2 * tb)}, {v(N0 + 2 * tb)}, {v(20 + tb)}")
            for tb in range(4): A(f"v_mov_b32 {v(20 + tb)}, {v(N0 + 2 * tb)}")
            for tb in range(4): A(f"v_permlane16_swap_b32 {v(N0 + 2 * tb)}, {v(20 + tb)}")
            for tb in range(4): A(f"v_add_f32 {v(N0 + 2 * tb)}, {v(N0 + 2 * tb)}, {v(20 + tb)}")
            A(f"v_cndmask_b32 {v(N0)}, {v(N0)}, {v(N0 + 2)}, s[48:49]")
            A(f"v_cndmask_b32 {v(N0 + 4)}, {v(N0 + 4)}, {v(N0 + 6)}, s[48:49]")
            A(f"v_cndmask_b32 {v(N0)}, {v(N0)}, {v(N0 + 4)}, s[60:61]")
            A(f"buffer_store_dword {v(N0)}, v10, s[{S_N}:{S_N+3}], s{S_T2} offen sc1")
    def v_epi(cbs):
        A("v_lshl_add_u32 v6, v3, 4, v7")
        A(f"s_mul_i32 s{S_T3}, s{S_BLK0}, {QKV_BLK}")
        A(f"s_lshl_b32 s47, s{S_TOK}, 6")
        A(f"s_add_u32 s{S_T3}, s{S_T3}, s47")
        for kb in range(2):
            for cb in cbs:
                E = acc(cb, 2 * kb); F = acc(cb, 2 * kb + 1)
                A(f"v_cvt_pk_bf16_f32 {v(E)}, {v(E)}, {v(E + 1)}")
                A(f"v_cvt_pk_bf16_f32 {v(E + 1)}, {v(E + 2)}, {v(E + 3)}")
                A(f"v_cvt_pk_bf16_f32 {v(E + 2)}, {v(F)}, {v(F + 1)}")
                A(f"v_cvt_pk_bf16_f32 {v(E + 3)}, {v(F + 2)}, {v(F + 3)}")
                A(f"s_add_u32 s47, s{S_T3}, {(cb >> 1) * QKV_BLK + kb * 2048}")
                A(f"buffer_store_dwordx4 {v(E, 4)}, v6, s[{S_O}:{S_O+3}], s47 offen offset:{(cb & 1) * 256}{sc}")
    A(f"s_cmp_eq_u32 s{S_TYPE}, 2"); A(f"s_cbranch_scc1 L_{name}_hpath")
    A(f"s_cmp_eq_u32 s{S_TYPE}, 1"); A(f"s_cbranch_scc1 L_{name}_vpath")
    A(f"s_cmp_eq_u32 s{S_TYPE}, 3"); A(f"s_cbranch_scc1 L_{name}_mpath")
    start_loop("_n", 12, lambda cb: False)
    qkv_srd(); qk_epi(range(6))
    A(f"s_branch L_{name}_sigqkv")
    A.label(f"L_{name}_mpath")
    start_loop("_m", 12, lambda cb: cb >= 8)
    qkv_srd(); v_epi(range(8, 12)); qk_epi(range(4))
    A(f"s_branch L_{name}_sigqkv")
    A.label(f"L_{name}_vpath")
    start_loop("_v", 12, lambda cb: True)
    qkv_srd(); v_epi(range(12))
    A(f"s_branch L_{name}_sigqkv")
    A.label(f"L_{name}_hpath")
    start_loop("_h", 14, lambda cb: False)
    A(f"s_add_u32 s4, s{S_WS}, {AH_OFF}"); A(f"s_addc_u32 s5, s{S_WS+1}, 0")
    srd(A, S_O, "s4", "s5", 64 * AH_TB)
    A("v_lshl_add_u32 v7, v3, 4, v7")
    A(f"s_lshr_b32 s{S_T1}, s{S_TOK}, 5")
    A(f"s_mul_i32 s{S_T1}, s{S_T1}, {AH_TB}")
    A(f"s_lshl_b32 s{S_T2}, s{S_BLK0}, 11")
    A(f"s_add_u32 s{S_T1}, s{S_T1}, s{S_T2}")
    A(f"s_add_u32 s{S_T1}, s{S_T1}, {32 * 2048}")
    A(f"s_mov_b32 s44, {fbits(-math.log2(math.e))}"); A("s_mov_b32 s45, s44")
    A("s_mov_b32 s46, 1.0"); A("s_mov_b32 s47, 1.0")
    TP = [8, 10, 12, 14]
    for p in range(7):
        for tb in range(4):
            E = acc(2 * p, tb); F = acc(2 * p + 1, tb)
            prs = [E, E + 2, F, F + 2]
            for k, R in enumerate(prs): A(f"v_pk_mul_f32 {v(TP[k], 2)}, {v(R, 2)}, s[44:45]")
            for k in range(4):
                A(f"v_exp_f32 {v(TP[k])}, {v(TP[k])}"); A(f"v_exp_f32 {v(TP[k] + 1)}, {v(TP[k] + 1)}")
            for k in range(4): A(f"v_pk_add_f32 {v(TP[k], 2)}, {v(TP[k], 2)}, s[46:47]")
            for k in range(4):
                A(f"v_rcp_f32 {v(TP[k])}, {v(TP[k])}"); A(f"v_rcp_f32 {v(TP[k] + 1)}, {v(TP[k] + 1)}")
            if not ((4 * p + tb) & 1 and opt("hdefer", 0)):
                A(f"s_add_u32 s{S_T2}, s{S_T1}, {(tb >> 1) * AH_TB + p * 2048 + (tb & 1) * 256}")
            for k, R in enumerate(prs): A(f"v_pk_mul_f32 {v(R, 2)}, {v(R, 2)}, {v(TP[k], 2)}")
            A(f"v_cvt_pk_bf16_f32 {v(E)}, {v(E)}, {v(E + 1)}")
            A(f"v_cvt_pk_bf16_f32 {v(E + 1)}, {v(E + 2)}, {v(E + 3)}")
            A(f"v_cvt_pk_bf16_f32 {v(E + 2)}, {v(F)}, {v(F + 1)}")
            A(f"v_cvt_pk_bf16_f32 {v(E + 3)}, {v(F + 2)}, {v(F + 3)}")
            q = 4 * p + tb
            if q & 1 and opt("hdefer", 0):
                for r in range(4): A(f"v_accvgpr_write_b32 {a(128 + 4 * (q >> 1) + r)}, {v(E + r)}")
            else:
                A(f"buffer_store_dwordx4 {v(E, 4)}, v7, s[{S_O}:{S_O+3}], s{S_T2} offen{sc}")
    A(f"s_mov_b32 s55, s{S_T1}")
    A(f"s_mov_b32 s{S_HSIG}, s{S_MT}")
    A(f"s_branch {fin}")
    A.label(f"L_{name}_sigqkv")
    A(f"s_add_u32 s4, s{S_WS}, {FLAGS_OFF + PRIV_LINE * 128}"); A(f"s_addc_u32 s5, s{S_WS+1}, 0")
    srd(A, S_N, "s4", "s5", 256 * 128)
    A(f"s_mul_i32 s{S_T0}, s{S_NT}, 6")
    A("v_lshrrev_b32 v3, 3, v17"); A(f"v_add_u32 v3, s{S_T0}, v3")
    A("v_cmp_gt_u32 vcc, 48, v17"); A("s_nop 3"); A("s_mov_b64 s[44:45], vcc")
    A("v_and_b32 v3, 31, v3")
    A("v_lshrrev_b32 v4, 2, v3")
    A("v_and_b32 v3, 3, v3"); A("v_lshlrev_b32 v3, 3, v3"); A("v_and_b32 v5, 7, v17"); A("v_or_b32 v3, v3, v5")
    A("v_lshl_add_u32 v3, v3, 3, v4"); A("v_lshlrev_b32 v3, 7, v3")
    A("v_mov_b32 v4, 1")
    A("s_waitcnt vmcnt(0)")
    A("s_barrier")
    A(f"s_cmp_eq_u32 s{S_WV}, 0")
    A(f"s_cbranch_scc0 L_{name}_nosq")
    A("s_mov_b64 exec, s[44:45]")
    A(f"s_cbranch_execz L_{name}_nosq2")
    A(f"buffer_atomic_add v4, v3, s[{S_N}:{S_N+3}], 0 offen")
    A.label(f"L_{name}_nosq2")
    A("s_mov_b64 exec, -1")
    A.label(f"L_{name}_nosq")
    A(f"s_mov_b32 s{S_HSIG}, -1")
    A(f"s_load_dwordx2 s[4:5], s[0:1], {KARG['wo']}")
    A(f"s_load_dwordx2 s[6:7], s[0:1], {KARG['w2']}")
    A(f"s_lshl_b32 s{S_T0}, s{S_NT}, 3"); A(f"s_add_u32 s{S_T0}, s{S_T0}, s{S_MT}")
    A(f"s_lshl_b32 s{S_T1}, s{S_WV}, 6"); A(f"v_add_u32 v9, s{S_T1}, v17"); A("v_lshlrev_b32 v9, 7, v9")
    A("s_waitcnt lgkmcnt(0)")
    A(f"s_mul_i32 s{S_T1}, s{S_T0}, 16384"); A(f"s_add_u32 s4, s4, s{S_T1}"); A("s_addc_u32 s5, s5, 0")
    srd(A, S_W, "s4", "s5", 16384)
    A(f"buffer_load_dword v10, v9, s[{S_W}:{S_W+3}], 0 offen")
    A(f"s_mul_i32 s{S_T1}, s{S_T0}, 57344"); A(f"s_add_u32 s6, s6, s{S_T1}"); A("s_addc_u32 s7, s7, 0")
    srd(A, S_W, "s6", "s7", 57344)
    A(f"buffer_load_dword v10, v9, s[{S_W}:{S_W+3}], 0 offen")
    A(f"s_mov_b32 s{S_T1}, 32768")
    A(f"buffer_load_dword v10, v9, s[{S_W}:{S_W+3}], s{S_T1} offen")
    A.label(fin)
    stamp(A, 'epi_end')
```

```python
from asmlib import *
from layout import *
from vmsim import VmSim
import math

R = 8
V_L16 = 2
Q = {'a': 8, 'b': 16}
S = {'a': 32, 'b': 48}
P = {'a': 64, 'b': 72}
O = {'a': 80, 'b': 96}
L = {'a': 112, 'b': 128}
SEL = 144
M = {'a': 148, 'b': 149}
LS = {'a': 150, 'b': 151}
def kreg(slot, j): return slot * 16 + j * 4
def vreg(slot, j): return slot * 16 + 8 + j * 4
ACC = 152
def gacc(cb): return ACC + cb * 16
V_TR = 216
V_WD = 232
V_F = 221
V_FA = 222
NV = 232
def areg(slot, j): return (128 + (slot * 2 + j) * 4) if slot < 8 else ((slot - 8) * 2 + j) * 4
def wreg(buf, j, cb): return 192 + (buf * 8 + j * 4 + cb) * 4
WSLOT = 32768
LDS_BYTES = 4 * WSLOT
S_K = 8; S_V = 12; S_Q = 16; S_O = 20; S_N = 24
S_KOFF = 28; S_IT = 29; S_WV = 30; S_HEAD = 31; S_TB = 32
S_WS = 34
S_GW = 40; S_GA = 44; S_F = 48
S_WO = 52
S_WOFF = 56; S_AOFF = 57; S_M0 = 58; S_WST = 59; S_AST = 60; S_HALF = 61; S_MT = 62; S_NT = 63
S_WSW = 88; S_ASW = 89; S_AEND = 90; S_FIRST = 91; S_GOTP = 92; S_TD = 93; S_NIT = 94
S_QT = 33

def qk(x, slot, j):
    c = "0" if j == 0 else v(S[x], 16)
    return f"v_mfma_f32_32x32x16_bf16 {v(S[x],16)}, {a(kreg(slot, j),4)}, {v(Q[x]+4*j,4)}, {c}"
def pv(x, slot, j):
    return f"v_mfma_f32_32x32x16_bf16 {v(O[x],16)}, {a(vreg(slot, j),4)}, {v(P[x]+4*j,4)}, {v(O[x],16)}"
def rs(x, j):
    if opt("rs32", 0):
        return f"v_mfma_f32_32x32x16_bf16 {v(L[x],16)}, {v(SEL,4)}, {v(P[x]+4*j,4)}, {v(L[x],16)}"
    return f"v_mfma_f32_16x16x32_bf16 {v(L[x],4)}, {v(SEL,4)}, {v(P[x]+4*j,4)}, {v(L[x],4)}"
def kload(slot, j, off, so=None):
    return f"buffer_load_dwordx4 {a(kreg(slot, j),4)}, {v(V_L16)}, s[{S_K}:{S_K+3}], s{so or S_KOFF} offen offset:{off + j*1024} sc1"
def vload(slot, j, off, so=None):
    return f"buffer_load_dwordx4 {a(vreg(slot, j),4)}, {v(V_L16)}, s[{S_V}:{S_V+3}], s{so or S_KOFF} offen offset:{off + j*1024} sc1"

def half(A, x, mf, extra):
    e = [f"v_exp_f32 {v(S[x]+i)}, {v(S[x]+i)}" for i in range(16)]
    c = [f"v_cvt_pk_bf16_f32 {v(P[x]+i)}, {v(S[x]+2*i)}, {v(S[x]+2*i+1)}" for i in range(8)]
    seq = [e[0], e[1], e[2], e[3], c[0], e[4], e[5], c[1], e[6], e[7], c[2], e[8], e[9], c[3],
           e[10], e[11], c[4], e[12], e[13], c[5], e[14], e[15], c[6], c[7]]
    mpos = opt("mpos", [0, 3, 8, 12, 17, 21]) if not opt("rs32", 0) else [0, 4, 8, 12, 16, 20]
    k = 0
    for i, ins in enumerate(seq):
        if k < len(mf) and i == mpos[k]:
            A(mf[k]); k += 1
        A(ins)
        for z in extra.get(i, []): A(z)

G16 = lambda: opt("g16", 1)
V_TR16 = 240
V_GA = 248
def wreg16(buf, cb): return 192 + (buf * 8 + cb) * 4
def gacc16(cb, tb): return ACC + (cb * 2 + tb) * 4
def g_tr(n):
    st = (n >> 2) & 1; sub = n & 3
    out = []
    if G16():
        for cb in range(8):
            for h in range(2):
                out.append(f"ds_read_b64_tr_b16 {a(wreg16(n & 1, cb) + 2 * h, 2)}, {v(V_TR16 + cb)} offset:{st * WSLOT + sub * 8192 + h * 4096}")
        return out
    for j in range(2):
        for cb in range(4):
            for h in range(2):
                out.append(f"ds_read_b64_tr_b16 {a(wreg(n & 1, j, cb) + 2 * h, 2)}, {v(V_TR + cb)} offset:{st * WSLOT + sub * 8192 + j * 2048 + h * 4096}")
    return out
def g_aload(slot, j, imm):
    if G16():
        return f"buffer_load_dwordx4 {a(areg(slot, j), 4)}, {v(V_GA)}, s[{S_GA}:{S_GA+3}], s{S_AOFF} offen offset:{imm - j * 1024 + j * 256} sc1"
    return f"buffer_load_dwordx4 {a(areg(slot, j), 4)}, {v(V_L16)}, s[{S_GA}:{S_GA+3}], s{S_AOFF} offen offset:{imm} sc1"
def g_dma(i):
    pre = [f"s_add_u32 m0, s{S_M0}, 4096", "s_nop 0"] if i == 4 else []
    return pre + [f"buffer_load_dwordx4 {v(V_WD + i)}, s[{S_GW}:{S_GW+3}], s{S_WOFF} offen offset:{(i & 3) * 1024} lds"]
def g_next_stage(switch=False):
    out = [f"s_add_u32 s{S_WOFF}, s{S_WOFF}, {128 * 2048}"]
    if switch:
        out += [f"s_cmp_eq_u32 s{S_IT}, 2",
                f"s_cselect_b32 s{S_WOFF}, s{S_WSW}, s{S_WOFF}",
                f"s_cselect_b32 s{S_GW}, s{S_WO}, s{S_GW}",
                f"s_cselect_b32 s{S_GW+1}, s{S_WO+1}, s{S_GW+1}",
                f"s_cselect_b32 s{S_GW+2}, s{S_WO+2}, s{S_GW+2}"]
    out += [f"s_add_u32 s{S_M0}, s{S_M0}, {WSLOT}",
            f"s_and_b32 s{S_M0}, s{S_M0}, {4 * WSLOT - 1}",
            f"s_mov_b32 m0, s{S_M0}", "s_nop 0"]
    return out
def g_flagload():
    return f"buffer_load_dword {v(V_F)}, {v(V_FA)}, s[{S_F}:{S_F+3}], 0 offen sc1"

def spin(A, name, tag, lane, target, st1, st2):
    A(f"s_mov_b32 s{st1}, 0x8000")
    A.label(f"L_{name}_spin{tag}")
    A(g_flagload())
    A("s_waitcnt vmcnt(0)")
    A(f"v_readlane_b32 s{st2}, {v(V_F)}, {lane}")
    A(f"s_sub_u32 s{st1}, s{st1}, 1")
    A(f"s_cmp_eq_u32 s{st1}, 0")
    A(f"s_cbranch_scc1 L_{name}_spun{tag}")
    A(f"s_cmp_ge_u32 s{st2}, {target}")
    A(f"s_cbranch_scc1 L_{name}_spun{tag}")
    A("s_sleep 4")
    A(f"s_branch L_{name}_spin{tag}")
    A.label(f"L_{name}_spun{tag}")

S_HSIG = 100
V_H = 231
V_HA = 230
def gen_l2(name, A):
    PD = 4; XD = 15; NB = 24
    fin = f"L_{name}_fin"
    GS = opt("g_stamps")
    A(f"s_load_dwordx2 s[{S_WS}:{S_WS+1}], s[0:1], {KARG['ws']}")
    A(f"s_load_dwordx2 s[{S_WO}:{S_WO+1}], s[0:1], {KARG['wo']}")
    A(f"s_load_dwordx2 s[4:5], s[0:1], {KARG['w2']}")
    A(f"s_load_dwordx2 s[96:97], s[0:1], {KARG['x']}")
    A(f"s_load_dwordx2 s[98:99], s[0:1], {KARG['out']}")
    A("s_and_b32 s3, s2, 7")
    A("s_lshr_b32 s6, s2, 3")
    A("s_lshl_b32 s7, s3, 2")
    A("s_lshr_b32 s36, s6, 3")
    A(f"s_add_u32 s{S_HEAD}, s7, s36")
    A(f"s_and_b32 s{S_QT}, s6, 7")
    A(f"s_and_b32 s{S_HALF}, s6, 1")
    A("s_lshr_b32 s6, s6, 1")
    A("s_and_b32 s7, s3, 3"); A("s_lshl_b32 s7, s7, 2"); A("s_and_b32 s36, s6, 3")
    A(f"s_add_u32 s{S_MT}, s7, s36")
    A("s_lshr_b32 s7, s3, 2"); A("s_lshl_b32 s7, s7, 2"); A("s_lshr_b32 s36, s6, 2")
    A(f"s_add_u32 s{S_NT}, s7, s36")
    A("v_mbcnt_lo_u32_b32 v1, -1, 0"); A("v_mbcnt_hi_u32_b32 v1, -1, v1")
    A(f"v_lshlrev_b32 {v(V_L16)}, 4, v1")
    A(f"s_lshl_b32 s6, s{S_QT}, 3")
    A(f"s_lshl_b32 s7, s{S_WV}, 1")
    A(f"s_add_u32 s{S_TB}, s6, s7")
    A("s_waitcnt lgkmcnt(0)")
    WS = f"s{S_WS}"; WS1 = f"s{S_WS+1}"
    A(f"s_mul_i32 s6, s{S_HEAD}, {QKV_BLK}")
    A(f"s_add_u32 s36, {WS}, {QKV_OFF}"); A(f"s_addc_u32 s37, {WS1}, 0")
    A("s_add_u32 s36, s36, s6"); A("s_addc_u32 s37, s37, 0")
    srd(A, S_Q, "s36", "s37", 131072)
    A(f"s_add_u32 s36, s36, {32*QKV_BLK}"); A("s_addc_u32 s37, s37, 0")
    srd(A, S_K, "s36", "s37", 131072)
    A(f"s_add_u32 s36, s36, {32*QKV_BLK}"); A("s_addc_u32 s37, s37, 0")
    A("s_sub_u32 s38, s36, 2048"); A("s_subb_u32 s39, s37, 0")
    srd(A, S_V, "s38", "s39", 131072 + 2048)
    A(f"s_add_u32 s36, {WS}, {NRM_OFF}"); A(f"s_addc_u32 s37, {WS1}, 0")
    srd(A, S_N, "s36", "s37", 512*1024)
    A(f"s_lshl_b32 s6, s{S_NT}, 8")
    A(f"s_add_u32 s{S_WO}, s{S_WO}, s6"); A(f"s_addc_u32 s{S_WO+1}, s{S_WO+1}, 0")
    A(f"s_and_b32 s{S_WO+1}, s{S_WO+1}, 0xffff")
    A(f"s_sub_u32 s{S_WO+2}, {1024*2048}, s6")
    A("s_add_u32 s4, s4, s6"); A("s_addc_u32 s5, s5, 0")
    A(f"s_sub_u32 s7, {3584*2048}, s6")
    srd(A, S_GW, "s4", "s5", "s7")
    A(f"s_add_u32 s36, {WS}, {AH_OFF}"); A(f"s_addc_u32 s37, {WS1}, 0")
    A(f"s_lshl_b32 s6, s{S_MT}, 2"); A(f"s_add_u32 s6, s6, s{S_WV}")
    A(f"s_mul_i32 s6, s6, {AH_TB}")
    A("s_add_u32 s36, s36, s6"); A("s_addc_u32 s37, s37, 0")
    srd(A, S_GA, "s36", "s37", AH_TB)
    A(f"s_add_u32 s36, {WS}, {FLAGS_OFF}"); A(f"s_addc_u32 s37, {WS1}, 0")
    srd(A, S_F, "s36", "s37", NFLAGS * 128)
    A(f"s_mul_i32 s6, s{S_HALF}, 56"); A("s_add_u32 s6, s6, 32"); A(f"s_lshl_b32 s{S_AOFF}, s6, 11")
    A(f"s_mul_i32 s{S_WOFF}, s{S_HALF}, {1792*2048}")
    A(f"s_lshl_b32 s{S_WSW}, s{S_HALF}, 20")
    A(f"s_lshl_b32 s{S_ASW}, s{S_HALF}, 15")
    A(f"s_add_u32 s6, s{S_HALF}, 1"); A("s_lshl_b32 s6, s6, 20"); A(f"s_lshl_b32 s7, s{S_NT}, 8")
    A(f"s_sub_u32 s{S_WO+2}, s6, s7")
    A(f"s_lshr_b32 s6, s{S_MT}, 1"); A("s_lshl_b32 s6, s6, 7")
    A(f"s_lshl_b32 s7, s{S_MT}, 3"); A(f"s_add_u32 s7, s7, s{S_NT}"); A("s_add_u32 s7, s7, 8"); A("s_lshl_b32 s7, s7, 7")
    A(f"s_xor_b32 s36, s{S_HALF}, 1"); A("s_lshl_b32 s36, s36, 2"); A("s_add_u32 s7, s7, s36")
    A("v_mov_b32 v5, s7"); A("v_mov_b32 v6, s6"); A("v_cmp_eq_u32 vcc, 0, v1"); A("s_nop 1")
    A(f"v_cndmask_b32 {v(V_FA)}, v5, v6, vcc")
    A("v_lshrrev_b32 v5, 4, v1"); A("v_and_b32 v6, 15, v1")
    A(f"s_lshl_b32 s6, s{S_WV}, 5")
    if G16():
        for i in range(8):
            A(f"v_add_u32 v7, {4 * (i & 1)}, v5"); A("v_lshlrev_b32 v7, 1, v7"); A("v_xor_b32 v7, v7, v6")
            A("v_add_u32 v24, s6, v5"); A("v_lshlrev_b32 v24, 11, v24"); A("v_lshl_add_u32 v24, v7, 4, v24")
            A(f"v_add_u32 {v(V_WD + i)}, {4 * i * 2048 - (i & 3) * 1024}, v24")
        A("v_lshrrev_b32 v7, 2, v6"); A("v_lshl_add_u32 v7, v5, 2, v7")
        A("v_and_b32 v24, 7, v7")
        A("v_lshlrev_b32 v7, 8, v7"); A("v_and_b32 v25, 3, v6"); A("v_lshl_add_u32 v7, v25, 3, v7")
        for cb in range(8):
            A(f"v_xor_b32 v25, {cb}, v24"); A(f"v_lshl_add_u32 {v(V_TR16+cb)}, v25, 5, v7")
        A("v_lshrrev_b32 v7, 1, v5"); A("v_lshlrev_b32 v7, 10, v7"); A("v_and_b32 v24, 1, v5"); A("v_lshl_add_u32 v7, v24, 9, v7")
        A(f"v_lshl_add_u32 {v(V_GA)}, v6, 4, v7")
    else:
        A("v_lshlrev_b32 v7, 2, v5"); A("v_xor_b32 v7, v7, v6")
        A("v_add_u32 v24, s6, v5"); A("v_lshlrev_b32 v24, 11, v24")
        A(f"v_lshl_add_u32 {v(V_WD)}, v7, 4, v24")
        for i in range(1, 8): A(f"v_add_u32 {v(V_WD + i)}, {4 * i * 2048 - (i & 3) * 1024}, {v(V_WD)}")
        A("v_lshrrev_b32 v7, 2, v6")
        A("v_lshrrev_b32 v24, 5, v1"); A("v_lshl_add_u32 v24, v24, 2, v7")
        A("v_lshlrev_b32 v24, 8, v24")
        A("v_and_b32 v25, 1, v5"); A("v_lshl_add_u32 v24, v25, 5, v24")
        A("v_and_b32 v25, 3, v6"); A("v_lshl_add_u32 v24, v25, 3, v24")
        for cb in range(4):
            A(f"v_xor_b32 v25, {cb}, v7"); A(f"v_lshl_add_u32 {v(V_TR+cb)}, v25, 6, v24")
    for x in "ab":
        for r in range(16): A(f"v_mov_b32 {v(O[x]+r)}, 0")
        for r in range(16): A(f"v_mov_b32 {v(L[x]+r)}, 0")
    for r in range(8): A(f"v_mov_b32 {v(P['b']+r)}, 0")
    for r in range(64): A(f"v_mov_b32 {v(ACC+r)}, 0")
    if opt("rs32", 0):
        A("v_and_b32 v5, 31, v1"); A("v_cmp_eq_u32 vcc, 0, v5")
    else:
        A("v_and_b32 v5, 15, v1"); A("v_lshrrev_b32 v6, 4, v1"); A("v_and_b32 v6, 1, v6"); A("v_cmp_eq_u32 vcc, v5, v6")
    A("v_mov_b32 v7, 0x3f803f80")
    A("s_nop 0")
    for r in range(4): A(f"v_cndmask_b32 {v(SEL+r)}, 0, v7, vcc")
    A(f"s_add_u32 s36, {WS}, {FLAGS_OFF + PRIV_LINE * 128}"); A(f"s_addc_u32 s37, {WS1}, 0")
    srd(A, S_O, "s36", "s37", 256 * 128)
    A("s_lshl_b32 s101, s2, 7")
    stamp(A, 'pre_poll')
    A("s_mov_b32 s6, 0x8000")
    A.label(f"L_{name}_pq")
    A(f"buffer_load_dword v4, off, s[{S_O}:{S_O+3}], s101 sc1")
    A("s_waitcnt vmcnt(0)")
    A("v_readfirstlane_b32 s7, v4")
    A("s_sub_u32 s6, s6, 1")
    A("s_cmp_eq_u32 s6, 0")
    A(f"s_cbranch_scc1 L_{name}_pqd")
    A("s_cmp_ge_u32 s7, 24")
    A(f"s_cbranch_scc1 L_{name}_pqd")
    A("s_sleep 1")
    A(f"s_branch L_{name}_pq")
    A.label(f"L_{name}_pqd")
    stamp(A, 'poll_done')
    A(f"s_add_u32 s36, {WS}, {AH_OFF}"); A(f"s_addc_u32 s37, {WS1}, 0")
    srd(A, S_O, "s36", "s37", 64*AH_TB)
    A(f"s_lshl_b32 s6, s{S_TB}, 11")
    for xi, x in enumerate("ab"):
        for j in range(2):
            A(f"buffer_load_dwordx4 {v(Q[x]+4*j,4)}, {v(V_L16)}, s[{S_Q}:{S_Q+3}], s6 offen offset:{xi*2048 + j*1024} sc1")
    A(f"s_mov_b32 s{S_KOFF}, 0")
    A(kload(0, 0, 0)); A(kload(0, 1, 0))
    A(f"s_lshl_b32 s6, s{S_HEAD}, 13")
    A(f"s_lshl_b32 s7, s{S_TB}, 7")
    A("s_add_u32 s7, s7, s6")
    A("v_lshlrev_b32 v3, 2, v1")
    A(f"buffer_load_dword v4, v3, s[{S_N}:{S_N+3}], s7 offen sc1")
    A(f"s_add_u32 s6, s6, {32*8192}")
    for i in range(8):
        A(f"buffer_load_dwordx4 {v(32+4*i,4)}, {v(V_L16)}, s[{S_N}:{S_N+3}], s6 offen offset:{(i&3)*1024} sc1")
        if i == 3: A("s_add_u32 s6, s6, 4096")
    A(f"s_add_u32 s36, {WS}, {FLAGS_OFF + PRIV_LINE * 128}"); A(f"s_addc_u32 s37, {WS1}, 0")
    srd(A, S_N, "s36", "s37", 256 * 128)
    A("s_add_u32 s101, s101, 4")
    for r in range(8):
        A(f"v_accvgpr_write_b32 {a(vreg(7,0)+r)}, 0")
    NPRE0 = opt("kvpre", 4)
    for kk in range(1, NPRE0):
        vv = kk - 1
        A(f"s_mov_b32 s{S_KOFF}, {kk * 2048}")
        A(kload(kk % R, 0, 0)); A(kload(kk % R, 1, 0))
        A(vload(vv % R, 0, 0)); A(vload(vv % R, 1, 0))
    NRING = 4 * (NPRE0 - 1)
    A("v_and_b32 v5, 15, v1"); A("v_lshrrev_b32 v6, 4, v1")
    A("v_lshrrev_b32 v7, 1, v6"); A("v_lshlrev_b32 v7, 10, v7"); A("v_and_b32 v6, 1, v6"); A("v_lshl_add_u32 v7, v6, 9, v7")
    A(f"v_lshl_add_u32 {v(V_HA)}, v5, 4, v7")
    A(f"s_mov_b32 s{S_Q}, s{S_O}"); A(f"s_mov_b32 s{S_Q+1}, s{S_O+1}"); A(f"s_mov_b32 s{S_Q+3}, 0x00020000")
    A(f"s_cmp_lt_i32 s{S_HSIG}, 0")
    A(f"s_cselect_b32 s{S_Q+2}, 0, s{S_O+2}")
    A(f"s_waitcnt vmcnt({NRING})")
    stamp(A, 'norm_ok')
    for i in range(16): A(f"v_max_f32 {v(32+i)}, {v(32+i)}, {v(48+i)}")
    n = 16
    while n > 1:
        n //= 2
        for i in range(n): A(f"v_max_f32 {v(32+i)}, {v(32+i)}, {v(32+i+n)}")
    def wave_max(r, sd):
        for sh in (8, 4, 2, 1):
            A("s_nop 1")
            A(f"v_max_f32_dpp {v(r)}, {v(r)}, {v(r)} row_ror:{sh} row_mask:0xf bank_mask:0xf")
        A("s_nop 1")
        for k, ln in enumerate((0, 16, 32, 48)): A(f"v_readlane_b32 s{36+k}, {v(r)}, {ln}")
        A("s_nop 1")
        A("s_max_u32 s36, s36, s37"); A("s_max_u32 s38, s38, s39"); A(f"s_max_u32 s{sd}, s36, s38")
    wave_max(32, 6); wave_max(4, 7)
    A("v_mov_b32 v5, s6"); A("v_mul_f32 v5, s7, v5")
    A(f"v_mov_b32 v6, {fbits(4000.0)}")
    A("v_cmp_le_f32 vcc, v5, v6")
    A("s_nop 4")
    A(f"s_cbranch_vccz L_{name}_slow")
    def hspin(tag):
        A("s_mov_b32 s7, 0x8000")
        A.label(f"L_{name}_hs{tag}")
        A(f"buffer_load_dword {v(V_H)}, off, s[{S_N}:{S_N+3}], s101 sc1")
        A("s_waitcnt vmcnt(0)")
        A(f"v_readfirstlane_b32 s6, {v(V_H)}")
        A("s_sub_u32 s7, s7, 1"); A("s_cmp_eq_u32 s7, 0"); A(f"s_cbranch_scc1 L_{name}_hsd{tag}")
        A("s_cmp_ge_u32 s6, 64"); A(f"s_cbranch_scc1 L_{name}_hsd{tag}")
        A("s_sleep 4"); A(f"s_branch L_{name}_hs{tag}")
        A.label(f"L_{name}_hsd{tag}")
    def hsignal(back):
        A(f"s_cmp_lt_i32 s{S_HSIG}, 0")
        A(f"s_cbranch_scc1 {back}")
        A(f"s_lshl_b32 s6, s{S_HSIG}, 1")
        A("v_lshrrev_b32 v4, 4, v1"); A("v_and_b32 v4, 1, v4"); A("v_add_u32 v4, s6, v4")
        A("v_lshrrev_b32 v5, 3, v1"); A("v_and_b32 v5, 1, v5"); A("v_lshlrev_b32 v5, 2, v5")
        A("v_lshrrev_b32 v6, 2, v4"); A("v_or_b32 v5, v5, v6")
        A("v_lshrrev_b32 v6, 1, v1"); A("v_and_b32 v6, 3, v6"); A("v_lshlrev_b32 v6, 2, v6")
        A("v_and_b32 v4, 3, v4"); A("v_or_b32 v6, v6, v4")
        A("v_and_b32 v4, 1, v1"); A("v_lshl_add_u32 v6, v6, 1, v4")
        A("v_lshl_add_u32 v6, v6, 3, v5"); A("v_lshlrev_b32 v6, 7, v6")
        A("v_mov_b32 v4, 1")
        A("s_mov_b64 s[36:37], exec"); A("s_mov_b32 exec_lo, -1"); A("s_mov_b32 exec_hi, 0")
        A(f"buffer_atomic_add v4, v6, s[{S_N}:{S_N+3}], 0 offen offset:4")
        A("s_mov_b64 exec, s[36:37]")
    def gemm_prologue_groups():
        g = []
        first = [f"s_lshl_b32 s{S_M0}, s{S_WV}, 13", f"s_mov_b32 m0, s{S_M0}", "s_nop 0"]
        def aload(s_):
            for j in range(2):
                grp = [g_aload(s_, j, (s_ % 2) * 2048 + j * 1024)]
                if s_ % 2 == 1 and j == 1: grp.append(f"s_add_u32 s{S_AOFF}, s{S_AOFF}, 4096")
                g.append((grp, ('A', s_, j)))
        for i in range(8): g.append(((first if i == 0 else []) + g_dma(i), ('W', 0, i)))
        for s_ in range(8): aload(s_)
        for st in (1, 2):
            for i in range(8): g.append(((g_next_stage() if i == 0 else []) + g_dma(i), ('W', st, i)))
        for s_ in range(8, XD): aload(s_)
        for i in range(2): g.append(((g_next_stage() if i == 0 else []) + g_dma(i), ('W', 3, i)))
        return g
    GPRO = [t for _, t in gemm_prologue_groups()]
    A(qk('a', 0, 0)); A(qk('a', 0, 1))
    A(f"s_mov_b32 s{S_KOFF}, {8*2048}")
    A(f"s_movk_i32 s{S_IT}, 6")
    A("s_nop 7"); A("s_nop 7")
    stamp(A, 3)
    KB4 = [S_KOFF, 36, 37, 38]
    def kv_bases(): return [f"s_add_u32 s{KB4[i]}, s{S_KOFF}, {i * 4096}" for i in range(1, 4)]
    p0, p1 = opt("kvp0", 9), opt("kvp1", 20)
    def hstore(i):
        q = 2 * i + 1; p, tb = q >> 2, q & 3
        return [f"s_add_u32 s6, s55, {(tb >> 1) * AH_TB + p * 2048 + (tb & 1) * 256}",
                f"buffer_store_dwordx4 {a(128 + 4 * i, 4)}, {v(V_HA)}, s[{S_Q}:{S_Q+3}], s6 offen sc1"]
    HD = opt("hdefer", 0)
    POS = [5, 9, 15, 20]
    NPRE = opt("kvpre", 4)
    def kl(kb, j, slot, so, off): return ([kload(slot, j, off, so)], ('K', kb, j))
    def vl(kb, j, slot, so, off): return ([vload(slot, j, off, so)], ('V', kb, j))
    def sched(kind, u, hf, gp):
        ops = []
        if kind == 'last':
            if u == 0 and hf == 'b':
                free = [5, 15]
                ops += [(9, *vl(63, 0, 7, S_KOFF, 0)), (20, *vl(63, 1, 7, S_KOFF, 0))]
            else: free = list(POS)
            for p_ in free:
                if gp: ops.append((p_, *gp.pop(0)))
            return sorted(ops, key=lambda o: o[0])
        base = 0 if kind == 'first' else None
        if hf == 'a':
            ops += [(9, [kload(u, 0, (u & 1) * 2048, KB4[u >> 1])], ('Kn', u, 0)), (20, [kload(u, 1, (u & 1) * 2048, KB4[u >> 1])], ('Kn', u, 1))]
            if kind == 'mid' and u == 0: ops.append((2, [f"buffer_load_dword {v(V_H)}, off, s[{S_N}:{S_N+3}], s101 sc1"], ('H',)))
        else:
            ops += [(9, [vload((u-1) % R, 0, (u & 1) * 2048, KB4[u >> 1])], ('Vn', u, 0)), (20, [vload((u-1) % R, 1, (u & 1) * 2048, KB4[u >> 1])], ('Vn', u, 1))]
        if kind == 'first':
            k = NPRE + 2 * u + (hf == 'b')
            if k <= 7:
                so = [f"s_mov_b32 s3, {k * 2048}"]
                ops += [(1, so + [kload(k % R, 0, 0, 3)], ('K', k, 0)), (3, [kload(k % R, 1, 0, 3)], ('K', k, 1)),
                        (5, [vload((k-1) % R, 0, 0, 3)], ('V', k - 1, 0)), (7, [vload((k-1) % R, 1, 0, 3)], ('V', k - 1, 1))]
            if HD and u < 7: ops.append((15, hstore(2 * u + (hf == 'b')), ('HS',)))
        return sorted(ops, key=lambda o: o[0])
    def retag(t, kb):
        if t[0] == 'Kn': return ('K', kb + 8, t[2])
        if t[0] == 'Vn': return ('V', kb + 7, t[2])
        return t
    sim = VmSim()
    for k in range(1, NPRE):
        for j in range(2): sim.issue(('K', k, j))
        for j in range(2): sim.issue(('V', k - 1, j))
    kvw = {}
    gp_sim = gemm_prologue_groups()
    for kb in range(64):
        u = kb & 7; kind = 'first' if kb < 8 else 'last' if kb >= 56 else 'mid'
        for o in sched(kind, u, 'a', gp_sim): sim.issue(retag(o[2], kb))
        need = sim.need(lambda t: t == ('V', kb, 1))
        if kb + 1 < 64: need = min(need, sim.need(lambda t: t == ('K', kb + 1, 1)))
        kvw[(kind, u)] = min(kvw.get((kind, u), 63), need)
        for o in sched(kind, u, 'b', gp_sim): sim.issue(retag(o[2], kb))
    assert not gp_sim
    def attn_body(kind):
        last = kind == 'last'
        gp = gemm_prologue_groups() if last else None
        for u in range(R):
            ea = {}
            for (p_, ins, _) in sched(kind, u, 'a', gp): ea.setdefault(p_, []).extend(ins)
            if u == 0 and not last: ea.setdefault(0, []).extend(kv_bases())
            half(A, 'a', [qk('b', u, 0), qk('b', u, 1), pv('b', (u-1) % R, 0), pv('b', (u-1) % R, 1), rs('b', 0), rs('b', 1)], ea)
            A(f"s_waitcnt vmcnt({min(kvw[(kind, u)], 63)})")
            eb = {}
            for (p_, ins, _) in sched(kind, u, 'b', gp): eb.setdefault(p_, []).extend(ins)
            mf = [qk('a', (u+1) % R, 0), qk('a', (u+1) % R, 1), pv('a', u, 0), pv('a', u, 1), rs('a', 0), rs('a', 1)]
            if last and u == R - 1: mf[0] = "s_nop 0"; mf[1] = "s_nop 0"
            half(A, 'b', mf, eb)
        if last: assert not gp
    attn_body('first')
    A(f"s_add_u32 s{S_KOFF}, s{S_KOFF}, {R*2048}")
    A.raw(".p2align 6")
    A.label(f"L_{name}_loop")
    attn_body('mid')
    A(f"s_add_u32 s{S_KOFF}, s{S_KOFF}, {R*2048}")
    A(f"s_sub_u32 s{S_IT}, s{S_IT}, 1")
    A(f"s_cmp_eq_u32 s{S_IT}, 5")
    A(f"s_cbranch_scc1 L_{name}_hsig")
    A.label(f"L_{name}_hback")
    A(f"s_cmp_lg_u32 s{S_IT}, 0")
    A(f"s_cbranch_scc1 L_{name}_loop")
    A(f"v_readfirstlane_b32 s6, {v(V_H)}")
    A("s_nop 3")
    A("s_cmp_ge_u32 s6, 64")
    A(f"s_cbranch_scc1 L_{name}_hok")
    hspin("f")
    A.label(f"L_{name}_hok")
    attn_body('last')
    stamp(A, 4)
    A("s_nop 1")
    A(pv('b', 7, 0)); A(pv('b', 7, 1)); A(rs('b', 0)); A(rs('b', 1))
    A("s_nop 7"); A("s_nop 7")
    if opt("rs32", 0):
        for x in "ab":
            A(f"v_mov_b32 {v(LS[x])}, {v(L[x])}"); A(f"v_mov_b32 v5, {v(L[x])}"); A("s_nop 1")
            A(f"v_permlane32_swap_b32 {v(LS[x])}, v5")
    else:
        A("v_and_b32 v3, 15, v1"); A("v_lshlrev_b32 v3, 2, v3")
        A("v_lshrrev_b32 v4, 4, v1"); A("v_and_b32 v4, 1, v4"); A("v_cmp_eq_u32 vcc, 1, v4")
        for x in "ab":
            A(f"ds_bpermute_b32 v5, v3, {v(L[x])}"); A(f"ds_bpermute_b32 v6, v3, {v(L[x]+1)}")
            A("s_waitcnt lgkmcnt(0)")
            A(f"v_cndmask_b32 {v(LS[x])}, v5, v6, vcc")
    A(f"s_branch L_{name}_afin")
    A.label(f"L_{name}_hsig")
    hsignal(f"L_{name}_hback")
    A(f"s_branch L_{name}_hback")
    A.label(f"L_{name}_slow")
    if opt("hdefer", 0):
        for i in range(14):
            for z in hstore(i): A(z)
    A("s_waitcnt vmcnt(0)")
    hsignal(f"L_{name}_slow2")
    A.label(f"L_{name}_slow2")
    for x in "ab":
        A(f"v_mov_b32 {v(M[x])}, 0xff800000"); A(f"v_mov_b32 {v(LS[x])}, 0")
    A(f"s_mov_b32 s{S_KOFF}, 0")
    A(f"s_movk_i32 s{S_IT}, 64")
    A.label(f"L_{name}_sloop")
    A(kload(0, 0, 0)); A(kload(0, 1, 0)); A(vload(0, 0, 2048)); A(vload(0, 1, 2048))
    A("s_waitcnt vmcnt(0)")
    for x in "ab":
        A(qk(x, 0, 0)); A(qk(x, 0, 1))
        A("s_nop 7"); A("s_nop 7")
        A(f"v_max3_f32 v3, {v(S[x])}, {v(S[x]+1)}, {v(M[x])}")
        for i in range(2, 16, 2): A(f"v_max3_f32 v3, {v(S[x]+i)}, {v(S[x]+i+1)}, v3")
        A("v_mov_b32 v4, v3"); A("s_nop 1")
        A("v_permlane32_swap_b32 v3, v4"); A("s_nop 1")
        A("v_max_f32 v3, v3, v4")
        A(f"v_sub_f32 v4, {v(M[x])}, v3")
        A("v_exp_f32 v4, v4")
        A(f"v_mov_b32 {v(M[x])}, v3")
        for i in range(16): A(f"v_sub_f32 {v(S[x]+i)}, {v(S[x]+i)}, v3")
        for i in range(16): A(f"v_exp_f32 {v(S[x]+i)}, {v(S[x]+i)}")
        for i in range(16): A(f"v_mul_f32 {v(O[x]+i)}, {v(O[x]+i)}, v4")
        for i in range(8): A(f"v_cvt_pk_bf16_f32 {v(P[x]+i)}, {v(S[x]+2*i)}, {v(S[x]+2*i+1)}")
        A(f"v_mul_f32 {v(LS[x])}, {v(LS[x])}, v4")
        for i in range(16): A(f"v_add_f32 {v(LS[x])}, {v(LS[x])}, {v(S[x]+i)}")
        A(pv(x, 0, 0)); A(pv(x, 0, 1))
        A("s_nop 7"); A("s_nop 7")
    A(f"s_add_u32 s{S_KOFF}, s{S_KOFF}, 2048")
    A(f"s_sub_u32 s{S_IT}, s{S_IT}, 1")
    A(f"s_cmp_lg_u32 s{S_IT}, 0")
    A(f"s_cbranch_scc1 L_{name}_sloop")
    for x in "ab":
        A(f"v_mov_b32 v4, {v(LS[x])}"); A("s_nop 1")
        A(f"v_permlane32_swap_b32 {v(LS[x])}, v4"); A("s_nop 1")
        A(f"v_add_f32 {v(LS[x])}, {v(LS[x])}, v4")
    hspin("s")
    for grp, _ in gemm_prologue_groups():
        for z in grp: A(z)
    A.label(f"L_{name}_afin")
    A(f"s_mul_i32 s6, s{S_TB}, {AH_TB}")
    A(f"s_lshl_b32 s7, s{S_HEAD}, 11"); A("s_add_u32 s6, s6, s7")
    for xi, x in enumerate("ab"):
        A(f"v_rcp_f32 v4, {v(LS[x])}"); A("s_nop 0")
        for i in range(16): A(f"v_mul_f32 {v(O[x]+i)}, {v(O[x]+i)}, v4")
        T = S[x]
        for j in range(2):
            A(f"v_cvt_pk_bf16_f32 {v(T+4*j)}, {v(O[x]+4*j)}, {v(O[x]+4*j+1)}")
            A(f"v_cvt_pk_bf16_f32 {v(T+4*j+1)}, {v(O[x]+4*j+2)}, {v(O[x]+4*j+3)}")
            A(f"v_cvt_pk_bf16_f32 {v(T+4*j+2)}, {v(O[x]+8+4*j)}, {v(O[x]+8+4*j+1)}")
            A(f"v_cvt_pk_bf16_f32 {v(T+4*j+3)}, {v(O[x]+8+4*j+2)}, {v(O[x]+8+4*j+3)}")
            A(f"buffer_store_dwordx4 {v(T+4*j,4)}, {v(V_L16)}, s[{S_O}:{S_O+3}], s6 offen offset:{j*1024} sc1")
        if xi == 0: A(f"s_add_u32 s6, s6, {AH_TB}")
    srd(A, S_V, "s96", "s97", 4*MB)
    srd(A, S_Q, "s98", "s99", 4*MB)
    A("v_lshrrev_b32 v5, 3, v1"); A("v_and_b32 v6, 7, v1")
    A("v_lshlrev_b32 v3, 11, v5"); A("v_lshl_add_u32 v3, v6, 4, v3")
    A(f"s_lshl_b32 s7, s{S_MT}, 7"); A(f"s_lshl_b32 s36, s{S_WV}, 5"); A("s_add_u32 s7, s7, s36")
    A("s_lshl_b32 s7, s7, 11"); A(f"s_lshl_b32 s36, s{S_NT}, 8"); A("s_add_u32 s7, s7, s36")
    A(f"s_lshl_b32 s36, s{S_HALF}, 7"); A("s_add_u32 s95, s7, s36")
    XR = 112
    A("s_mov_b32 s7, s95")
    for i in range(4):
        A(f"buffer_load_dwordx4 {v(XR + 4*i, 4)}, v3, s[{S_V}:{S_V+3}], s7 offen")
        if i < 3: A(f"s_add_u32 s7, s7, {8 * 2048}")
    A("s_waitcnt vmcnt(56)")
    A("s_barrier")
    stamp(A, 'g_start')
    A(f"s_mov_b32 s{S_IT}, 3")
    A(f"s_mov_b32 s{S_FIRST}, 1")
    for r in g_tr(0): A(r)
    def body_ops(it):
        ops = []
        for n in range(NB):
            ph = (n + 1) % 4
            st = (NB // 4) * it + ((n + 1) >> 2) - 1 + PD
            if n == 2: ops.append((n, ('F', it)))
            ops.append((n, ('A', NB * it + n + XD, 0))); ops.append((n, ('W', st, 2 * ph)))
            ops.append((n, ('A', NB * it + n + XD, 1))); ops.append((n, ('W', st, 2 * ph + 1)))
        return ops
    waits = {n: 63 for n in range(NB)}
    sim = VmSim()
    for t in GPRO + [('S', i) for i in range(4)] + [('X', i) for i in range(4)]: sim.issue(t)
    SIGN = 7; sig_wait = None
    for it in range(3):
        ops = body_ops(it)
        for n in range(NB):
            g = NB * it + n
            need = sim.need(lambda t: t[0] == 'A' and t[1] == g)
            if n % 4 == 3:
                need = min(need, sim.need(lambda t: t[0] == 'W' and t[1] == (NB // 4) * it + (n >> 2) + 1))
            if n == 17: need = min(need, sim.need(lambda t: t[0] == 'F' and t[1] == it))
            if n == SIGN and it == 0: sig_wait = sim.need(lambda t: t[0] == 'S')
            waits[n] = min(waits[n], need)
            for (s_, t) in ops:
                if s_ == n: sim.issue(t)
    assert max(waits.values()) <= 63
    PR = 32
    A.raw(".p2align 6")
    A.label(f"L_{name}_gloop")
    for n in range(NB):
        A.c(f"gemm step {n}")
        A(f"s_waitcnt vmcnt({waits[n]}) lgkmcnt(0)")
        if n % 4 == 3 and not opt("g_nobar"): A("s_barrier")
        NM = 16 if G16() else 8
        q = NM // 8
        fill = [[] for _ in range(NM)]
        reads = []
        trs = [V_TR16 + cb for cb in range(8)] if G16() else [V_TR + cb for cb in range(4)]
        if n % 8 == 7: reads += [f"v_xor_b32 {v(r)}, 0x10000, {v(r)}" for r in trs]
        reads += g_tr(n + 1) if not opt("g_notr") else []
        k = 0; m = 0
        while k < len(reads):
            cnt = (2 if G16() else 3) + (1 if (n % 8 == 7 and m < (8 if G16() else 1)) else 0)
            fill[m] += reads[k:k + cnt]; k += cnt; m += 1
        tgt = n + XD
        pre = []
        if n == 17:
            pre += [f"s_cmp_eq_u32 s{S_IT}, 2", ("BR", f"s_cbranch_scc1 L_{name}_asw", f"L_{name}_aback")]
        if n == 9:
            pre += [f"s_cmp_eq_u32 s{S_IT}, 1", f"s_cselect_b32 s{S_GA+2}, 0, s{S_GA+2}"]
        if n == 2: pre += [g_flagload()]
        if n == SIGN:
            pre += [f"s_cmp_eq_u32 s{S_FIRST}, 1", ("BR", f"s_cbranch_scc1 L_{name}_sig", f"L_{name}_sigback")]
        ph = (n + 1) % 4
        ns = g_next_stage(n == 19) if ph == 0 else []
        imm = (tgt % 2) * 2048
        fill[0] = pre + fill[0]
        fill[1 * q].append(g_aload(tgt % NB, 0, imm))
        fill[2 * q] += ns
        fill[3 * q] += g_dma(2 * ph)
        fill[5 * q].append(g_aload(tgt % NB, 1, imm + 1024))
        if tgt % 2 == 1: fill[5 * q].append(f"s_add_u32 s{S_AOFF}, s{S_AOFF}, 4096")
        fill[7 * q] += g_dma(2 * ph + 1)
        if opt("g_novm"):
            fill = [[z for z in f if isinstance(z, tuple) or not z.startswith("buffer_load")] for f in fill]
        for m in range(NM):
            if G16():
                cb, tb = m // 2, m % 2
                d = v(gacc16(cb, tb), 4)
                A(f"v_mfma_f32_16x16x32_bf16 {d}, {a(wreg16(n & 1, cb), 4)}, {a(areg(n, tb), 4)}, {d}")
            else:
                j, cb = m // 4, m % 4
                d = v(gacc(cb), 16)
                A(f"v_mfma_f32_32x32x16_bf16 {d}, {a(wreg(n & 1, j, cb), 4)}, {a(areg(n, j), 4)}, {d}")
            for z in fill[m]:
                if isinstance(z, tuple):
                    A(z[1]); A.label(z[2])
                else: A(z)
    A(f"s_sub_u32 s{S_IT}, s{S_IT}, 1")
    A(f"s_cmp_lg_u32 s{S_IT}, 0")
    A(f"s_cbranch_scc1 L_{name}_gloop")
    A(f"s_branch L_{name}_gdone")
    A.label(f"L_{name}_asw")
    A(f"v_readlane_b32 s6, {v(V_F)}, 0")
    A("s_nop 3")
    A("s_cmp_ge_u32 s6, 128")
    A(f"s_cbranch_scc1 L_{name}_asw2")
    spin(A, name, "o", 0, 128, 7, 6)
    A.label(f"L_{name}_asw2")
    A(f"s_mov_b32 s{S_AOFF}, s{S_ASW}")
    A(f"s_branch L_{name}_aback")
    A.label(f"L_{name}_sig")
    A(f"s_mov_b32 s{S_FIRST}, 0")
    A(f"s_waitcnt vmcnt({sig_wait})")
    A(f"s_lshl_b32 s6, s{S_QT}, 7")
    A("v_mov_b32 v4, 1")
    A("s_mov_b64 s[36:37], exec"); A("s_mov_b64 exec, 1")
    A(f"buffer_atomic_add v4, off, s[{S_F}:{S_F+3}], s6")
    A("s_mov_b64 exec, s[36:37]")
    A(f"s_branch L_{name}_sigback")
    A.label(f"L_{name}_gdone")
    stamp(A, 'g_end')
    A(f"s_lshl_b32 s6, s{S_MT}, 3"); A(f"s_add_u32 s6, s6, s{S_NT}")
    A(f"s_add_u32 s36, {WS}, {PART_OFF}"); A(f"s_addc_u32 s37, {WS1}, 0")
    A(f"s_mul_i32 s7, s6, {PART_PAIR}"); A(f"s_lshl_b32 s38, s{S_WV}, 13"); A("s_add_u32 s7, s7, s38")
    A("s_add_u32 s36, s36, s7"); A("s_addc_u32 s37, s37, 0")
    srd(A, S_K, "s36", "s37", 65536)
    A(f"s_lshl_b32 s38, s{S_HALF}, 15")
    A("s_xor_b32 s39, s38, 0x8000")
    A("s_add_u32 s6, s6, 8"); A("s_lshl_b32 s6, s6, 7"); A(f"s_lshl_b32 s7, s{S_HALF}, 2"); A("s_add_u32 s6, s6, s7")
    PR = 32
    def finish(h):
        keep = gacc(2 * h); send = gacc(2 * (1 - h))
        for i in range(8):
            if i == 4: A("s_add_u32 s38, s38, 4096")
            A(f"buffer_store_dwordx4 {v(send + 4*i, 4)}, {v(V_L16)}, s[{S_K}:{S_K+3}], s38 offen offset:{(i % 4) * 1024} sc1")
        if G16():
            A("v_and_b32 v5, 15, v1"); A("v_lshrrev_b32 v6, 4, v1")
            A("v_lshlrev_b32 v7, 8, v5"); A(f"s_lshl_b32 s7, s{S_WV}, 13"); A("v_add_u32 v7, s7, v7")
            A("v_and_b32 v5, 7, v5")
            for i in range(8):
                A(f"v_add_u32 {v(64 + i)}, {4 * (i >> 1)}, v6"); A(f"v_xor_b32 {v(64 + i)}, {v(64 + i)}, v5")
                A(f"v_lshl_add_u32 {v(64 + i)}, {v(64 + i)}, 4, v7")
                if i & 1: A(f"v_add_u32 {v(64 + i)}, 4096, {v(64 + i)}")
        else:
            A("v_and_b32 v5, 31, v1"); A("v_lshrrev_b32 v6, 5, v1")
            A("v_lshlrev_b32 v7, 8, v5"); A(f"s_lshl_b32 s7, s{S_WV}, 13"); A("v_add_u32 v7, s7, v7")
            A("v_and_b32 v5, 7, v5")
            for cq in range(8):
                A(f"v_add_u32 {v(64 + cq)}, {2 * cq}, v6"); A(f"v_xor_b32 {v(64 + cq)}, {v(64 + cq)}, v5")
                A(f"v_lshl_add_u32 {v(64 + cq)}, {v(64 + cq)}, 4, v7")
        A("v_lshrrev_b32 v5, 3, v1"); A("v_and_b32 v6, 7, v1"); A("v_lshlrev_b32 v6, 1, v6"); A("v_xor_b32 v6, v6, v5")
        A("v_lshlrev_b32 v7, 8, v5"); A("v_add_u32 v7, s7, v7"); A("v_lshl_add_u32 v72, v6, 4, v7"); A("v_xor_b32 v73, 16, v72")
        A("s_waitcnt vmcnt(0)")
        A("s_barrier")
        A(f"s_cmp_eq_u32 s{S_WV}, 0")
        A(f"s_cbranch_scc0 L_{name}_nf{h}")
        A("v_mov_b32 v4, 1")
        A("s_mov_b64 exec, 1")
        A(f"buffer_store_dword v4, off, s[{S_F}:{S_F+3}], s6 sc1")
        A("s_mov_b64 exec, -1")
        A.label(f"L_{name}_nf{h}")
        spin(A, name, f"p{h}", 1, 1, 7, 36)
        for i in range(8):
            if i == 4: A("s_add_u32 s39, s39, 4096")
            A(f"buffer_load_dwordx4 {v(PR + 4*i, 4)}, {v(V_L16)}, s[{S_K}:{S_K+3}], s39 offen offset:{(i % 4) * 1024} sc1")
        for i in range(8):
            A(f"s_waitcnt vmcnt({7 - i})")
            A(f"v_pk_add_f32 {v(keep + 4*i, 2)}, {v(keep + 4*i, 2)}, {v(PR + 4*i, 2)}")
            A(f"v_pk_add_f32 {v(keep + 4*i + 2, 2)}, {v(keep + 4*i + 2, 2)}, {v(PR + 4*i + 2, 2)}")
            A(f"ds_write_b128 {v(64 + i)}, {v(keep + 4*i, 4)}")
        stamp(A, 'p_ready')
        A("s_waitcnt lgkmcnt(0)")
        for i in range(4):
            A(f"ds_read_b128 {v(PR + 8*i, 4)}, v72 offset:{i * 2048}")
            A(f"ds_read_b128 {v(PR + 8*i + 4, 4)}, v73 offset:{i * 2048}")
        stamp(A, 't_done')
        A("s_mov_b32 s39, 0xffff0000")
        A("s_mov_b32 s7, s95")
        for i in range(4):
            A(f"s_waitcnt lgkmcnt({6 - 2*i})")
            b = PR + 8*i; xr = XR + 4*i
            for r in range(4):
                A(f"v_lshlrev_b32 v24, 16, {v(xr+r)}"); A(f"v_and_b32 v25, s39, {v(xr+r)}")
                A(f"v_pk_add_f32 {v(b+2*r, 2)}, {v(b+2*r, 2)}, v[24:25]")
            for r in range(4): A(f"v_cvt_pk_bf16_f32 {v(xr+r)}, {v(b+2*r)}, {v(b+2*r+1)}")
            A(f"buffer_store_dwordx4 {v(xr, 4)}, v3, s[{S_Q}:{S_Q+3}], s7 offen{' sc1' if opt('out_sc1', 1) else ''}")
            if i < 3: A(f"s_add_u32 s7, s7, {8 * 2048}")
    A(f"s_cmp_eq_u32 s{S_HALF}, 0")
    A(f"s_cbranch_scc0 L_{name}_fin1")
    finish(0)
    A(f"s_branch {fin}")
    A.label(f"L_{name}_fin1")
    finish(1)
    A.label(fin)
```

```python
import os
MB = 1 << 20
PAD = int(os.environ.get("LAYOUT_PAD", "1"))
STATS_OFF = 0
FLAGS_OFF = 128 * 1024
NFLAGS    = 392
PRIV_LINE = 136
QKV_BLK = 131072 + (4352 if PAD else 0)
QKV_OFF = 4 * MB
NRM_OFF = 17 * MB
AH_OFF  = 18 * MB
AH_TB   = 144 * 2048 + (4352 if PAD else 0)
PART_OFF = 38 * MB
PART_PAIR = 65536 + (4352 if PAD else 0)
XN_OFF = 48 * MB
XN_OCT = 16384 + (256 if PAD else 0)
WS_USED = 54 * MB
KARG = dict(x=0, wqkv=8, wo=16, bx=24, w1=32, w2=40, out=48, dbg=56, ws=64)
```

```python
from asmlib import *
from layout import *
from vmsim import VmSim
import math

NCB = 14
def acc(cb, tb): return 32 + 4 * (cb * 4 + tb)
def xreg(slot, tb): return (slot * 4 + tb) * 4
def wreg(buf, cb): return 64 + (buf * NCB + cb) * 4
NAGPR = 176
SLOT = 32768
PITCH = 448
LN_LDS = 4 * SLOT
LDS_BYTES = 4 * SLOT + 256
V_X = 0; V_DMA = 1; V_TRE = 8; V_TRO = 9
S_W = 8; S_X = 12; S_O = 16; S_N = 20
S_WOFF = 24; S_XO = 25; S_IT = 29; S_WV = 30; S_MT = 31; S_BLK0 = 32; S_TYPE = 33
S_T0, S_T1, S_T2, S_T3 = 34, 35, 36, 37
S_M0CUR = 38; S_TOK = 39; S_WS = 40; S_LDW = 42; S_STG = 43; S_D = 52; S_M0A = 56; S_SLOT = 57; S_NT = 58

def tr_main(n, ncb=NCB):
    par = (n >> 1) & 1; sub = n & 1
    out = []
    for cb in range(ncb):
        for h in range(2):
            off = par * SLOT + sub * 32 * PITCH + h * 4 * PITCH + cb * 32
            ad = V_TRE if cb % 2 == 0 else V_TRO
            out.append(f"ds_read_b64_tr_b16 {a(wreg(n & 1, cb) + 2 * h, 2)}, {v(ad)} offset:{off}")
    return out
def x_load(slot, tb, imm):
    return f"buffer_load_dwordx4 {a(xreg(slot, tb), 4)}, {v(V_X)}, s[{S_X}:{S_X+3}], s{S_XO + tb} offen offset:{imm}{' sc1' if opt('x_sc1', 1) else ''}"
def dma(i):
    return f"buffer_load_dwordx4 {v(V_DMA + i)}, s[{S_W}:{S_W+3}], s{S_WOFF} offen offset:{(i & 3) * 1024} lds"
def w_next_stage():
    return [f"s_add_u32 s{S_WOFF}, s{S_WOFF}, s{S_STG}",
            f"s_add_u32 s{S_M0CUR}, s{S_M0CUR}, {SLOT}",
            f"s_and_b32 s{S_M0CUR}, s{S_M0CUR}, {4 * SLOT - 1}",
            f"s_mov_b32 m0, s{S_M0CUR}"]
def w_hi():
    return [f"s_add_u32 s{S_T0}, s{S_M0CUR}, 4096", f"s_mov_b32 m0, s{S_T0}"]

def body_vm_ops(it, PD, XD):
    ops = []
    for n in range(4):
        tgt = 4 * it + n + XD
        for tb in range(4): ops.append((n, ('X', tgt, tb)))
        if n & 1:
            st = 2 * it + (n >> 1) + PD
            for i in range(4): ops.append((n, ('W', st, i)))
        else:
            st = 2 * it + (n >> 1) - 1 + PD
            for i in range(4, 7): ops.append((n, ('W', st, i)))
    return ops

def gen_mainloop(A, name, ncb, swap, PD, XD, prologue_ops):
    NM = 4 * ncb
    waits = {n: 63 for n in range(4)}
    sim = VmSim()
    for t in prologue_ops: sim.issue(t)
    for it in range(4):
        ops = body_vm_ops(it, PD, XD)
        for n in range(4):
            g = 4 * it + n
            need = sim.need(lambda t: t[0] == 'X' and t[1] == g)
            if n & 1:
                st = 2 * it + (n >> 1) + 1
                nw = sim.need(lambda t: t[0] == 'W' and t[1] == st)
                if nw is not None: need = nw if need is None else min(need, nw)
            if need is not None: waits[n] = min(waits[n], need)
            for (s_, t) in ops:
                if s_ == n: sim.issue(t)
    A.raw(".p2align 6")
    A.label(f"L_{name}_loop")
    for n in range(4):
        A.c(f"---- step {n}")
        A(f"s_waitcnt vmcnt({waits[n]}) lgkmcnt(0)")
        if n & 1: A("s_barrier")
        reads = []
        if n == 3:
            reads += [f"v_xor_b32 {v(r)}, 0x10000, {v(r)}" for r in (V_TRE, V_TRO)]
        reads += tr_main(n + 1, ncb)
        tail = []
        tgt = n + XD
        if tgt == 4:
            tail += [f"s_add_u32 s{S_XO + tb}, s{S_XO + tb}, 2048" for tb in range(4)]
            tail += [f"s_cmp_eq_u32 s{S_IT}, 1", f"s_cselect_b32 s{S_X+2}, 0, s{S_X+2}"]
        xl = [x_load(tgt % 4, tb, (tgt % 4) * 512) for tb in range(4)]
        if n & 1:
            pre = w_next_stage() + ["s_nop 0"]; dm = [dma(i) for i in range(4)]
        else:
            pre = w_hi() + ["s_nop 0"]; dm = [dma(i) for i in range(4, 7)]
        fill = [[] for _ in range(NM)]
        for k, z in enumerate(reads): fill[k].append(z)
        k0 = 2
        for z in tail: fill[k0].append(z); k0 += 1
        vm = [[z] for z in xl]
        vm.append(pre + [dm[0]])
        vm += [[z] for z in dm[1:]]
        sp = opt("l1_vmsp", 5) if ncb == 14 else 4
        pos = max(k0, 10)
        for grp in vm:
            fill[min(pos, NM - 1)] += grp
            pos += sp
        for m in range(NM):
            cb, tb = (m // 4, m % 4) if not opt("l1_tbouter") else (m % ncb, m // ncb)
            if opt("l1_snake") and not opt("l1_tbouter") and (cb & 1): tb = 3 - tb
            d = v(acc(cb, tb), 4); w = a(wreg(n & 1, cb), 4); x = a(xreg(n, tb), 4)
            A(f"v_mfma_f32_16x16x32_bf16 {d}, {x}, {w}, {d}" if swap(cb) else f"v_mfma_f32_16x16x32_bf16 {d}, {w}, {x}, {d}")
            for z in fill[m]: A(z)
    A(f"s_sub_u32 s{S_IT}, s{S_IT}, 1")
    A(f"s_cmp_lg_u32 s{S_IT}, 0")
    A(f"s_cbranch_scc1 L_{name}_loop")

def ln_loads(A):
    A("v_and_b32 v3, 7, v1"); A("v_lshrrev_b32 v4, 3, v1")
    A("v_lshlrev_b32 v5, 11, v3"); A("v_lshl_add_u32 v5, v4, 4, v5")
    A(f"s_lshl_b32 s{S_T0}, s{S_WV}, 9")
    A(f"v_add_u32 v5, s{S_T0}, v5")
    A(f"s_lshl_b32 s{S_T1}, s2, 14")
    A("v_lshlrev_b32 v6, 11, v3")
    A(f"buffer_load_ushort v30, v6, s[{S_N}:{S_N+3}], s{S_T1} offen")
    for i in range(4):
        A(f"buffer_load_dwordx4 {v(32+4*i,4)}, v5, s[{S_N}:{S_N+3}], s{S_T1} offen offset:{i*128}")

def ln_compute(A, nafter, tag, zero_acc=False, pre_signal=None):
    A("v_and_b32 v24, 7, v1"); A("v_lshlrev_b32 v24, 3, v24")
    A(f"v_add_u32 v24, {LN_LDS}, v24")
    A(f"s_lshl_b32 s{S_T0}, s{S_WV}, 6")
    A(f"v_add_u32 v25, s{S_T0}, v24")
    A("s_mov_b32 s44, 0xffff0000")
    A(f"s_waitcnt vmcnt({nafter + 4})")
    A("v_lshlrev_b32 v30, 16, v30"); A("v_sub_f32 v30, 0, v30"); A("v_mov_b32 v31, v30")
    for i in range(4):
        A(f"s_waitcnt vmcnt({nafter + 3 - i})")
        for r in range(4):
            src = 32 + 4 * i + r
            A(f"v_lshlrev_b32 {v(64+2*(4*i+r))}, 16, {v(src)}")
            A(f"v_and_b32 {v(65+2*(4*i+r))}, s44, {v(src)}")
        for r in range(4):
            A(f"v_pk_add_f32 {v(64+2*(4*i+r),2)}, {v(64+2*(4*i+r),2)}, v[30:31]")
    stamp(A, 'ln_loaded')
    A("v_pk_add_f32 v[32:33], v[64:65], v[66:67]"); A("v_pk_mul_f32 v[34:35], v[64:65], v[64:65]")
    A("v_pk_add_f32 v[36:37], v[68:69], v[70:71]"); A("v_pk_mul_f32 v[38:39], v[66:67], v[66:67]")
    for i in range(2, 16):
        A(f"v_pk_fma_f32 {v(34+4*(i%2),2)}, {v(64+2*i,2)}, {v(64+2*i,2)}, {v(34+4*(i%2),2)}")
        if i >= 4: A(f"v_pk_add_f32 {v(32+4*(i%2),2)}, {v(32+4*(i%2),2)}, {v(64+2*i,2)}")
    A("v_pk_add_f32 v[32:33], v[32:33], v[36:37]"); A("v_pk_add_f32 v[34:35], v[34:35], v[38:39]")
    A("v_add_f32 v26, v32, v33"); A("v_add_f32 v27, v34, v35")
    A("s_nop 0")
    for r in (26, 27):
        A(f"v_add_f32_dpp {v(r)}, {v(r)}, {v(r)} row_ror:8 row_mask:0xf bank_mask:0xf")
    A("v_mov_b32 v28, v26"); A("v_mov_b32 v29, v27"); A("s_nop 0")
    A("v_permlane16_swap_b32 v26, v28"); A("v_permlane16_swap_b32 v27, v29"); A("s_nop 0")
    A("v_add_f32 v26, v26, v28"); A("v_add_f32 v27, v27, v29")
    A("v_mov_b32 v28, v26"); A("v_mov_b32 v29, v27"); A("s_nop 0")
    A("v_permlane32_swap_b32 v26, v28"); A("v_permlane32_swap_b32 v27, v29"); A("s_nop 0")
    A("v_add_f32 v26, v26, v28"); A("v_add_f32 v27, v27, v29")
    A("ds_write_b64 v25, v[26:27]")
    A("s_waitcnt lgkmcnt(0)")
    A("s_barrier")
    for w_ in range(4): A(f"ds_read_b64 {v(32+2*w_,2)}, v24 offset:{64*w_}")
    A("s_waitcnt lgkmcnt(0)")
    A("v_pk_add_f32 v[32:33], v[32:33], v[34:35]"); A("v_pk_add_f32 v[36:37], v[36:37], v[38:39]")
    A("v_pk_add_f32 v[32:33], v[32:33], v[36:37]")
    A(f"v_mul_f32 v32, {fbits(1.0/1024)}, v32")
    A(f"v_mov_b32 v30, {fbits(1e-5)}")
    A(f"v_fmac_f32 v30, {fbits(1.0/1024)}, v33")
    A("v_fma_f32 v30, -v32, v32, v30")
    A(f"v_max_f32 v30, {fbits(1e-5)}, v30")
    A("v_rsq_f32 v30, v30"); A("s_nop 0")
    A("v_mul_f32 v32, -v32, v30"); A("v_mov_b32 v31, v30"); A("v_mov_b32 v33, v32")
    for i in range(16): A(f"v_pk_fma_f32 {v(64+2*i,2)}, {v(64+2*i,2)}, v[30:31], v[32:33]")
    for i in range(16): A(f"v_cvt_pk_bf16_f32 {v(40+i)}, {v(64+2*i)}, {v(65+2*i)}")
    A("v_lshlrev_b32 v24, 4, v1")
    A(f"s_lshl_b32 s{S_T0}, s{S_WV}, 12")
    A(f"v_add_u32 v24, s{S_T0}, v24")
    A(f"s_mul_i32 s{S_T1}, s2, {XN_OCT}")
    for i in range(4):
        A(f"buffer_store_dwordx4 {v(40+4*i,4)}, v24, s[{S_X}:{S_X+3}], s{S_T1} offen offset:{i*1024} sc1")
    if zero_acc:
        for r in list(range(64, 256)) + list(range(32, 40)): A(f"v_mov_b32 {v(r)}, 0")
    if pre_signal: pre_signal()
    stamp(A, 'ln_stored')
    A("s_waitcnt vmcnt(0)")
    A("s_barrier")
    stamp(A, 'ln_drained')
    if zero_acc:
        for r in range(40, 64): A(f"v_mov_b32 {v(r)}, 0")
    A(f"s_cmp_eq_u32 s{S_WV}, 0")
    A(f"s_cbranch_scc0 L_l1_nosig{tag}")
    A(f"s_lshr_b32 s{S_T0}, s2, 5"); A(f"s_lshl_b32 s{S_T0}, s{S_T0}, 5")
    A("v_mov_b32 v24, 1")
    A("s_mov_b64 s[44:45], exec"); A("s_mov_b64 exec, 1")
    A(f"buffer_atomic_add v24, off, s[{S_D}:{S_D+3}], s{S_T0}")
    A("s_mov_b64 exec, s[44:45]")
    A.label(f"L_l1_nosig{tag}")

KNAME = "parallel_sum__softmax_full_mha__dense_activation_silu__prompt_kernel"
S_HSIG = 100
def gen_l1(name, A=None, end=None):
    PD = opt("l1_pd", 3); XD = opt("l1_xd", 3)
    fin = f"L_{name}_fin"
    A("s_cmp_ge_u32 s2, 256")
    A(f"s_cbranch_scc1 {end}")
    stamp(A, 0)
    A(f"s_load_dwordx2 s[4:5], s[0:1], {KARG['wqkv']}")
    A(f"s_load_dwordx2 s[6:7], s[0:1], {KARG['w1']}")
    A(f"s_load_dwordx2 s[{S_WS}:{S_WS+1}], s[0:1], {KARG['ws']}")
    A(f"s_load_dwordx2 s[44:45], s[0:1], {KARG['x']}")
    A(f"s_load_dwordx2 s[46:47], s[0:1], {KARG['dbg']}")
    A("v_mov_b32 v2, v0")
    A("v_and_b32 v1, 63, v0")
    A("v_lshrrev_b32 v3, 6, v0")
    A("s_and_b32 s3, s2, 7")
    A(f"v_readfirstlane_b32 s{S_WV}, v3")
    A(f"s_lshr_b32 s{S_SLOT}, s2, 3")
    A("s_and_b32 s48, s3, 1"); A("s_lshl_b32 s48, s48, 2")
    A(f"s_and_b32 s{S_T0}, s{S_SLOT}, 3")
    A(f"s_add_u32 s{S_MT}, s48, s{S_T0}")
    A("s_lshr_b32 s3, s3, 1"); A("s_lshl_b32 s3, s3, 2")
    A(f"s_lshr_b32 s{S_T0}, s{S_SLOT}, 2")
    A(f"s_and_b32 s{S_T1}, s{S_T0}, 3"); A(f"s_add_u32 s3, s3, s{S_T1}")
    A(f"s_lshr_b32 s{S_T0}, s{S_T0}, 2"); A(f"s_lshl_b32 s{S_T0}, s{S_T0}, 4")
    A(f"s_add_u32 s3, s3, s{S_T0}")
    A(f"s_mov_b32 s{S_NT}, s3")
    A(f"s_lshl_b32 s{S_TOK}, s{S_MT}, 8")
    A(f"s_lshl_b32 s{S_T0}, s{S_WV}, 6")
    A(f"s_add_u32 s{S_TOK}, s{S_TOK}, s{S_T0}")
    A("s_waitcnt lgkmcnt(0)")
    srd(A, S_N, "s44", "s45", 4 * MB)
    srd(A, S_D, "s46", "s47", 256)
    ln_loads(A)
    ncode = 0
    if opt("codepf", 0):
        A("s_getpc_b64 s[48:49]")
        A.label(f"L_{name}_pc")
        A(f"s_sub_u32 s48, s48, L_{name}_pc-{opt('kname', None) or KNAME}")
        A("s_subb_u32 s49, s49, 0")
        A("v_lshlrev_b32 v8, 7, v2")
        for k in range(2):
            A(f"v_add_u32 v9, {k * 32768}, v8")
            A(f"v_min_u32 v9, L_end-{KNAME}, v9")
            A("v_mov_b32 v21, s49")
            A("v_add_co_u32 v20, vcc, s48, v9"); A("s_nop 1"); A("v_addc_co_u32 v21, vcc, 0, v21, vcc")
            A("global_load_dword a200, v[20:21], off")
            ncode += 1
    A(f"s_add_u32 s44, s{S_WS}, {XN_OFF}"); A(f"s_addc_u32 s45, s{S_WS+1}, 0")
    srd(A, S_X, "s44", "s45", 256 * XN_OCT)
    A("s_cmp_lt_u32 s3, 16")
    A(f"s_cbranch_scc1 L_{name}_qkv")
    A(f"s_mov_b32 s{S_TYPE}, 2")
    A("s_sub_u32 s3, s3, 16")
    A(f"s_mul_i32 s{S_BLK0}, s3, 7")
    A(f"s_mov_b32 s{S_LDW}, 7168")
    A("s_mov_b32 s4, s6"); A("s_mov_b32 s5, s7")
    A(f"s_mov_b32 s{S_T1}, {1024 * 7168}")
    A("s_movk_i32 s59, 28")
    A(f"s_branch L_{name}_common")
    A.label(f"L_{name}_qkv")
    A(f"s_mov_b32 s{S_LDW}, 6144")
    A(f"s_mov_b32 s{S_T1}, {1024 * 6144}")
    A(f"s_mul_i32 s{S_BLK0}, s3, 6")
    A("s_movk_i32 s59, 24")
    A("s_cmp_lt_u32 s3, 10"); A(f"s_cselect_b32 s{S_TYPE}, 0, 1")
    A("s_cmp_eq_u32 s3, 10"); A(f"s_cselect_b32 s{S_TYPE}, 3, s{S_TYPE}")
    A.label(f"L_{name}_common")
    A(f"s_lshl_b32 s{S_T0}, s{S_BLK0}, 6")
    A(f"s_add_u32 s4, s4, s{S_T0}")
    A("s_addc_u32 s5, s5, 0")
    A(f"s_sub_u32 s{S_T1}, s{S_T1}, s{S_T0}")
    srd(A, S_W, "s4", "s5", f"s{S_T1}")
    A(f"s_lshl_b32 s{S_STG}, s{S_LDW}, 6")
    A(f"s_lshl_b32 s{S_T0}, s{S_WV}, 4")
    A(f"s_movk_i32 s{S_T2}, 2341")
    for i in range(7):
        A(f"v_add_u32 v3, {64 * i}, v1")
        A(f"v_mul_u32_u24 v4, s{S_T2}, v3")
        A("v_lshrrev_b32 v4, 16, v4")
        A("v_mul_u32_u24 v6, 28, v4")
        A("v_sub_u32 v6, v3, v6")
        A("v_lshrrev_b32 v7, 3, v4")
        A("v_lshlrev_b32 v7, 1, v7")
        A("v_xor_b32 v6, v6, v7")
        A(f"v_add_u32 v4, s{S_T0}, v4")
        A(f"v_mul_lo_u32 v4, v4, s{S_LDW}")
        A(f"v_lshl_add_u32 v4, v6, 4, v4")
        if i & 3: A(f"v_subrev_u32 v4, {(i & 3) * 1024}, v4")
        A("v_cmp_gt_u32 vcc, s59, v6"); A("v_mov_b32 v7, 0x7ffff000"); A("s_nop 0")
        A(f"v_cndmask_b32 {v(10 + i)}, v7, v4, vcc")
    A(f"s_mul_i32 s{S_M0A}, s{S_WV}, {16 * PITCH}")
    prol = []
    def dma_p(i, base):
        return f"buffer_load_dwordx4 {v(base + i)}, s[{S_W}:{S_W+3}], s{S_WOFF} offen offset:{(i & 3) * 1024} lds"
    def stage_dma(st, lo, hi, base):
        for i in range(lo, hi):
            if i == 0:
                A(f"s_mul_i32 s{S_WOFF}, s{S_STG}, {st}")
                A(f"s_add_u32 s{S_M0CUR}, s{S_M0A}, {(st & 3) * SLOT}")
                A(f"s_mov_b32 m0, s{S_M0CUR}"); A("s_nop 0")
            if i == 4:
                for z in w_hi(): A(z)
                A("s_nop 0")
            A(dma_p(i, base)); prol.append(('W', st, i))
    NPRE = opt("l1_npre", 0)
    for st in range(NPRE):
        stage_dma(st, 0, 7 if st < PD - 1 else 4, 10)
    ntouch = len(prol) - 7 + ncode
    def zero_flags():
        A("s_cmp_lt_u32 s2, 8")
        A(f"s_cbranch_scc0 L_{name}_nz2")
        A(f"s_add_u32 s44, s{S_WS}, {FLAGS_OFF}"); A(f"s_addc_u32 s45, s{S_WS+1}, 0")
        srd(A, S_N, "s44", "s45", NFLAGS * 128)
        A("v_mov_b32 v20, 0"); A("v_mov_b32 v21, 0"); A("v_mov_b32 v22, 0"); A("v_mov_b32 v23, 0")
        A("v_lshlrev_b32 v9, 4, v2")
        A(f"s_mul_i32 s{S_T1}, s2, {49 * 128}")
        A(f"buffer_store_dwordx4 v[20:23], v9, s[{S_N}:{S_N+3}], s{S_T1} offen sc1")
        A(f"s_add_u32 s{S_T1}, s{S_T1}, 4096")
        A("v_cmp_gt_u32 vcc, 136, v2")
        A("s_and_saveexec_b64 s[44:45], vcc")
        A(f"s_cbranch_execz L_{name}_nz")
        A(f"buffer_store_dwordx4 v[20:23], v9, s[{S_N}:{S_N+3}], s{S_T1} offen sc1")
        A.label(f"L_{name}_nz")
        A("s_mov_b64 exec, s[44:45]")
        A.label(f"L_{name}_nz2")
    ln_compute(A, 7 + ntouch, 't', True, zero_flags)
    prol.clear()
    for st in range(NPRE, PD):
        stage_dma(st, 0, 7 if st < PD - 1 else 4, 10)
    T3 = opt("l1_touch3", 0)
    if T3:
        A(f"s_cmp_eq_u32 s{S_WV}, 0"); A(f"s_cbranch_scc1 L_{name}_nt")
        A(f"s_cmp_eq_u32 s{S_TYPE}, 2"); A(f"s_cbranch_scc1 L_{name}_nt")
        A(f"s_load_dwordx2 s[44:45], s[0:1], {KARG['w1']}")
        A("v_lshrrev_b32 v3, 2, v1"); A("v_lshlrev_b32 v3, 3, v3"); A(f"v_add_u32 v3, s{S_MT}, v3")
        A("v_and_b32 v4, 3, v1"); A("v_lshlrev_b32 v4, 7, v4")
        A(f"s_sub_u32 s{S_T0}, s{S_WV}, 1")
        A(f"s_mul_i32 s{S_T1}, s{S_NT}, 448")
        A("s_waitcnt lgkmcnt(0)")
        A(f"s_add_u32 s44, s44, s{S_T1}"); A("s_addc_u32 s45, s45, 0"); A(f"s_sub_u32 s{S_T1}, {1024 * 7168}, s{S_T1}")
        srd(A, S_O, "s44", "s45", f"s{S_T1}")
        A("v_mul_u32_u24 v5, 7168, v3"); A("v_add_u32 v5, v5, v4")
        A(f"s_mul_i32 s{S_T2}, s{S_T0}, {128 * 7168}")
        for k in range(3):
            A(f"buffer_load_dword v21, v5, s[{S_O}:{S_O+3}], s{S_T2} offen")
            if k < 2: A(f"s_add_u32 s{S_T2}, s{S_T2}, {3 * 128 * 7168}")
        if T3 >= 2:
            A("v_mul_u32_u24 v5, 6144, v3"); A("v_add_u32 v5, v5, v4")
            A(f"s_mul_i32 s{S_T2}, s{S_T0}, {128 * 6144}")
            for k in range(3):
                A(f"buffer_load_dword v21, v5, s[{S_W}:{S_W+3}], s{S_T2} offen")
                if k < 2: A(f"s_add_u32 s{S_T2}, s{S_T2}, {3 * 128 * 6144}")
        A.label(f"L_{name}_nt")
    A("v_and_b32 v3, 15, v1"); A("v_lshrrev_b32 v4, 4, v1")
    A("v_lshrrev_b32 v5, 2, v3"); A("v_lshl_add_u32 v5, v4, 3, v5"); A(f"v_mul_u32_u24 v5, {PITCH}, v5")
    A("v_and_b32 v6, 3, v3"); A("v_lshl_add_u32 v5, v6, 3, v5")
    A("v_and_b32 v6, 1, v4"); A("v_lshlrev_b32 v6, 5, v6")
    A(f"v_add_u32 {v(V_TRE)}, v5, v6"); A(f"v_sub_u32 {v(V_TRO)}, v5, v6")
    A(f"v_lshrrev_b32 v5, 3, v3"); A(f"v_mul_u32_u24 v5, {XN_OCT}, v5")
    A("v_lshl_add_u32 v5, v4, 7, v5"); A("v_and_b32 v6, 7, v3")
    A(f"v_lshl_add_u32 {v(V_X)}, v6, 4, v5")
    A("v_mov_b32 v17, v1")
    for i in range(7): A(f"v_mov_b32 {v(V_DMA + i)}, {v(10 + i)}")
    A(f"s_lshr_b32 s{S_XO}, s{S_TOK}, 3"); A(f"s_mul_i32 s{S_XO}, s{S_XO}, {XN_OCT}")
    for tb in range(1, 4): A(f"s_add_u32 s{S_XO + tb}, s{S_XO}, {tb * 2 * XN_OCT}")
    A(f"s_cmp_eq_u32 s{S_WV}, 0")
    A(f"s_cbranch_scc0 L_{name}_got")
    A(f"s_lshl_b32 s{S_T0}, s{S_MT}, 5")
    A(f"v_mov_b32 v19, s{S_T0}"); A("v_mov_b32 v20, 0"); A("v_cmp_eq_u32 vcc, 0, v17"); A("s_nop 1"); A("v_cndmask_b32 v19, v19, v20, vcc")
    A(f"s_mov_b32 s{S_T1}, 0x8000")
    if opt('lnsleep0', 0): A(f"s_sleep {opt('lnsleep0', 0)}")
    A.label(f"L_{name}_poll")
    A(f"buffer_load_dword v18, v19, s[{S_D}:{S_D+3}], 0 offen sc1")
    A("s_waitcnt vmcnt(0)")
    A("v_cmp_le_u32 vcc, 32, v18")
    A(f"s_sub_u32 s{S_T1}, s{S_T1}, 1")
    A(f"s_cmp_eq_u32 s{S_T1}, 0")
    A(f"s_cbranch_scc1 L_{name}_got")
    A("s_nop 1")
    A("s_cmp_eq_u64 vcc, -1")
    A(f"s_cbranch_scc1 L_{name}_got")
    A(f"s_sleep {opt('lnsleep', 3)}")
    A(f"s_branch L_{name}_poll")
    A.label(f"L_{name}_got")
    A("s_waitcnt vmcnt(0)")
    A("s_barrier")
    stamp(A, 'ln_got')
    prol.clear()
    for s_ in range(XD):
        for tb in range(4):
            A(x_load(s_ % 4, tb, (s_ % 4) * 512))
    A(f"s_movk_i32 s{S_IT}, 8")
    sc = " sc1"
    c = (32 ** -0.5) * math.log2(math.e)
    def start_loop(tag, ncb, swap):
        for r in tr_main(0, ncb): A(r)
        A("s_waitcnt vmcnt(0)")
        stamp(A, 1)
        gen_mainloop(A, name + tag, ncb, swap, PD, XD, prol)
        A("s_waitcnt vmcnt(0)")
        A("s_barrier")
        stamp(A, 2)
        A("v_and_b32 v3, 15, v17"); A("v_lshrrev_b32 v4, 4, v17")
        A("v_lshrrev_b32 v7, 1, v4"); A("v_lshlrev_b32 v7, 10, v7")
        A("v_and_b32 v8, 1, v4"); A("v_lshl_add_u32 v7, v8, 9, v7")
    def qkv_srd():
        A(f"s_add_u32 s4, s{S_WS}, {QKV_OFF}"); A(f"s_addc_u32 s5, s{S_WS+1}, 0")
        srd(A, S_O, "s4", "s5", 96 * QKV_BLK)
    def qk_epi(ps):
        A(f"s_add_u32 s4, s{S_WS}, {NRM_OFF}"); A(f"s_addc_u32 s5, s{S_WS+1}, 0")
        srd(A, S_N, "s4", "s5", 512 * 1024)
        A("v_lshl_add_u32 v8, v3, 4, v7")
        A("v_lshrrev_b32 v9, 3, v3"); A("v_lshlrev_b32 v9, 8, v9")
        A("v_and_b32 v10, 7, v3"); A("v_lshl_add_u32 v9, v10, 4, v9")
        A("v_add_u32 v9, v9, v7")
        A("v_lshlrev_b32 v10, 2, v17")
        A("v_and_b32 v11, 1, v4"); A("v_cmp_eq_u32 s[48:49], 1, v11")
        A("v_cmp_le_u32 s[60:61], 2, v4")
        N0 = 24
        for p in ps:
            A(f"s_add_u32 s{S_T0}, s{S_BLK0}, {p}")
            A(f"s_cmp_lt_u32 s{S_T0}, 32")
            A(f"s_cselect_b32 s44, {fbits(c)}, 1.0")
            A(f"s_cselect_b32 s46, 0, 1")
            A("s_mov_b32 s45, s44")
            A(f"s_mul_i32 s{S_T1}, s{S_T0}, {QKV_BLK}")
            A(f"s_lshl_b32 s{S_T2}, s{S_TOK}, 6")
            A(f"s_add_u32 s{S_T1}, s{S_T1}, s{S_T2}")
            A(f"s_lshl_b32 s{S_T2}, s{S_T0}, 13")
            A(f"s_lshl_b32 s{S_T3}, s{S_TOK}, 2")
            A(f"s_add_u32 s{S_T2}, s{S_T2}, s{S_T3}")
            A(f"s_cmp_eq_u32 s46, 1")
            A("s_cselect_b64 vcc, -1, 0")
            A("s_lshr_b32 s47, 256, s46")
            A(f"s_add_u32 s47, s47, s{S_T1}")
            A("v_cndmask_b32 v11, v8, v9, vcc")
            EF = [(acc(2 * p, tb), acc(2 * p + 1, tb)) for tb in range(4)]
            for (E, F) in EF:
                for R in (E, E + 2, F, F + 2): A(f"v_pk_mul_f32 {v(R, 2)}, {v(R, 2)}, s[44:45]")
            for tb, (E, F) in enumerate(EF): A(f"v_pk_mul_f32 {v(N0 + 2 * tb, 2)}, {v(E, 2)}, {v(E, 2)}")
            for k in range(3):
                for tb, (E, F) in enumerate(EF):
                    R = (E + 2, F, F + 2)[k]
                    A(f"v_pk_fma_f32 {v(N0 + 2 * tb, 2)}, {v(R, 2)}, {v(R, 2)}, {v(N0 + 2 * tb, 2)}")
            for tb, (E, F) in enumerate(EF):
                A(f"v_cvt_pk_bf16_f32 {v(E)}, {v(E)}, {v(E + 1)}")
                A(f"v_cvt_pk_bf16_f32 {v(E + 1)}, {v(E + 2)}, {v(E + 3)}")
                A(f"v_cvt_pk_bf16_f32 {v(E + 2)}, {v(F)}, {v(F + 1)}")
                A(f"v_cvt_pk_bf16_f32 {v(E + 3)}, {v(F + 2)}, {v(F + 3)}")
                so = "s47" if tb & 1 else f"s{S_T1}"
                A(f"buffer_store_dwordx4 {v(E, 4)}, v11, s[{S_O}:{S_O+3}], {so} offen offset:{(tb >> 1) * 2048}{sc}")
            for tb in range(4): A(f"v_add_f32 {v(N0 + 2 * tb)}, {v(N0 + 2 * tb)}, {v(N0 + 2 * tb + 1)}")
            for tb in range(4): A(f"v_mov_b32 {v(20 + tb)}, {v(N0 + 2 * tb)}")
            for tb in range(4): A(f"v_permlane32_swap_b32 {v(N0 + 2 * tb)}, {v(20 + tb)}")
            for tb in range(4): A(f"v_add_f32 {v(N0 + 2 * tb)}, {v(N0 + 2 * tb)}, {v(20 + tb)}")
            for tb in range(4): A(f"v_mov_b32 {v(20 + tb)}, {v(N0 + 2 * tb)}")
            for tb in range(4): A(f"v_permlane16_swap_b32 {v(N0 + 2 * tb)}, {v(20 + tb)}")
            for tb in range(4): A(f"v_add_f32 {v(N0 + 2 * tb)}, {v(N0 + 2 * tb)}, {v(20 + tb)}")
            A(f"v_cndmask_b32 {v(N0)}, {v(N0)}, {v(N0 + 2)}, s[48:49]")
            A(f"v_cndmask_b32 {v(N0 + 4)}, {v(N0 + 4)}, {v(N0 + 6)}, s[48:49]")
            A(f"v_cndmask_b32 {v(N0)}, {v(N0)}, {v(N0 + 4)}, s[60:61]")
            A(f"buffer_store_dword {v(N0)}, v10, s[{S_N}:{S_N+3}], s{S_T2} offen sc1")
    def v_epi(cbs):
        A("v_lshl_add_u32 v6, v3, 4, v7")
        A(f"s_mul_i32 s{S_T3}, s{S_BLK0}, {QKV_BLK}")
        A(f"s_lshl_b32 s47, s{S_TOK}, 6")
        A(f"s_add_u32 s{S_T3}, s{S_T3}, s47")
        for kb in range(2):
            for cb in cbs:
                E = acc(cb, 2 * kb); F = acc(cb, 2 * kb + 1)
                A(f"v_cvt_pk_bf16_f32 {v(E)}, {v(E)}, {v(E + 1)}")
                A(f"v_cvt_pk_bf16_f32 {v(E + 1)}, {v(E + 2)}, {v(E + 3)}")
                A(f"v_cvt_pk_bf16_f32 {v(E + 2)}, {v(F)}, {v(F + 1)}")
                A(f"v_cvt_pk_bf16_f32 {v(E + 3)}, {v(F + 2)}, {v(F + 3)}")
                A(f"s_add_u32 s47, s{S_T3}, {(cb >> 1) * QKV_BLK + kb * 2048}")
                A(f"buffer_store_dwordx4 {v(E, 4)}, v6, s[{S_O}:{S_O+3}], s47 offen offset:{(cb & 1) * 256}{sc}")
    A(f"s_cmp_eq_u32 s{S_TYPE}, 2"); A(f"s_cbranch_scc1 L_{name}_hpath")
    A(f"s_cmp_eq_u32 s{S_TYPE}, 1"); A(f"s_cbranch_scc1 L_{name}_vpath")
    A(f"s_cmp_eq_u32 s{S_TYPE}, 3"); A(f"s_cbranch_scc1 L_{name}_mpath")
    start_loop("_n", 12, lambda cb: False)
    qkv_srd(); qk_epi(range(6))
    A(f"s_branch L_{name}_sigqkv")
    A.label(f"L_{name}_mpath")
    start_loop("_m", 12, lambda cb: cb >= 8)
    qkv_srd(); v_epi(range(8, 12)); qk_epi(range(4))
    A(f"s_branch L_{name}_sigqkv")
    A.label(f"L_{name}_vpath")
    start_loop("_v", 12, lambda cb: True)
    qkv_srd(); v_epi(range(12))
    A(f"s_branch L_{name}_sigqkv")
    A.label(f"L_{name}_hpath")
    start_loop("_h", 14, lambda cb: False)
    A(f"s_add_u32 s4, s{S_WS}, {AH_OFF}"); A(f"s_addc_u32 s5, s{S_WS+1}, 0")
    srd(A, S_O, "s4", "s5", 64 * AH_TB)
    A("v_lshl_add_u32 v7, v3, 4, v7")
    A(f"s_lshr_b32 s{S_T1}, s{S_TOK}, 5")
    A(f"s_mul_i32 s{S_T1}, s{S_T1}, {AH_TB}")
    A(f"s_lshl_b32 s{S_T2}, s{S_BLK0}, 11")
    A(f"s_add_u32 s{S_T1}, s{S_T1}, s{S_T2}")
    A(f"s_add_u32 s{S_T1}, s{S_T1}, {32 * 2048}")
    A(f"s_mov_b32 s44, {fbits(-math.log2(math.e))}"); A("s_mov_b32 s45, s44")
    A("s_mov_b32 s46, 1.0"); A("s_mov_b32 s47, 1.0")
    TP = [8, 10, 12, 14]
    for p in range(7):
        for tb in range(4):
            E = acc(2 * p, tb); F = acc(2 * p + 1, tb)
            prs = [E, E + 2, F, F + 2]
            for k, R in enumerate(prs): A(f"v_pk_mul_f32 {v(TP[k], 2)}, {v(R, 2)}, s[44:45]")
            for k in range(4):
                A(f"v_exp_f32 {v(TP[k])}, {v(TP[k])}"); A(f"v_exp_f32 {v(TP[k] + 1)}, {v(TP[k] + 1)}")
            for k in range(4): A(f"v_pk_add_f32 {v(TP[k], 2)}, {v(TP[k], 2)}, s[46:47]")
            for k in range(4):
                A(f"v_rcp_f32 {v(TP[k])}, {v(TP[k])}"); A(f"v_rcp_f32 {v(TP[k] + 1)}, {v(TP[k] + 1)}")
            if not ((4 * p + tb) & 1 and opt("hdefer", 0)):
                A(f"s_add_u32 s{S_T2}, s{S_T1}, {(tb >> 1) * AH_TB + p * 2048 + (tb & 1) * 256}")
            for k, R in enumerate(prs): A(f"v_pk_mul_f32 {v(R, 2)}, {v(R, 2)}, {v(TP[k], 2)}")
            A(f"v_cvt_pk_bf16_f32 {v(E)}, {v(E)}, {v(E + 1)}")
            A(f"v_cvt_pk_bf16_f32 {v(E + 1)}, {v(E + 2)}, {v(E + 3)}")
            A(f"v_cvt_pk_bf16_f32 {v(E + 2)}, {v(F)}, {v(F + 1)}")
            A(f"v_cvt_pk_bf16_f32 {v(E + 3)}, {v(F + 2)}, {v(F + 3)}")
            q = 4 * p + tb
            if q & 1 and opt("hdefer", 0):
                for r in range(4): A(f"v_accvgpr_write_b32 {a(128 + 4 * (q >> 1) + r)}, {v(E + r)}")
            else:
                A(f"buffer_store_dwordx4 {v(E, 4)}, v7, s[{S_O}:{S_O+3}], s{S_T2} offen{sc}")
    A(f"s_mov_b32 s55, s{S_T1}")
    A(f"s_mov_b32 s{S_HSIG}, s{S_MT}")
    A(f"s_branch {fin}")
    A.label(f"L_{name}_sigqkv")
    A(f"s_add_u32 s4, s{S_WS}, {FLAGS_OFF + PRIV_LINE * 128}"); A(f"s_addc_u32 s5, s{S_WS+1}, 0")
    srd(A, S_N, "s4", "s5", 256 * 128)
    A(f"s_mul_i32 s{S_T0}, s{S_NT}, 6")
    A("v_lshrrev_b32 v3, 3, v17"); A(f"v_add_u32 v3, s{S_T0}, v3")
    A("v_cmp_gt_u32 vcc, 48, v17"); A("s_nop 3"); A("s_mov_b64 s[44:45], vcc")
    A("v_and_b32 v3, 31, v3")
    A("v_lshrrev_b32 v4, 2, v3")
    A("v_and_b32 v3, 3, v3"); A("v_lshlrev_b32 v3, 3, v3"); A("v_and_b32 v5, 7, v17"); A("v_or_b32 v3, v3, v5")
    A("v_lshl_add_u32 v3, v3, 3, v4"); A("v_lshlrev_b32 v3, 7, v3")
    A("v_mov_b32 v4, 1")
    A("s_waitcnt vmcnt(0)")
    A("s_barrier")
    A(f"s_cmp_eq_u32 s{S_WV}, 0")
    A(f"s_cbranch_scc0 L_{name}_nosq")
    A("s_mov_b64 exec, s[44:45]")
    A(f"s_cbranch_execz L_{name}_nosq2")
    A(f"buffer_atomic_add v4, v3, s[{S_N}:{S_N+3}], 0 offen")
    A.label(f"L_{name}_nosq2")
    A("s_mov_b64 exec, -1")
    A.label(f"L_{name}_nosq")
    A(f"s_mov_b32 s{S_HSIG}, -1")
    A(f"s_load_dwordx2 s[4:5], s[0:1], {KARG['wo']}")
    A(f"s_load_dwordx2 s[6:7], s[0:1], {KARG['w2']}")
    A(f"s_lshl_b32 s{S_T0}, s{S_NT}, 3"); A(f"s_add_u32 s{S_T0}, s{S_T0}, s{S_MT}")
    A(f"s_lshl_b32 s{S_T1}, s{S_WV}, 6"); A(f"v_add_u32 v9, s{S_T1}, v17"); A("v_lshlrev_b32 v9, 7, v9")
    A("s_waitcnt lgkmcnt(0)")
    A(f"s_mul_i32 s{S_T1}, s{S_T0}, 16384"); A(f"s_add_u32 s4, s4, s{S_T1}"); A("s_addc_u32 s5, s5, 0")
    srd(A, S_W, "s4", "s5", 16384)
    A(f"buffer_load_dword v10, v9, s[{S_W}:{S_W+3}], 0 offen")
    A(f"s_mul_i32 s{S_T1}, s{S_T0}, 57344"); A(f"s_add_u32 s6, s6, s{S_T1}"); A("s_addc_u32 s7, s7, 0")
    srd(A, S_W, "s6", "s7", 57344)
    A(f"buffer_load_dword v10, v9, s[{S_W}:{S_W+3}], 0 offen")
    A(f"s_mov_b32 s{S_T1}, 32768")
    A(f"buffer_load_dword v10, v9, s[{S_W}:{S_W+3}], s{S_T1} offen")
    A.label(fin)
    stamp(A, 'epi_end')
```

```python
from asmlib import *
from layout import *
from vmsim import VmSim
import math

R = 8
V_L16 = 2
Q = {'a': 8, 'b': 16}
S = {'a': 32, 'b': 48}
P = {'a': 64, 'b': 72}
O = {'a': 80, 'b': 96}
L = {'a': 112, 'b': 128}
SEL = 144
M = {'a': 148, 'b': 149}
LS = {'a': 150, 'b': 151}
def kreg(slot, j): return slot * 16 + j * 4
def vreg(slot, j): return slot * 16 + 8 + j * 4
ACC = 152
def gacc(cb): return ACC + cb * 16
V_TR = 216
V_WD = 232
V_F = 221
V_FA = 222
NV = 232
def areg(slot, j): return (128 + (slot * 2 + j) * 4) if slot < 8 else ((slot - 8) * 2 + j) * 4
def wreg(buf, j, cb): return 192 + (buf * 8 + j * 4 + cb) * 4
WSLOT = 32768
LDS_BYTES = 4 * WSLOT
S_K = 8; S_V = 12; S_Q = 16; S_O = 20; S_N = 24
S_KOFF = 28; S_IT = 29; S_WV = 30; S_HEAD = 31; S_TB = 32
S_WS = 34
S_GW = 40; S_GA = 44; S_F = 48
S_WO = 52
S_WOFF = 56; S_AOFF = 57; S_M0 = 58; S_WST = 59; S_AST = 60; S_HALF = 61; S_MT = 62; S_NT = 63
S_WSW = 88; S_ASW = 89; S_AEND = 90; S_FIRST = 91; S_GOTP = 92; S_TD = 93; S_NIT = 94
S_QT = 33

def qk(x, slot, j):
    c = "0" if j == 0 else v(S[x], 16)
    return f"v_mfma_f32_32x32x16_bf16 {v(S[x],16)}, {a(kreg(slot, j),4)}, {v(Q[x]+4*j,4)}, {c}"
def pv(x, slot, j):
    return f"v_mfma_f32_32x32x16_bf16 {v(O[x],16)}, {a(vreg(slot, j),4)}, {v(P[x]+4*j,4)}, {v(O[x],16)}"
def rs(x, j):
    if opt("rs32", 0):
        return f"v_mfma_f32_32x32x16_bf16 {v(L[x],16)}, {v(SEL,4)}, {v(P[x]+4*j,4)}, {v(L[x],16)}"
    return f"v_mfma_f32_16x16x32_bf16 {v(L[x],4)}, {v(SEL,4)}, {v(P[x]+4*j,4)}, {v(L[x],4)}"
def kload(slot, j, off, so=None):
    return f"buffer_load_dwordx4 {a(kreg(slot, j),4)}, {v(V_L16)}, s[{S_K}:{S_K+3}], s{so or S_KOFF} offen offset:{off + j*1024} sc1"
def vload(slot, j, off, so=None):
    return f"buffer_load_dwordx4 {a(vreg(slot, j),4)}, {v(V_L16)}, s[{S_V}:{S_V+3}], s{so or S_KOFF} offen offset:{off + j*1024} sc1"

def half(A, x, mf, extra):
    e = [f"v_exp_f32 {v(S[x]+i)}, {v(S[x]+i)}" for i in range(16)]
    c = [f"v_cvt_pk_bf16_f32 {v(P[x]+i)}, {v(S[x]+2*i)}, {v(S[x]+2*i+1)}" for i in range(8)]
    seq = [e[0], e[1], e[2], e[3], c[0], e[4], e[5], c[1], e[6], e[7], c[2], e[8], e[9], c[3],
           e[10], e[11], c[4], e[12], e[13], c[5], e[14], e[15], c[6], c[7]]
    mpos = opt("mpos", [0, 3, 8, 12, 17, 21]) if not opt("rs32", 0) else [0, 4, 8, 12, 16, 20]
    k = 0
    for i, ins in enumerate(seq):
        if k < len(mf) and i == mpos[k]:
            A(mf[k]); k += 1
        A(ins)
        for z in extra.get(i, []): A(z)

G16 = lambda: opt("g16", 1)
V_TR16 = 240
V_GA = 248
def wreg16(buf, cb): return 192 + (buf * 8 + cb) * 4
def gacc16(cb, tb): return ACC + (cb * 2 + tb) * 4
def g_tr(n):
    st = (n >> 2) & 1; sub = n & 3
    out = []
    if G16():
        for cb in range(8):
            for h in range(2):
                out.append(f"ds_read_b64_tr_b16 {a(wreg16(n & 1, cb) + 2 * h, 2)}, {v(V_TR16 + cb)} offset:{st * WSLOT + sub * 8192 + h * 4096}")
        return out
    for j in range(2):
        for cb in range(4):
            for h in range(2):
                out.append(f"ds_read_b64_tr_b16 {a(wreg(n & 1, j, cb) + 2 * h, 2)}, {v(V_TR + cb)} offset:{st * WSLOT + sub * 8192 + j * 2048 + h * 4096}")
    return out
def g_aload(slot, j, imm):
    if G16():
        return f"buffer_load_dwordx4 {a(areg(slot, j), 4)}, {v(V_GA)}, s[{S_GA}:{S_GA+3}], s{S_AOFF} offen offset:{imm - j * 1024 + j * 256} sc1"
    return f"buffer_load_dwordx4 {a(areg(slot, j), 4)}, {v(V_L16)}, s[{S_GA}:{S_GA+3}], s{S_AOFF} offen offset:{imm} sc1"
def g_dma(i):
    pre = [f"s_add_u32 m0, s{S_M0}, 4096", "s_nop 0"] if i == 4 else []
    return pre + [f"buffer_load_dwordx4 {v(V_WD + i)}, s[{S_GW}:{S_GW+3}], s{S_WOFF} offen offset:{(i & 3) * 1024} lds"]
def g_next_stage(switch=False):
    out = [f"s_add_u32 s{S_WOFF}, s{S_WOFF}, {128 * 2048}"]
    if switch:
        out += [f"s_cmp_eq_u32 s{S_IT}, s{S_AEND}",
                f"s_cselect_b32 s{S_WOFF}, s{S_WSW}, s{S_WOFF}",
                f"s_cselect_b32 s{S_GW}, s{S_WO}, s{S_GW}",
                f"s_cselect_b32 s{S_GW+1}, s{S_WO+1}, s{S_GW+1}",
                f"s_cselect_b32 s{S_GW+2}, s{S_WO+2}, s{S_GW+2}"]
    out += [f"s_add_u32 s{S_M0}, s{S_M0}, {WSLOT}",
            f"s_and_b32 s{S_M0}, s{S_M0}, {4 * WSLOT - 1}",
            f"s_mov_b32 m0, s{S_M0}", "s_nop 0"]
    return out
def g_flagload():
    return f"buffer_load_dword {v(V_F)}, {v(V_FA)}, s[{S_F}:{S_F+3}], 0 offen sc1"

def spin(A, name, tag, lane, target, st1, st2):
    A(f"s_mov_b32 s{st1}, 0x8000")
    A.label(f"L_{name}_spin{tag}")
    A(g_flagload())
    A("s_waitcnt vmcnt(0)")
    A(f"v_readlane_b32 s{st2}, {v(V_F)}, {lane}")
    A(f"s_sub_u32 s{st1}, s{st1}, 1")
    A(f"s_cmp_eq_u32 s{st1}, 0")
    A(f"s_cbranch_scc1 L_{name}_spun{tag}")
    A(f"s_cmp_ge_u32 s{st2}, {target}")
    A(f"s_cbranch_scc1 L_{name}_spun{tag}")
    A(f"s_sleep {opt('spinsleep', 4)}")
    A(f"s_branch L_{name}_spin{tag}")
    A.label(f"L_{name}_spun{tag}")

S_HSIG = 100
V_H = 231
V_HA = 230
def gen_l2(name, A):
    ASYM = opt("gasym", 0)
    PD = 4; XD = 15; NB = 16 if ASYM else 24
    fin = f"L_{name}_fin"
    GS = opt("g_stamps")
    A(f"s_load_dwordx2 s[{S_WS}:{S_WS+1}], s[0:1], {KARG['ws']}")
    A(f"s_load_dwordx2 s[{S_WO}:{S_WO+1}], s[0:1], {KARG['wo']}")
    A(f"s_load_dwordx2 s[4:5], s[0:1], {KARG['w2']}")
    A(f"s_load_dwordx2 s[96:97], s[0:1], {KARG['x']}")
    A(f"s_load_dwordx2 s[98:99], s[0:1], {KARG['out']}")
    A("s_and_b32 s3, s2, 7")
    A("s_lshr_b32 s6, s2, 3")
    A("s_lshl_b32 s7, s3, 2")
    A("s_lshr_b32 s36, s6, 3")
    A(f"s_add_u32 s{S_HEAD}, s7, s36")
    A(f"s_and_b32 s{S_QT}, s6, 7")
    if opt("gmap", 0):
        A(f"s_and_b32 s{S_HALF}, s3, 1")
        A("s_lshr_b32 s7, s3, 1"); A("s_and_b32 s36, s7, 1"); A("s_lshl_b32 s36, s36, 3"); A("s_and_b32 s37, s6, 7")
        A(f"s_add_u32 s{S_MT}, s36, s37")
        A("s_lshr_b32 s7, s7, 1"); A("s_lshl_b32 s7, s7, 2"); A("s_lshr_b32 s36, s6, 3")
        A(f"s_add_u32 s{S_NT}, s7, s36")
    else:
        if ASYM:
            A(f"s_lshr_b32 s{S_HALF}, s6, 4"); A("s_and_b32 s6, s6, 15")
        else:
            A(f"s_and_b32 s{S_HALF}, s6, 1")
            A("s_lshr_b32 s6, s6, 1")
        A("s_and_b32 s7, s3, 3"); A("s_lshl_b32 s7, s7, 2"); A("s_and_b32 s36, s6, 3")
        A(f"s_add_u32 s{S_MT}, s7, s36")
        A("s_lshr_b32 s7, s3, 2"); A("s_lshl_b32 s7, s7, 2"); A("s_lshr_b32 s36, s6, 2")
        A(f"s_add_u32 s{S_NT}, s7, s36")
    A("v_mbcnt_lo_u32_b32 v1, -1, 0"); A("v_mbcnt_hi_u32_b32 v1, -1, v1")
    A(f"v_lshlrev_b32 {v(V_L16)}, 4, v1")
    A(f"s_lshl_b32 s6, s{S_QT}, 3")
    A(f"s_lshl_b32 s7, s{S_WV}, 1")
    A(f"s_add_u32 s{S_TB}, s6, s7")
    A("s_waitcnt lgkmcnt(0)")
    WS = f"s{S_WS}"; WS1 = f"s{S_WS+1}"
    A(f"s_mul_i32 s6, s{S_HEAD}, {QKV_BLK}")
    A(f"s_add_u32 s36, {WS}, {QKV_OFF}"); A(f"s_addc_u32 s37, {WS1}, 0")
    A("s_add_u32 s36, s36, s6"); A("s_addc_u32 s37, s37, 0")
    srd(A, S_Q, "s36", "s37", 131072)
    A(f"s_add_u32 s36, s36, {32*QKV_BLK}"); A("s_addc_u32 s37, s37, 0")
    srd(A, S_K, "s36", "s37", 131072)
    A(f"s_add_u32 s36, s36, {32*QKV_BLK}"); A("s_addc_u32 s37, s37, 0")
    A("s_sub_u32 s38, s36, 2048"); A("s_subb_u32 s39, s37, 0")
    srd(A, S_V, "s38", "s39", 131072 + 2048)
    A(f"s_add_u32 s36, {WS}, {NRM_OFF}"); A(f"s_addc_u32 s37, {WS1}, 0")
    srd(A, S_N, "s36", "s37", 512*1024)
    A(f"s_lshl_b32 s6, s{S_NT}, 8")
    A(f"s_add_u32 s{S_WO}, s{S_WO}, s6"); A(f"s_addc_u32 s{S_WO+1}, s{S_WO+1}, 0")
    A(f"s_and_b32 s{S_WO+1}, s{S_WO+1}, 0xffff")
    A(f"s_sub_u32 s{S_WO+2}, {1024*2048}, s6")
    A("s_add_u32 s4, s4, s6"); A("s_addc_u32 s5, s5, 0")
    A(f"s_sub_u32 s7, {3584*2048}, s6")
    srd(A, S_GW, "s4", "s5", "s7")
    A(f"s_add_u32 s36, {WS}, {AH_OFF}"); A(f"s_addc_u32 s37, {WS1}, 0")
    A(f"s_lshl_b32 s6, s{S_MT}, 2"); A(f"s_add_u32 s6, s6, s{S_WV}")
    A(f"s_mul_i32 s6, s6, {AH_TB}")
    A("s_add_u32 s36, s36, s6"); A("s_addc_u32 s37, s37, 0")
    srd(A, S_GA, "s36", "s37", AH_TB)
    A(f"s_add_u32 s36, {WS}, {FLAGS_OFF}"); A(f"s_addc_u32 s37, {WS1}, 0")
    srd(A, S_F, "s36", "s37", NFLAGS * 128)
    if ASYM:
        A(f"s_cmp_eq_u32 s{S_HALF}, 0")
        A(f"s_cselect_b32 s{S_AOFF}, 32, 0x50"); A(f"s_lshl_b32 s{S_AOFF}, s{S_AOFF}, 11")
        A(f"s_cmp_eq_u32 s{S_HALF}, 0")
        A(f"s_cselect_b32 s{S_WOFF}, 0, {1536*2048}")
        A(f"s_cselect_b32 s{S_AEND}, 3, 0x3e8")
        A(f"s_cselect_b32 s{S_NIT}, 5, 4")
        A(f"s_mov_b32 s{S_WSW}, 0"); A(f"s_mov_b32 s{S_ASW}, 0")
    else:
        A(f"s_mul_i32 s6, s{S_HALF}, 56"); A("s_add_u32 s6, s6, 32"); A(f"s_lshl_b32 s{S_AOFF}, s6, 11")
        A(f"s_mul_i32 s{S_WOFF}, s{S_HALF}, {1792*2048}")
        A(f"s_lshl_b32 s{S_WSW}, s{S_HALF}, 20")
        A(f"s_lshl_b32 s{S_ASW}, s{S_HALF}, 15")
        A(f"s_add_u32 s6, s{S_HALF}, 1"); A("s_lshl_b32 s6, s6, 20"); A(f"s_lshl_b32 s7, s{S_NT}, 8")
        A(f"s_sub_u32 s{S_WO+2}, s6, s7")
        A(f"s_mov_b32 s{S_AEND}, 2"); A(f"s_mov_b32 s{S_NIT}, 3")
    A(f"s_lshr_b32 s6, s{S_MT}, 1"); A("s_lshl_b32 s6, s6, 7")
    A(f"s_lshl_b32 s7, s{S_MT}, 3"); A(f"s_add_u32 s7, s7, s{S_NT}"); A("s_add_u32 s7, s7, 8"); A("s_lshl_b32 s7, s7, 7")
    A(f"s_xor_b32 s36, s{S_HALF}, 1"); A("s_lshl_b32 s36, s36, 2"); A("s_add_u32 s7, s7, s36")
    A("v_mov_b32 v5, s7"); A("v_mov_b32 v6, s6"); A("v_cmp_eq_u32 vcc, 0, v1"); A("s_nop 1")
    A(f"v_cndmask_b32 {v(V_FA)}, v5, v6, vcc")
    A("v_lshrrev_b32 v5, 4, v1"); A("v_and_b32 v6, 15, v1")
    A(f"s_lshl_b32 s6, s{S_WV}, 5")
    if G16():
        for i in range(8):
            A(f"v_add_u32 v7, {4 * (i & 1)}, v5"); A("v_lshlrev_b32 v7, 1, v7"); A("v_xor_b32 v7, v7, v6")
            A("v_add_u32 v24, s6, v5"); A("v_lshlrev_b32 v24, 11, v24"); A("v_lshl_add_u32 v24, v7, 4, v24")
            A(f"v_add_u32 {v(V_WD + i)}, {4 * i * 2048 - (i & 3) * 1024}, v24")
        A("v_lshrrev_b32 v7, 2, v6"); A("v_lshl_add_u32 v7, v5, 2, v7")
        A("v_and_b32 v24, 7, v7")
        A("v_lshlrev_b32 v7, 8, v7"); A("v_and_b32 v25, 3, v6"); A("v_lshl_add_u32 v7, v25, 3, v7")
        for cb in range(8):
            A(f"v_xor_b32 v25, {cb}, v24"); A(f"v_lshl_add_u32 {v(V_TR16+cb)}, v25, 5, v7")
        A("v_lshrrev_b32 v7, 1, v5"); A("v_lshlrev_b32 v7, 10, v7"); A("v_and_b32 v24, 1, v5"); A("v_lshl_add_u32 v7, v24, 9, v7")
        A(f"v_lshl_add_u32 {v(V_GA)}, v6, 4, v7")
    else:
        A("v_lshlrev_b32 v7, 2, v5"); A("v_xor_b32 v7, v7, v6")
        A("v_add_u32 v24, s6, v5"); A("v_lshlrev_b32 v24, 11, v24")
        A(f"v_lshl_add_u32 {v(V_WD)}, v7, 4, v24")
        for i in range(1, 8): A(f"v_add_u32 {v(V_WD + i)}, {4 * i * 2048 - (i & 3) * 1024}, {v(V_WD)}")
        A("v_lshrrev_b32 v7, 2, v6")
        A("v_lshrrev_b32 v24, 5, v1"); A("v_lshl_add_u32 v24, v24, 2, v7")
        A("v_lshlrev_b32 v24, 8, v24")
        A("v_and_b32 v25, 1, v5"); A("v_lshl_add_u32 v24, v25, 5, v24")
        A("v_and_b32 v25, 3, v6"); A("v_lshl_add_u32 v24, v25, 3, v24")
        for cb in range(4):
            A(f"v_xor_b32 v25, {cb}, v7"); A(f"v_lshl_add_u32 {v(V_TR+cb)}, v25, 6, v24")
    for x in "ab":
        for r in range(16): A(f"v_mov_b32 {v(O[x]+r)}, 0")
        for r in range(16): A(f"v_mov_b32 {v(L[x]+r)}, 0")
    for r in range(8): A(f"v_mov_b32 {v(P['b']+r)}, 0")
    for r in range(64): A(f"v_mov_b32 {v(ACC+r)}, 0")
    if opt("rs32", 0):
        A("v_and_b32 v5, 31, v1"); A("v_cmp_eq_u32 vcc, 0, v5")
    else:
        A("v_and_b32 v5, 15, v1"); A("v_lshrrev_b32 v6, 4, v1"); A("v_and_b32 v6, 1, v6"); A("v_cmp_eq_u32 vcc, v5, v6")
    A("v_mov_b32 v7, 0x3f803f80")
    A("s_nop 0")
    for r in range(4): A(f"v_cndmask_b32 {v(SEL+r)}, 0, v7, vcc")
    A(f"s_add_u32 s36, {WS}, {FLAGS_OFF + PRIV_LINE * 128}"); A(f"s_addc_u32 s37, {WS1}, 0")
    srd(A, S_O, "s36", "s37", 256 * 128)
    A("s_lshl_b32 s101, s2, 7")
    stamp(A, 'pre_poll')
    A("s_mov_b32 s6, 0x8000")
    A.label(f"L_{name}_pq")
    A(f"buffer_load_dword v4, off, s[{S_O}:{S_O+3}], s101 sc1")
    A("s_waitcnt vmcnt(0)")
    A("v_readfirstlane_b32 s7, v4")
    A("s_sub_u32 s6, s6, 1")
    A("s_cmp_eq_u32 s6, 0")
    A(f"s_cbranch_scc1 L_{name}_pqd")
    A("s_cmp_ge_u32 s7, 24")
    A(f"s_cbranch_scc1 L_{name}_pqd")
    A("s_sleep 1")
    A(f"s_branch L_{name}_pq")
    A.label(f"L_{name}_pqd")
    stamp(A, 'poll_done')
    A(f"s_add_u32 s36, {WS}, {AH_OFF}"); A(f"s_addc_u32 s37, {WS1}, 0")
    srd(A, S_O, "s36", "s37", 64*AH_TB)
    A(f"s_lshl_b32 s6, s{S_TB}, 11")
    for xi, x in enumerate("ab"):
        for j in range(2):
            A(f"buffer_load_dwordx4 {v(Q[x]+4*j,4)}, {v(V_L16)}, s[{S_Q}:{S_Q+3}], s6 offen offset:{xi*2048 + j*1024} sc1")
    A(f"s_mov_b32 s{S_KOFF}, 0")
    A(kload(0, 0, 0)); A(kload(0, 1, 0))
    A(f"s_lshl_b32 s6, s{S_HEAD}, 13")
    A(f"s_lshl_b32 s7, s{S_TB}, 7")
    A("s_add_u32 s7, s7, s6")
    A("v_lshlrev_b32 v3, 2, v1")
    A(f"buffer_load_dword v4, v3, s[{S_N}:{S_N+3}], s7 offen sc1")
    A(f"s_add_u32 s6, s6, {32*8192}")
    for i in range(8):
        A(f"buffer_load_dwordx4 {v(32+4*i,4)}, {v(V_L16)}, s[{S_N}:{S_N+3}], s6 offen offset:{(i&3)*1024} sc1")
        if i == 3: A("s_add_u32 s6, s6, 4096")
    A(f"s_add_u32 s36, {WS}, {FLAGS_OFF + PRIV_LINE * 128}"); A(f"s_addc_u32 s37, {WS1}, 0")
    srd(A, S_N, "s36", "s37", 256 * 128)
    A("s_add_u32 s101, s101, 4")
    for r in range(8):
        A(f"v_accvgpr_write_b32 {a(vreg(7,0)+r)}, 0")
    NPRE0 = opt("kvpre", 4)
    for kk in range(1, NPRE0):
        vv = kk - 1
        A(f"s_mov_b32 s{S_KOFF}, {kk * 2048}")
        A(kload(kk % R, 0, 0)); A(kload(kk % R, 1, 0))
        A(vload(vv % R, 0, 0)); A(vload(vv % R, 1, 0))
    NRING = 4 * (NPRE0 - 1)
    A("v_and_b32 v5, 15, v1"); A("v_lshrrev_b32 v6, 4, v1")
    A("v_lshrrev_b32 v7, 1, v6"); A("v_lshlrev_b32 v7, 10, v7"); A("v_and_b32 v6, 1, v6"); A("v_lshl_add_u32 v7, v6, 9, v7")
    A(f"v_lshl_add_u32 {v(V_HA)}, v5, 4, v7")
    A(f"s_mov_b32 s{S_Q}, s{S_O}"); A(f"s_mov_b32 s{S_Q+1}, s{S_O+1}"); A(f"s_mov_b32 s{S_Q+3}, 0x00020000")
    A(f"s_cmp_lt_i32 s{S_HSIG}, 0")
    A(f"s_cselect_b32 s{S_Q+2}, 0, s{S_O+2}")
    A(f"s_waitcnt vmcnt({NRING})")
    stamp(A, 'norm_ok')
    for i in range(16): A(f"v_max_f32 {v(32+i)}, {v(32+i)}, {v(48+i)}")
    n = 16
    while n > 1:
        n //= 2
        for i in range(n): A(f"v_max_f32 {v(32+i)}, {v(32+i)}, {v(32+i+n)}")
    def wave_max(r, sd):
        for sh in (8, 4, 2, 1):
            A("s_nop 1")
            A(f"v_max_f32_dpp {v(r)}, {v(r)}, {v(r)} row_ror:{sh} row_mask:0xf bank_mask:0xf")
        A("s_nop 1")
        for k, ln in enumerate((0, 16, 32, 48)): A(f"v_readlane_b32 s{36+k}, {v(r)}, {ln}")
        A("s_nop 1")
        A("s_max_u32 s36, s36, s37"); A("s_max_u32 s38, s38, s39"); A(f"s_max_u32 s{sd}, s36, s38")
    wave_max(32, 6); wave_max(4, 7)
    A("v_mov_b32 v5, s6"); A("v_mul_f32 v5, s7, v5")
    A(f"v_mov_b32 v6, {fbits(4000.0)}")
    A("v_cmp_le_f32 vcc, v5, v6")
    A("s_nop 4")
    A(f"s_cbranch_vccz L_{name}_slow")
    def hspin(tag):
        A("s_mov_b32 s7, 0x8000")
        A.label(f"L_{name}_hs{tag}")
        A(f"buffer_load_dword {v(V_H)}, off, s[{S_N}:{S_N+3}], s101 sc1")
        A("s_waitcnt vmcnt(0)")
        A(f"v_readfirstlane_b32 s6, {v(V_H)}")
        A("s_sub_u32 s7, s7, 1"); A("s_cmp_eq_u32 s7, 0"); A(f"s_cbranch_scc1 L_{name}_hsd{tag}")
        A("s_cmp_ge_u32 s6, 64"); A(f"s_cbranch_scc1 L_{name}_hsd{tag}")
        A("s_sleep 4"); A(f"s_branch L_{name}_hs{tag}")
        A.label(f"L_{name}_hsd{tag}")
    def hsignal(back):
        A(f"s_cmp_lt_i32 s{S_HSIG}, 0")
        A(f"s_cbranch_scc1 {back}")
        A(f"s_lshl_b32 s6, s{S_HSIG}, 1")
        A("v_lshrrev_b32 v4, 4, v1"); A("v_and_b32 v4, 1, v4"); A("v_add_u32 v4, s6, v4")
        if opt("gmap", 0):
            A("v_lshrrev_b32 v5, 3, v1"); A("v_and_b32 v5, 1, v5"); A("v_lshlrev_b32 v5, 1, v5")
            A("v_lshrrev_b32 v6, 3, v4"); A("v_or_b32 v5, v5, v6"); A("v_lshlrev_b32 v5, 1, v5")
            A("v_and_b32 v6, 1, v1"); A("v_or_b32 v5, v5, v6")
            A("v_lshrrev_b32 v6, 1, v1"); A("v_and_b32 v6, 3, v6"); A("v_lshlrev_b32 v6, 3, v6")
            A("v_and_b32 v4, 7, v4"); A("v_or_b32 v6, v6, v4")
        else:
            A("v_lshrrev_b32 v5, 3, v1"); A("v_and_b32 v5, 1, v5"); A("v_lshlrev_b32 v5, 2, v5")
            A("v_lshrrev_b32 v6, 2, v4"); A("v_or_b32 v5, v5, v6")
            A("v_lshrrev_b32 v6, 1, v1"); A("v_and_b32 v6, 3, v6"); A("v_lshlrev_b32 v6, 2, v6")
            A("v_and_b32 v4, 3, v4"); A("v_or_b32 v6, v6, v4")
            if ASYM: A("v_and_b32 v4, 1, v1"); A("v_lshl_add_u32 v6, v4, 4, v6")
            else: A("v_and_b32 v4, 1, v1"); A("v_lshl_add_u32 v6, v6, 1, v4")
        A("v_lshl_add_u32 v6, v6, 3, v5"); A("v_lshlrev_b32 v6, 7, v6")
        A("v_mov_b32 v4, 1")
        A("s_mov_b64 s[36:37], exec"); A("s_mov_b32 exec_lo, -1"); A("s_mov_b32 exec_hi, 0")
        A(f"buffer_atomic_add v4, v6, s[{S_N}:{S_N+3}], 0 offen offset:4")
        A("s_mov_b64 exec, s[36:37]")
    def gemm_prologue_groups():
        g = []
        first = [f"s_lshl_b32 s{S_M0}, s{S_WV}, 13", f"s_mov_b32 m0, s{S_M0}", "s_nop 0"]
        def aload(s_):
            for j in range(2):
                grp = [g_aload(s_, j, (s_ % 2) * 2048 + j * 1024)]
                if s_ % 2 == 1 and j == 1: grp.append(f"s_add_u32 s{S_AOFF}, s{S_AOFF}, 4096")
                g.append((grp, ('A', s_, j)))
        for i in range(8): g.append(((first if i == 0 else []) + g_dma(i), ('W', 0, i)))
        for s_ in range(8): aload(s_)
        for st in (1, 2):
            for i in range(8): g.append(((g_next_stage() if i == 0 else []) + g_dma(i), ('W', st, i)))
        for s_ in range(8, XD): aload(s_)
        for i in range(2): g.append(((g_next_stage() if i == 0 else []) + g_dma(i), ('W', 3, i)))
        return g
    GPRO = [t for _, t in gemm_prologue_groups()]
    A(qk('a', 0, 0)); A(qk('a', 0, 1))
    A(f"s_mov_b32 s{S_KOFF}, {8*2048}")
    A(f"s_movk_i32 s{S_IT}, 6")
    A("s_nop 7"); A("s_nop 7")
    stamp(A, 3)
    KB4 = [S_KOFF, 36, 37, 38]
    def kv_bases(): return [f"s_add_u32 s{KB4[i]}, s{S_KOFF}, {i * 4096}" for i in range(1, 4)]
    p0, p1 = opt("kvp0", 9), opt("kvp1", 20)
    def hstore(i):
        q = 2 * i + 1; p, tb = q >> 2, q & 3
        return [f"s_add_u32 s6, s55, {(tb >> 1) * AH_TB + p * 2048 + (tb & 1) * 256}",
                f"buffer_store_dwordx4 {a(128 + 4 * i, 4)}, {v(V_HA)}, s[{S_Q}:{S_Q+3}], s6 offen sc1"]
    HD = opt("hdefer", 0)
    POS = [5, 9, 15, 20]
    NPRE = opt("kvpre", 4)
    def kl(kb, j, slot, so, off): return ([kload(slot, j, off, so)], ('K', kb, j))
    def vl(kb, j, slot, so, off): return ([vload(slot, j, off, so)], ('V', kb, j))
    def sched(kind, u, hf, gp):
        ops = []
        if kind == 'last':
            if u == 0 and hf == 'b':
                free = [5, 15]
                ops += [(9, *vl(63, 0, 7, S_KOFF, 0)), (20, *vl(63, 1, 7, S_KOFF, 0))]
            else: free = list(POS)
            for p_ in free:
                if gp: ops.append((p_, *gp.pop(0)))
            return sorted(ops, key=lambda o: o[0])
        base = 0 if kind == 'first' else None
        if hf == 'a':
            ops += [(9, [kload(u, 0, (u & 1) * 2048, KB4[u >> 1])], ('Kn', u, 0)), (20, [kload(u, 1, (u & 1) * 2048, KB4[u >> 1])], ('Kn', u, 1))]
            if kind == 'mid' and u == 0: ops.append((2, [f"buffer_load_dword {v(V_H)}, off, s[{S_N}:{S_N+3}], s101 sc1"], ('H',)))
        else:
            ops += [(9, [vload((u-1) % R, 0, (u & 1) * 2048, KB4[u >> 1])], ('Vn', u, 0)), (20, [vload((u-1) % R, 1, (u & 1) * 2048, KB4[u >> 1])], ('Vn', u, 1))]
        if kind == 'first':
            k = NPRE + 2 * u + (hf == 'b')
            if k <= 7:
                so = [f"s_mov_b32 s3, {k * 2048}"]
                ops += [(1, so + [kload(k % R, 0, 0, 3)], ('K', k, 0)), (3, [kload(k % R, 1, 0, 3)], ('K', k, 1)),
                        (5, [vload((k-1) % R, 0, 0, 3)], ('V', k - 1, 0)), (7, [vload((k-1) % R, 1, 0, 3)], ('V', k - 1, 1))]
            if HD and u < 7: ops.append((15, hstore(2 * u + (hf == 'b')), ('HS',)))
        return sorted(ops, key=lambda o: o[0])
    def retag(t, kb):
        if t[0] == 'Kn': return ('K', kb + 8, t[2])
        if t[0] == 'Vn': return ('V', kb + 7, t[2])
        return t
    sim = VmSim()
    for k in range(1, NPRE):
        for j in range(2): sim.issue(('K', k, j))
        for j in range(2): sim.issue(('V', k - 1, j))
    kvw = {}
    gp_sim = gemm_prologue_groups()
    for kb in range(64):
        u = kb & 7; kind = 'first' if kb < 8 else 'last' if kb >= 56 else 'mid'
        for o in sched(kind, u, 'a', gp_sim): sim.issue(retag(o[2], kb))
        need = sim.need(lambda t: t == ('V', kb, 1))
        if kb + 1 < 64: need = min(need, sim.need(lambda t: t == ('K', kb + 1, 1)))
        kvw[(kind, u)] = min(kvw.get((kind, u), 63), need)
        for o in sched(kind, u, 'b', gp_sim): sim.issue(retag(o[2], kb))
    assert not gp_sim
    def attn_body(kind):
        last = kind == 'last'
        gp = gemm_prologue_groups() if last else None
        for u in range(R):
            ea = {}
            for (p_, ins, _) in sched(kind, u, 'a', gp): ea.setdefault(p_, []).extend(ins)
            if u == 0 and not last: ea.setdefault(0, []).extend(kv_bases())
            half(A, 'a', [qk('b', u, 0), qk('b', u, 1), pv('b', (u-1) % R, 0), pv('b', (u-1) % R, 1), rs('b', 0), rs('b', 1)], ea)
            A(f"s_waitcnt vmcnt({min(kvw[(kind, u)], 63)})")
            eb = {}
            for (p_, ins, _) in sched(kind, u, 'b', gp): eb.setdefault(p_, []).extend(ins)
            mf = [qk('a', (u+1) % R, 0), qk('a', (u+1) % R, 1), pv('a', u, 0), pv('a', u, 1), rs('a', 0), rs('a', 1)]
            if last and u == R - 1: mf[0] = "s_nop 0"; mf[1] = "s_nop 0"
            half(A, 'b', mf, eb)
        if last: assert not gp
    attn_body('first')
    A(f"s_add_u32 s{S_KOFF}, s{S_KOFF}, {R*2048}")
    A.raw(".p2align 6")
    A.label(f"L_{name}_loop")
    attn_body('mid')
    A(f"s_add_u32 s{S_KOFF}, s{S_KOFF}, {R*2048}")
    A(f"s_sub_u32 s{S_IT}, s{S_IT}, 1")
    A(f"s_cmp_eq_u32 s{S_IT}, 5")
    A(f"s_cbranch_scc1 L_{name}_hsig")
    A.label(f"L_{name}_hback")
    A(f"s_cmp_lg_u32 s{S_IT}, 0")
    A(f"s_cbranch_scc1 L_{name}_loop")
    A(f"v_readfirstlane_b32 s6, {v(V_H)}")
    A("s_nop 3")
    A("s_cmp_ge_u32 s6, 64")
    A(f"s_cbranch_scc1 L_{name}_hok")
    hspin("f")
    A.label(f"L_{name}_hok")
    attn_body('last')
    stamp(A, 4)
    A("s_nop 1")
    A(pv('b', 7, 0)); A(pv('b', 7, 1)); A(rs('b', 0)); A(rs('b', 1))
    A("s_nop 7"); A("s_nop 7")
    if opt("rs32", 0):
        for x in "ab":
            A(f"v_mov_b32 {v(LS[x])}, {v(L[x])}"); A(f"v_mov_b32 v5, {v(L[x])}"); A("s_nop 1")
            A(f"v_permlane32_swap_b32 {v(LS[x])}, v5")
    else:
        A("v_and_b32 v3, 15, v1"); A("v_lshlrev_b32 v3, 2, v3")
        A("v_lshrrev_b32 v4, 4, v1"); A("v_and_b32 v4, 1, v4"); A("v_cmp_eq_u32 vcc, 1, v4")
        for x in "ab":
            A(f"ds_bpermute_b32 v5, v3, {v(L[x])}"); A(f"ds_bpermute_b32 v6, v3, {v(L[x]+1)}")
            A("s_waitcnt lgkmcnt(0)")
            A(f"v_cndmask_b32 {v(LS[x])}, v5, v6, vcc")
    A(f"s_branch L_{name}_afin")
    A.label(f"L_{name}_hsig")
    hsignal(f"L_{name}_hback")
    A(f"s_branch L_{name}_hback")
    A.label(f"L_{name}_slow")
    if opt("hdefer", 0):
        for i in range(14):
            for z in hstore(i): A(z)
    A("s_waitcnt vmcnt(0)")
    hsignal(f"L_{name}_slow2")
    A.label(f"L_{name}_slow2")
    for x in "ab":
        A(f"v_mov_b32 {v(M[x])}, 0xff800000"); A(f"v_mov_b32 {v(LS[x])}, 0")
    A(f"s_mov_b32 s{S_KOFF}, 0")
    A(f"s_movk_i32 s{S_IT}, 64")
    A.label(f"L_{name}_sloop")
    A(kload(0, 0, 0)); A(kload(0, 1, 0)); A(vload(0, 0, 2048)); A(vload(0, 1, 2048))
    A("s_waitcnt vmcnt(0)")
    for x in "ab":
        A(qk(x, 0, 0)); A(qk(x, 0, 1))
        A("s_nop 7"); A("s_nop 7")
        A(f"v_max3_f32 v3, {v(S[x])}, {v(S[x]+1)}, {v(M[x])}")
        for i in range(2, 16, 2): A(f"v_max3_f32 v3, {v(S[x]+i)}, {v(S[x]+i+1)}, v3")
        A("v_mov_b32 v4, v3"); A("s_nop 1")
        A("v_permlane32_swap_b32 v3, v4"); A("s_nop 1")
        A("v_max_f32 v3, v3, v4")
        A(f"v_sub_f32 v4, {v(M[x])}, v3")
        A("v_exp_f32 v4, v4")
        A(f"v_mov_b32 {v(M[x])}, v3")
        for i in range(16): A(f"v_sub_f32 {v(S[x]+i)}, {v(S[x]+i)}, v3")
        for i in range(16): A(f"v_exp_f32 {v(S[x]+i)}, {v(S[x]+i)}")
        for i in range(16): A(f"v_mul_f32 {v(O[x]+i)}, {v(O[x]+i)}, v4")
        for i in range(8): A(f"v_cvt_pk_bf16_f32 {v(P[x]+i)}, {v(S[x]+2*i)}, {v(S[x]+2*i+1)}")
        A(f"v_mul_f32 {v(LS[x])}, {v(LS[x])}, v4")
        for i in range(16): A(f"v_add_f32 {v(LS[x])}, {v(LS[x])}, {v(S[x]+i)}")
        A(pv(x, 0, 0)); A(pv(x, 0, 1))
        A("s_nop 7"); A("s_nop 7")
    A(f"s_add_u32 s{S_KOFF}, s{S_KOFF}, 2048")
    A(f"s_sub_u32 s{S_IT}, s{S_IT}, 1")
    A(f"s_cmp_lg_u32 s{S_IT}, 0")
    A(f"s_cbranch_scc1 L_{name}_sloop")
    for x in "ab":
        A(f"v_mov_b32 v4, {v(LS[x])}"); A("s_nop 1")
        A(f"v_permlane32_swap_b32 {v(LS[x])}, v4"); A("s_nop 1")
        A(f"v_add_f32 {v(LS[x])}, {v(LS[x])}, v4")
    hspin("s")
    for grp, _ in gemm_prologue_groups():
        for z in grp: A(z)
    A.label(f"L_{name}_afin")
    A(f"s_mul_i32 s6, s{S_TB}, {AH_TB}")
    A(f"s_lshl_b32 s7, s{S_HEAD}, 11"); A("s_add_u32 s6, s6, s7")
    for xi, x in enumerate("ab"):
        A(f"v_rcp_f32 v4, {v(LS[x])}"); A("s_nop 0")
        for i in range(16): A(f"v_mul_f32 {v(O[x]+i)}, {v(O[x]+i)}, v4")
        T = S[x]
        for j in range(2):
            A(f"v_cvt_pk_bf16_f32 {v(T+4*j)}, {v(O[x]+4*j)}, {v(O[x]+4*j+1)}")
            A(f"v_cvt_pk_bf16_f32 {v(T+4*j+1)}, {v(O[x]+4*j+2)}, {v(O[x]+4*j+3)}")
            A(f"v_cvt_pk_bf16_f32 {v(T+4*j+2)}, {v(O[x]+8+4*j)}, {v(O[x]+8+4*j+1)}")
            A(f"v_cvt_pk_bf16_f32 {v(T+4*j+3)}, {v(O[x]+8+4*j+2)}, {v(O[x]+8+4*j+3)}")
            A(f"buffer_store_dwordx4 {v(T+4*j,4)}, {v(V_L16)}, s[{S_O}:{S_O+3}], s6 offen offset:{j*1024} sc1")
        if xi == 0: A(f"s_add_u32 s6, s6, {AH_TB}")
    srd(A, S_V, "s96", "s97", 4*MB)
    srd(A, S_Q, "s98", "s99", 4*MB)
    A("v_lshrrev_b32 v5, 3, v1"); A("v_and_b32 v6, 7, v1")
    A("v_lshlrev_b32 v3, 11, v5"); A("v_lshl_add_u32 v3, v6, 4, v3")
    A(f"s_lshl_b32 s7, s{S_MT}, 7"); A(f"s_lshl_b32 s36, s{S_WV}, 5"); A("s_add_u32 s7, s7, s36")
    A("s_lshl_b32 s7, s7, 11"); A(f"s_lshl_b32 s36, s{S_NT}, 8"); A("s_add_u32 s7, s7, s36")
    A(f"s_lshl_b32 s36, s{S_HALF}, 7"); A("s_add_u32 s95, s7, s36")
    XR = 112
    A("s_mov_b32 s7, s95")
    for i in range(4):
        A(f"buffer_load_dwordx4 {v(XR + 4*i, 4)}, v3, s[{S_V}:{S_V+3}], s7 offen")
        if i < 3: A(f"s_add_u32 s7, s7, {8 * 2048}")
    A("s_waitcnt vmcnt(56)")
    A("s_barrier")
    stamp(A, 'g_start')
    A(f"s_mov_b32 s{S_IT}, s{S_NIT}")
    A(f"s_mov_b32 s{S_FIRST}, 1")
    for r in g_tr(0): A(r)
    def body_ops(it):
        ops = []
        for n in range(NB):
            ph = (n + 1) % 4
            st = (NB // 4) * it + ((n + 1) >> 2) - 1 + PD
            if n == 2: ops.append((n, ('F', it)))
            ops.append((n, ('A', NB * it + n + XD, 0))); ops.append((n, ('W', st, 2 * ph)))
            ops.append((n, ('A', NB * it + n + XD, 1))); ops.append((n, ('W', st, 2 * ph + 1)))
        return ops
    waits = {n: 63 for n in range(NB)}
    sim = VmSim()
    for t in GPRO + [('S', i) for i in range(4)] + [('X', i) for i in range(4)]: sim.issue(t)
    SIGN = 7; sig_wait = None
    NSW, NEND, NWS = (1, 1, 3) if ASYM else (17, 9, 19)
    for it in range(3):
        ops = body_ops(it)
        for n in range(NB):
            g = NB * it + n
            need = sim.need(lambda t: t[0] == 'A' and t[1] == g)
            if n % 4 == 3:
                need = min(need, sim.need(lambda t: t[0] == 'W' and t[1] == (NB // 4) * it + (n >> 2) + 1))
            if n == NSW and (not ASYM or it > 0): need = min(need, sim.need(lambda t: t[0] == 'F' and t[1] == (it - 1 if ASYM else it)))
            if n == SIGN and it == 0: sig_wait = sim.need(lambda t: t[0] == 'S')
            waits[n] = min(waits[n], need)
            for (s_, t) in ops:
                if s_ == n: sim.issue(t)
    assert max(waits.values()) <= 63
    PR = 32
    A.raw(".p2align 6")
    A.label(f"L_{name}_gloop")
    for n in range(NB):
        A.c(f"gemm step {n}")
        A(f"s_waitcnt vmcnt({waits[n]}) lgkmcnt(0)")
        if n % 4 == 3 and not opt("g_nobar"): A("s_barrier")
        NM = 16 if G16() else 8
        q = NM // 8
        fill = [[] for _ in range(NM)]
        reads = []
        trs = [V_TR16 + cb for cb in range(8)] if G16() else [V_TR + cb for cb in range(4)]
        if n % 8 == 7: reads += [f"v_xor_b32 {v(r)}, 0x10000, {v(r)}" for r in trs]
        reads += g_tr(n + 1) if not opt("g_notr") else []
        k = 0; m = 0
        while k < len(reads):
            cnt = (2 if G16() else 3) + (1 if (n % 8 == 7 and m < (8 if G16() else 1)) else 0)
            fill[m] += reads[k:k + cnt]; k += cnt; m += 1
        tgt = n + XD
        pre = []
        if n == NSW:
            pre += [f"s_cmp_eq_u32 s{S_IT}, s{S_AEND}", ("BR", f"s_cbranch_scc1 L_{name}_asw", f"L_{name}_aback")]
        if n == NEND:
            pre += [f"s_cmp_eq_u32 s{S_IT}, 1", f"s_cselect_b32 s{S_GA+2}, 0, s{S_GA+2}"]
        if n == 2: pre += [g_flagload()]
        if n == SIGN:
            pre += [f"s_cmp_eq_u32 s{S_FIRST}, 1", ("BR", f"s_cbranch_scc1 L_{name}_sig", f"L_{name}_sigback")]
        ph = (n + 1) % 4
        ns = g_next_stage(n == NWS) if ph == 0 else []
        imm = (tgt % 2) * 2048
        fill[0] = pre + fill[0]
        fill[1 * q].append(g_aload(tgt % NB, 0, imm))
        fill[2 * q] += ns
        fill[3 * q] += g_dma(2 * ph)
        fill[5 * q].append(g_aload(tgt % NB, 1, imm + 1024))
        if tgt % 2 == 1: fill[5 * q].append(f"s_add_u32 s{S_AOFF}, s{S_AOFF}, 4096")
        fill[7 * q] += g_dma(2 * ph + 1)
        if opt("g_novm"):
            fill = [[z for z in f if isinstance(z, tuple) or not z.startswith("buffer_load")] for f in fill]
        for m in range(NM):
            if G16():
                cb, tb = m // 2, m % 2
                d = v(gacc16(cb, tb), 4)
                A(f"v_mfma_f32_16x16x32_bf16 {d}, {a(wreg16(n & 1, cb), 4)}, {a(areg(n, tb), 4)}, {d}")
            else:
                j, cb = m // 4, m % 4
                d = v(gacc(cb), 16)
                A(f"v_mfma_f32_32x32x16_bf16 {d}, {a(wreg(n & 1, j, cb), 4)}, {a(areg(n, j), 4)}, {d}")
            for z in fill[m]:
                if isinstance(z, tuple):
                    A(z[1]); A.label(z[2])
                else: A(z)
    A(f"s_sub_u32 s{S_IT}, s{S_IT}, 1")
    A(f"s_cmp_lg_u32 s{S_IT}, 0")
    A(f"s_cbranch_scc1 L_{name}_gloop")
    A(f"s_branch L_{name}_gdone")
    A.label(f"L_{name}_asw")
    A(f"v_readlane_b32 s6, {v(V_F)}, 0")
    A("s_nop 3")
    A("s_cmp_ge_u32 s6, 128")
    A(f"s_cbranch_scc1 L_{name}_asw2")
    spin(A, name, "o", 0, 128, 7, 6)
    A.label(f"L_{name}_asw2")
    A(f"s_mov_b32 s{S_AOFF}, s{S_ASW}")
    A(f"s_branch L_{name}_aback")
    A.label(f"L_{name}_sig")
    A(f"s_mov_b32 s{S_FIRST}, 0")
    A(f"s_waitcnt vmcnt({sig_wait})")
    A(f"s_lshl_b32 s6, s{S_QT}, 7")
    A("v_mov_b32 v4, 1")
    A("s_mov_b64 s[36:37], exec"); A("s_mov_b64 exec, 1")
    A(f"buffer_atomic_add v4, off, s[{S_F}:{S_F+3}], s6")
    A("s_mov_b64 exec, s[36:37]")
    A(f"s_branch L_{name}_sigback")
    A.label(f"L_{name}_gdone")
    stamp(A, 'g_end')
    A(f"s_lshl_b32 s6, s{S_MT}, 3"); A(f"s_add_u32 s6, s6, s{S_NT}")
    A(f"s_add_u32 s36, {WS}, {PART_OFF}"); A(f"s_addc_u32 s37, {WS1}, 0")
    A(f"s_mul_i32 s7, s6, {PART_PAIR}"); A(f"s_lshl_b32 s38, s{S_WV}, 13"); A("s_add_u32 s7, s7, s38")
    A("s_add_u32 s36, s36, s7"); A("s_addc_u32 s37, s37, 0")
    srd(A, S_K, "s36", "s37", 65536)
    A(f"s_lshl_b32 s38, s{S_HALF}, 15")
    A("s_xor_b32 s39, s38, 0x8000")
    A("s_add_u32 s6, s6, 8"); A("s_lshl_b32 s6, s6, 7"); A(f"s_lshl_b32 s7, s{S_HALF}, 2"); A("s_add_u32 s6, s6, s7")
    PR = 32
    def finish(h):
        keep = gacc(2 * h); send = gacc(2 * (1 - h))
        for i in range(8):
            if i == 4: A("s_add_u32 s38, s38, 4096")
            A(f"buffer_store_dwordx4 {v(send + 4*i, 4)}, {v(V_L16)}, s[{S_K}:{S_K+3}], s38 offen offset:{(i % 4) * 1024} sc1")
        if G16():
            A("v_and_b32 v5, 15, v1"); A("v_lshrrev_b32 v6, 4, v1")
            A("v_lshlrev_b32 v7, 8, v5"); A(f"s_lshl_b32 s7, s{S_WV}, 13"); A("v_add_u32 v7, s7, v7")
            A("v_and_b32 v5, 7, v5")
            for i in range(8):
                A(f"v_add_u32 {v(64 + i)}, {4 * (i >> 1)}, v6"); A(f"v_xor_b32 {v(64 + i)}, {v(64 + i)}, v5")
                A(f"v_lshl_add_u32 {v(64 + i)}, {v(64 + i)}, 4, v7")
                if i & 1: A(f"v_add_u32 {v(64 + i)}, 4096, {v(64 + i)}")
        else:
            A("v_and_b32 v5, 31, v1"); A("v_lshrrev_b32 v6, 5, v1")
            A("v_lshlrev_b32 v7, 8, v5"); A(f"s_lshl_b32 s7, s{S_WV}, 13"); A("v_add_u32 v7, s7, v7")
            A("v_and_b32 v5, 7, v5")
            for cq in range(8):
                A(f"v_add_u32 {v(64 + cq)}, {2 * cq}, v6"); A(f"v_xor_b32 {v(64 + cq)}, {v(64 + cq)}, v5")
                A(f"v_lshl_add_u32 {v(64 + cq)}, {v(64 + cq)}, 4, v7")
        A("v_lshrrev_b32 v5, 3, v1"); A("v_and_b32 v6, 7, v1"); A("v_lshlrev_b32 v6, 1, v6"); A("v_xor_b32 v6, v6, v5")
        A("v_lshlrev_b32 v7, 8, v5"); A("v_add_u32 v7, s7, v7"); A("v_lshl_add_u32 v72, v6, 4, v7"); A("v_xor_b32 v73, 16, v72")
        A("s_waitcnt vmcnt(0)")
        A("s_barrier")
        A(f"s_cmp_eq_u32 s{S_WV}, 0")
        A(f"s_cbranch_scc0 L_{name}_nf{h}")
        A("v_mov_b32 v4, 1")
        A("s_mov_b64 exec, 1")
        A(f"buffer_store_dword v4, off, s[{S_F}:{S_F+3}], s6 sc1")
        A("s_mov_b64 exec, -1")
        A.label(f"L_{name}_nf{h}")
        spin(A, name, f"p{h}", 1, 1, 7, 36)
        for i in range(8):
            if i == 4: A("s_add_u32 s39, s39, 4096")
            A(f"buffer_load_dwordx4 {v(PR + 4*i, 4)}, {v(V_L16)}, s[{S_K}:{S_K+3}], s39 offen offset:{(i % 4) * 1024} sc1")
        for i in range(8):
            A(f"s_waitcnt vmcnt({7 - i})")
            A(f"v_pk_add_f32 {v(keep + 4*i, 2)}, {v(keep + 4*i, 2)}, {v(PR + 4*i, 2)}")
            A(f"v_pk_add_f32 {v(keep + 4*i + 2, 2)}, {v(keep + 4*i + 2, 2)}, {v(PR + 4*i + 2, 2)}")
            A(f"ds_write_b128 {v(64 + i)}, {v(keep + 4*i, 4)}")
        stamp(A, 'p_ready')
        A("s_waitcnt lgkmcnt(0)")
        for i in range(4):
            A(f"ds_read_b128 {v(PR + 8*i, 4)}, v72 offset:{i * 2048}")
            A(f"ds_read_b128 {v(PR + 8*i + 4, 4)}, v73 offset:{i * 2048}")
        stamp(A, 't_done')
        A("s_mov_b32 s39, 0xffff0000")
        A("s_mov_b32 s7, s95")
        for i in range(4):
            A(f"s_waitcnt lgkmcnt({6 - 2*i})")
            b = PR + 8*i; xr = XR + 4*i
            for r in range(4):
                A(f"v_lshlrev_b32 v24, 16, {v(xr+r)}"); A(f"v_and_b32 v25, s39, {v(xr+r)}")
                A(f"v_pk_add_f32 {v(b+2*r, 2)}, {v(b+2*r, 2)}, v[24:25]")
            for r in range(4): A(f"v_cvt_pk_bf16_f32 {v(xr+r)}, {v(b+2*r)}, {v(b+2*r+1)}")
            A(f"buffer_store_dwordx4 {v(xr, 4)}, v3, s[{S_Q}:{S_Q+3}], s7 offen{' sc1' if opt('out_sc1', 1) else ''}")
            if i < 3: A(f"s_add_u32 s7, s7, {8 * 2048}")
    A(f"s_cmp_eq_u32 s{S_HALF}, 0")
    A(f"s_cbranch_scc0 L_{name}_fin1")
    finish(0)
    A(f"s_branch {fin}")
    A.label(f"L_{name}_fin1")
    finish(1)
    A.label(fin)
```

```python
from asmlib import *
from layout import *
from vmsim import VmSim
import math

NCB = 14
def acc(cb, tb): return 32 + 4 * (cb * 4 + tb)
def xreg(slot, tb): return (slot * 4 + tb) * 4
def wreg(buf, cb): return 64 + (buf * NCB + cb) * 4
NAGPR = 176
SLOT = 32768
PITCH = 448
LN_LDS = 4 * SLOT
LDS_BYTES = 4 * SLOT + 256
V_X = 0; V_DMA = 1; V_TRE = 8; V_TRO = 9
S_W = 8; S_X = 12; S_O = 16; S_N = 20
S_WOFF = 24; S_XO = 25; S_IT = 29; S_WV = 30; S_MT = 31; S_BLK0 = 32; S_TYPE = 33
S_T0, S_T1, S_T2, S_T3 = 34, 35, 36, 37
S_M0CUR = 38; S_TOK = 39; S_WS = 40; S_LDW = 42; S_STG = 43; S_D = 52; S_M0A = 56; S_SLOT = 57; S_NT = 58

def tr_main(n, ncb=NCB):
    par = (n >> 1) & 1; sub = n & 1
    out = []
    for cb in range(ncb):
        for h in range(2):
            off = par * SLOT + sub * 32 * PITCH + h * 4 * PITCH + cb * 32
            ad = V_TRE if cb % 2 == 0 else V_TRO
            out.append(f"ds_read_b64_tr_b16 {a(wreg(n & 1, cb) + 2 * h, 2)}, {v(ad)} offset:{off}")
    return out
def x_load(slot, tb, imm):
    return f"buffer_load_dwordx4 {a(xreg(slot, tb), 4)}, {v(V_X)}, s[{S_X}:{S_X+3}], s{S_XO + tb} offen offset:{imm}{' sc1' if opt('x_sc1', 1) else ''}"
def dma(i):
    return f"buffer_load_dwordx4 {v(V_DMA + i)}, s[{S_W}:{S_W+3}], s{S_WOFF} offen offset:{(i & 3) * 1024} lds"
def w_next_stage():
    return [f"s_add_u32 s{S_WOFF}, s{S_WOFF}, s{S_STG}",
            f"s_add_u32 s{S_M0CUR}, s{S_M0CUR}, {SLOT}",
            f"s_and_b32 s{S_M0CUR}, s{S_M0CUR}, {4 * SLOT - 1}",
            f"s_mov_b32 m0, s{S_M0CUR}"]
def w_hi():
    return [f"s_add_u32 s{S_T0}, s{S_M0CUR}, 4096", f"s_mov_b32 m0, s{S_T0}"]

def body_vm_ops(it, PD, XD):
    ops = []
    for n in range(4):
        tgt = 4 * it + n + XD
        for tb in range(4): ops.append((n, ('X', tgt, tb)))
        if n & 1:
            st = 2 * it + (n >> 1) + PD
            for i in range(4): ops.append((n, ('W', st, i)))
        else:
            st = 2 * it + (n >> 1) - 1 + PD
            for i in range(4, 7): ops.append((n, ('W', st, i)))
    return ops

def gen_mainloop(A, name, ncb, swap, PD, XD, prologue_ops):
    NM = 4 * ncb
    waits = {n: 63 for n in range(4)}
    sim = VmSim()
    for t in prologue_ops: sim.issue(t)
    for it in range(4):
        ops = body_vm_ops(it, PD, XD)
        for n in range(4):
            g = 4 * it + n
            need = sim.need(lambda t: t[0] == 'X' and t[1] == g)
            if n & 1:
                st = 2 * it + (n >> 1) + 1
                nw = sim.need(lambda t: t[0] == 'W' and t[1] == st)
                if nw is not None: need = nw if need is None else min(need, nw)
            if need is not None: waits[n] = min(waits[n], need)
            for (s_, t) in ops:
                if s_ == n: sim.issue(t)
    A.raw(".p2align 6")
    A.label(f"L_{name}_loop")
    for n in range(4):
        A.c(f"---- step {n}")
        A(f"s_waitcnt vmcnt({waits[n]}) lgkmcnt(0)")
        if n & 1: A("s_barrier")
        reads = []
        if n == 3:
            reads += [f"v_xor_b32 {v(r)}, 0x10000, {v(r)}" for r in (V_TRE, V_TRO)]
        reads += tr_main(n + 1, ncb)
        tail = []
        tgt = n + XD
        if tgt == 4:
            tail += [f"s_add_u32 s{S_XO + tb}, s{S_XO + tb}, 2048" for tb in range(4)]
            tail += [f"s_cmp_eq_u32 s{S_IT}, 1", f"s_cselect_b32 s{S_X+2}, 0, s{S_X+2}"]
        xl = [x_load(tgt % 4, tb, (tgt % 4) * 512) for tb in range(4)]
        if n & 1:
            pre = w_next_stage() + ["s_nop 0"]; dm = [dma(i) for i in range(4)]
        else:
            pre = w_hi() + ["s_nop 0"]; dm = [dma(i) for i in range(4, 7)]
        fill = [[] for _ in range(NM)]
        for k, z in enumerate(reads): fill[k].append(z)
        k0 = 2
        for z in tail: fill[k0].append(z); k0 += 1
        vm = [[z] for z in xl]
        vm.append(pre + [dm[0]])
        vm += [[z] for z in dm[1:]]
        sp = opt("l1_vmsp", 5) if ncb == 14 else 4
        pos = max(k0, 10)
        for grp in vm:
            fill[min(pos, NM - 1)] += grp
            pos += sp
        for m in range(NM):
            cb, tb = (m // 4, m % 4) if not opt("l1_tbouter") else (m % ncb, m // ncb)
            if opt("l1_snake") and not opt("l1_tbouter") and (cb & 1): tb = 3 - tb
            d = v(acc(cb, tb), 4); w = a(wreg(n & 1, cb), 4); x = a(xreg(n, tb), 4)
            A(f"v_mfma_f32_16x16x32_bf16 {d}, {x}, {w}, {d}" if swap(cb) else f"v_mfma_f32_16x16x32_bf16 {d}, {w}, {x}, {d}")
            for z in fill[m]: A(z)
    A(f"s_sub_u32 s{S_IT}, s{S_IT}, 1")
    A(f"s_cmp_lg_u32 s{S_IT}, 0")
    A(f"s_cbranch_scc1 L_{name}_loop")

def ln_loads(A):
    A("v_and_b32 v3, 7, v1"); A("v_lshrrev_b32 v4, 3, v1")
    A("v_lshlrev_b32 v5, 11, v3"); A("v_lshl_add_u32 v5, v4, 4, v5")
    A(f"s_lshl_b32 s{S_T0}, s{S_WV}, 9")
    A(f"v_add_u32 v5, s{S_T0}, v5")
    A(f"s_lshl_b32 s{S_T1}, s2, 14")
    A("v_lshlrev_b32 v6, 11, v3")
    A(f"buffer_load_ushort v30, v6, s[{S_N}:{S_N+3}], s{S_T1} offen")
    for i in range(4):
        A(f"buffer_load_dwordx4 {v(32+4*i,4)}, v5, s[{S_N}:{S_N+3}], s{S_T1} offen offset:{i*128}")

def ln_compute(A, nafter, tag, zero_acc=False, pre_signal=None):
    A("v_and_b32 v24, 7, v1"); A("v_lshlrev_b32 v24, 3, v24")
    A(f"v_add_u32 v24, {LN_LDS}, v24")
    A(f"s_lshl_b32 s{S_T0}, s{S_WV}, 6")
    A(f"v_add_u32 v25, s{S_T0}, v24")
    A("s_mov_b32 s44, 0xffff0000")
    A(f"s_waitcnt vmcnt({nafter + 4})")
    A("v_lshlrev_b32 v30, 16, v30"); A("v_sub_f32 v30, 0, v30"); A("v_mov_b32 v31, v30")
    for i in range(4):
        A(f"s_waitcnt vmcnt({nafter + 3 - i})")
        for r in range(4):
            src = 32 + 4 * i + r
            A(f"v_lshlrev_b32 {v(64+2*(4*i+r))}, 16, {v(src)}")
            A(f"v_and_b32 {v(65+2*(4*i+r))}, s44, {v(src)}")
        for r in range(4):
            A(f"v_pk_add_f32 {v(64+2*(4*i+r),2)}, {v(64+2*(4*i+r),2)}, v[30:31]")
    stamp(A, 'ln_loaded')
    A("v_pk_add_f32 v[32:33], v[64:65], v[66:67]"); A("v_pk_mul_f32 v[34:35], v[64:65], v[64:65]")
    A("v_pk_add_f32 v[36:37], v[68:69], v[70:71]"); A("v_pk_mul_f32 v[38:39], v[66:67], v[66:67]")
    for i in range(2, 16):
        A(f"v_pk_fma_f32 {v(34+4*(i%2),2)}, {v(64+2*i,2)}, {v(64+2*i,2)}, {v(34+4*(i%2),2)}")
        if i >= 4: A(f"v_pk_add_f32 {v(32+4*(i%2),2)}, {v(32+4*(i%2),2)}, {v(64+2*i,2)}")
    A("v_pk_add_f32 v[32:33], v[32:33], v[36:37]"); A("v_pk_add_f32 v[34:35], v[34:35], v[38:39]")
    A("v_add_f32 v26, v32, v33"); A("v_add_f32 v27, v34, v35")
    A("s_nop 0")
    for r in (26, 27):
        A(f"v_add_f32_dpp {v(r)}, {v(r)}, {v(r)} row_ror:8 row_mask:0xf bank_mask:0xf")
    A("v_mov_b32 v28, v26"); A("v_mov_b32 v29, v27"); A("s_nop 0")
    A("v_permlane16_swap_b32 v26, v28"); A("v_permlane16_swap_b32 v27, v29"); A("s_nop 0")
    A("v_add_f32 v26, v26, v28"); A("v_add_f32 v27, v27, v29")
    A("v_mov_b32 v28, v26"); A("v_mov_b32 v29, v27"); A("s_nop 0")
    A("v_permlane32_swap_b32 v26, v28"); A("v_permlane32_swap_b32 v27, v29"); A("s_nop 0")
    A("v_add_f32 v26, v26, v28"); A("v_add_f32 v27, v27, v29")
    A("ds_write_b64 v25, v[26:27]")
    A("s_waitcnt lgkmcnt(0)")
    A("s_barrier")
    for w_ in range(4): A(f"ds_read_b64 {v(32+2*w_,2)}, v24 offset:{64*w_}")
    A("s_waitcnt lgkmcnt(0)")
    A("v_pk_add_f32 v[32:33], v[32:33], v[34:35]"); A("v_pk_add_f32 v[36:37], v[36:37], v[38:39]")
    A("v_pk_add_f32 v[32:33], v[32:33], v[36:37]")
    A(f"v_mul_f32 v32, {fbits(1.0/1024)}, v32")
    A(f"v_mov_b32 v30, {fbits(1e-5)}")
    A(f"v_fmac_f32 v30, {fbits(1.0/1024)}, v33")
    A("v_fma_f32 v30, -v32, v32, v30")
    A(f"v_max_f32 v30, {fbits(1e-5)}, v30")
    A("v_rsq_f32 v30, v30"); A("s_nop 0")
    A("v_mul_f32 v32, -v32, v30"); A("v_mov_b32 v31, v30"); A("v_mov_b32 v33, v32")
    for i in range(16): A(f"v_pk_fma_f32 {v(64+2*i,2)}, {v(64+2*i,2)}, v[30:31], v[32:33]")
    for i in range(16): A(f"v_cvt_pk_bf16_f32 {v(40+i)}, {v(64+2*i)}, {v(65+2*i)}")
    A("v_lshlrev_b32 v24, 4, v1")
    A(f"s_lshl_b32 s{S_T0}, s{S_WV}, 12")
    A(f"v_add_u32 v24, s{S_T0}, v24")
    A(f"s_mul_i32 s{S_T1}, s2, {XN_OCT}")
    for i in range(4):
        A(f"buffer_store_dwordx4 {v(40+4*i,4)}, v24, s[{S_X}:{S_X+3}], s{S_T1} offen offset:{i*1024} sc1")
    if zero_acc:
        for r in list(range(64, 256)) + list(range(32, 40)): A(f"v_mov_b32 {v(r)}, 0")
    if pre_signal: pre_signal()
    stamp(A, 'ln_stored')
    A("s_waitcnt vmcnt(0)")
    A("s_barrier")
    stamp(A, 'ln_drained')
    if zero_acc:
        for r in range(40, 64): A(f"v_mov_b32 {v(r)}, 0")
    A(f"s_cmp_eq_u32 s{S_WV}, 0")
    A(f"s_cbranch_scc0 L_l1_nosig{tag}")
    A(f"s_lshr_b32 s{S_T0}, s2, 5"); A(f"s_lshl_b32 s{S_T0}, s{S_T0}, 5")
    A("v_mov_b32 v24, 1")
    A("s_mov_b64 s[44:45], exec"); A("s_mov_b64 exec, 1")
    A(f"buffer_atomic_add v24, off, s[{S_D}:{S_D+3}], s{S_T0}")
    A("s_mov_b64 exec, s[44:45]")
    A.label(f"L_l1_nosig{tag}")

KNAME = "parallel_sum__softmax_full_mha__dense_activation_silu__prompt_kernel"
S_HSIG = 100
def gen_l1(name, A=None, end=None):
    PD = opt("l1_pd", 3); XD = opt("l1_xd", 3)
    fin = f"L_{name}_fin"
    A("s_cmp_ge_u32 s2, 256")
    A(f"s_cbranch_scc1 {end}")
    stamp(A, 0)
    A(f"s_load_dwordx2 s[4:5], s[0:1], {KARG['wqkv']}")
    A(f"s_load_dwordx2 s[6:7], s[0:1], {KARG['w1']}")
    A(f"s_load_dwordx2 s[{S_WS}:{S_WS+1}], s[0:1], {KARG['ws']}")
    A(f"s_load_dwordx2 s[44:45], s[0:1], {KARG['x']}")
    A(f"s_load_dwordx2 s[46:47], s[0:1], {KARG['dbg']}")
    A("v_mov_b32 v2, v0")
    A("v_and_b32 v1, 63, v0")
    A("v_lshrrev_b32 v3, 6, v0")
    A("s_and_b32 s3, s2, 7")
    A(f"v_readfirstlane_b32 s{S_WV}, v3")
    A(f"s_lshr_b32 s{S_SLOT}, s2, 3")
    A("s_and_b32 s48, s3, 1"); A("s_lshl_b32 s48, s48, 2")
    A(f"s_and_b32 s{S_T0}, s{S_SLOT}, 3")
    A(f"s_add_u32 s{S_MT}, s48, s{S_T0}")
    A("s_lshr_b32 s3, s3, 1"); A("s_lshl_b32 s3, s3, 2")
    A(f"s_lshr_b32 s{S_T0}, s{S_SLOT}, 2")
    A(f"s_and_b32 s{S_T1}, s{S_T0}, 3"); A(f"s_add_u32 s3, s3, s{S_T1}")
    A(f"s_lshr_b32 s{S_T0}, s{S_T0}, 2"); A(f"s_lshl_b32 s{S_T0}, s{S_T0}, 4")
    A(f"s_add_u32 s3, s3, s{S_T0}")
    A(f"s_mov_b32 s{S_NT}, s3")
    A(f"s_lshl_b32 s{S_TOK}, s{S_MT}, 8")
    A(f"s_lshl_b32 s{S_T0}, s{S_WV}, 6")
    A(f"s_add_u32 s{S_TOK}, s{S_TOK}, s{S_T0}")
    A("s_waitcnt lgkmcnt(0)")
    srd(A, S_N, "s44", "s45", 4 * MB)
    srd(A, S_D, "s46", "s47", 256)
    ln_loads(A)
    ncode = 0
    if opt("tlbpf", 0):
        offs = []
        def pad_in_page(pg, base, stride, payload, count):
            for b in range(count):
                a0 = base + b * stride + payload
                a0 = (a0 + 127) // 128 * 128
                if pg * 2 * MB <= a0 and a0 + 128 <= (pg + 1) * 2 * MB and a0 + 128 <= base + (b + 1) * stride: return a0
            return None
        for pg in range(2, 27):
            for (base, stride, payload, count) in ((QKV_OFF, QKV_BLK, 131072, 96), (AH_OFF, AH_TB, 144 * 2048, 64), (PART_OFF, PART_PAIR, 65536, 128), (XN_OFF, XN_OCT, 16384, 256)):
                a0 = pad_in_page(pg, base, stride, payload, count)
                if a0 is not None: offs.append(a0); break
        offs.append(NRM_OFF + 600 * 1024)
        A(f"s_add_u32 s48, s{S_WS}, 0"); A(f"s_addc_u32 s49, s{S_WS+1}, 0")
        srd(A, S_O, "s48", "s49", 64 * MB)
        A(f"v_mov_b32 v8, {offs[0]}")
        for i, o in enumerate(offs[1:], 1):
            A(f"s_mov_b32 s48, {o}"); A(f"v_writelane_b32 v8, s48, {i}")
        A(f"buffer_load_dword a201, v8, s[{S_O}:{S_O+3}], 0 offen"); ncode += 1
        A(f"s_load_dwordx2 s[48:49], s[0:1], {KARG['w2']}"); A(f"s_load_dwordx2 s[60:61], s[0:1], {KARG['wo']}"); A(f"s_load_dwordx2 s[62:63], s[0:1], {KARG['out']}")
        A("v_and_b32 v8, 3, v1"); A("v_lshlrev_b32 v8, 21, v8")
        A("s_waitcnt lgkmcnt(0)")
        for (p, size) in ((48, 3584 * 2048), (60, 1024 * 2048), (62, 4 * MB)):
            srd(A, S_O, f"s{p}", f"s{p+1}", size)
            A(f"buffer_load_dword a201, v8, s[{S_O}:{S_O+3}], 0 offen"); ncode += 1
    if opt("codepf", 0):
        A("s_getpc_b64 s[48:49]")
        A.label(f"L_{name}_pc")
        A(f"s_sub_u32 s48, s48, L_{name}_pc-{opt('kname', None) or KNAME}")
        A("s_subb_u32 s49, s49, 0")
        A("v_lshlrev_b32 v8, 7, v2")
        for k in range(2):
            A(f"v_add_u32 v9, {k * 32768}, v8")
            A(f"v_min_u32 v9, L_end-{KNAME}, v9")
            A("v_mov_b32 v21, s49")
            A("v_add_co_u32 v20, vcc, s48, v9"); A("s_nop 1"); A("v_addc_co_u32 v21, vcc, 0, v21, vcc")
            A("global_load_dword a200, v[20:21], off")
            ncode += 1
    A(f"s_add_u32 s44, s{S_WS}, {XN_OFF}"); A(f"s_addc_u32 s45, s{S_WS+1}, 0")
    srd(A, S_X, "s44", "s45", 256 * XN_OCT)
    A("s_cmp_lt_u32 s3, 16")
    A(f"s_cbranch_scc1 L_{name}_qkv")
    A(f"s_mov_b32 s{S_TYPE}, 2")
    A("s_sub_u32 s3, s3, 16")
    A(f"s_mul_i32 s{S_BLK0}, s3, 7")
    A(f"s_mov_b32 s{S_LDW}, 7168")
    A("s_mov_b32 s4, s6"); A("s_mov_b32 s5, s7")
    A(f"s_mov_b32 s{S_T1}, {1024 * 7168}")
    A("s_movk_i32 s59, 28")
    A(f"s_branch L_{name}_common")
    A.label(f"L_{name}_qkv")
    A(f"s_mov_b32 s{S_LDW}, 6144")
    A(f"s_mov_b32 s{S_T1}, {1024 * 6144}")
    A(f"s_mul_i32 s{S_BLK0}, s3, 6")
    A("s_movk_i32 s59, 24")
    A("s_cmp_lt_u32 s3, 10"); A(f"s_cselect_b32 s{S_TYPE}, 0, 1")
    A("s_cmp_eq_u32 s3, 10"); A(f"s_cselect_b32 s{S_TYPE}, 3, s{S_TYPE}")
    A.label(f"L_{name}_common")
    A(f"s_lshl_b32 s{S_T0}, s{S_BLK0}, 6")
    A(f"s_add_u32 s4, s4, s{S_T0}")
    A("s_addc_u32 s5, s5, 0")
    A(f"s_sub_u32 s{S_T1}, s{S_T1}, s{S_T0}")
    srd(A, S_W, "s4", "s5", f"s{S_T1}")
    A(f"s_lshl_b32 s{S_STG}, s{S_LDW}, 6")
    A(f"s_lshl_b32 s{S_T0}, s{S_WV}, 4")
    A(f"s_movk_i32 s{S_T2}, 2341")
    for i in range(7):
        A(f"v_add_u32 v3, {64 * i}, v1")
        A(f"v_mul_u32_u24 v4, s{S_T2}, v3")
        A("v_lshrrev_b32 v4, 16, v4")
        A("v_mul_u32_u24 v6, 28, v4")
        A("v_sub_u32 v6, v3, v6")
        A("v_lshrrev_b32 v7, 3, v4")
        A("v_lshlrev_b32 v7, 1, v7")
        A("v_xor_b32 v6, v6, v7")
        A(f"v_add_u32 v4, s{S_T0}, v4")
        A(f"v_mul_lo_u32 v4, v4, s{S_LDW}")
        A(f"v_lshl_add_u32 v4, v6, 4, v4")
        if i & 3: A(f"v_subrev_u32 v4, {(i & 3) * 1024}, v4")
        A("v_cmp_gt_u32 vcc, s59, v6"); A("v_mov_b32 v7, 0x7ffff000"); A("s_nop 0")
        A(f"v_cndmask_b32 {v(10 + i)}, v7, v4, vcc")
    A(f"s_mul_i32 s{S_M0A}, s{S_WV}, {16 * PITCH}")
    prol = []
    def dma_p(i, base):
        return f"buffer_load_dwordx4 {v(base + i)}, s[{S_W}:{S_W+3}], s{S_WOFF} offen offset:{(i & 3) * 1024} lds"
    def stage_dma(st, lo, hi, base):
        for i in range(lo, hi):
            if i == 0:
                A(f"s_mul_i32 s{S_WOFF}, s{S_STG}, {st}")
                A(f"s_add_u32 s{S_M0CUR}, s{S_M0A}, {(st & 3) * SLOT}")
                A(f"s_mov_b32 m0, s{S_M0CUR}"); A("s_nop 0")
            if i == 4:
                for z in w_hi(): A(z)
                A("s_nop 0")
            A(dma_p(i, base)); prol.append(('W', st, i))
    NPRE = opt("l1_npre", 0)
    for st in range(NPRE):
        stage_dma(st, 0, 7 if st < PD - 1 else 4, 10)
    ntouch = len(prol) - 7 + ncode
    def zero_flags():
        A("s_cmp_lt_u32 s2, 8")
        A(f"s_cbranch_scc0 L_{name}_nz2")
        A(f"s_add_u32 s44, s{S_WS}, {FLAGS_OFF}"); A(f"s_addc_u32 s45, s{S_WS+1}, 0")
        srd(A, S_N, "s44", "s45", NFLAGS * 128)
        A("v_mov_b32 v20, 0"); A("v_mov_b32 v21, 0"); A("v_mov_b32 v22, 0"); A("v_mov_b32 v23, 0")
        A("v_lshlrev_b32 v9, 4, v2")
        A(f"s_mul_i32 s{S_T1}, s2, {49 * 128}")
        A(f"buffer_store_dwordx4 v[20:23], v9, s[{S_N}:{S_N+3}], s{S_T1} offen sc1")
        A(f"s_add_u32 s{S_T1}, s{S_T1}, 4096")
        A("v_cmp_gt_u32 vcc, 136, v2")
        A("s_and_saveexec_b64 s[44:45], vcc")
        A(f"s_cbranch_execz L_{name}_nz")
        A(f"buffer_store_dwordx4 v[20:23], v9, s[{S_N}:{S_N+3}], s{S_T1} offen sc1")
        A.label(f"L_{name}_nz")
        A("s_mov_b64 exec, s[44:45]")
        A.label(f"L_{name}_nz2")
    ln_compute(A, 7 + ntouch, 't', True, zero_flags)
    prol.clear()
    for st in range(NPRE, PD):
        stage_dma(st, 0, 7 if st < PD - 1 else 4, 10)
    T3 = opt("l1_touch3", 0)
    if T3:
        A(f"s_cmp_eq_u32 s{S_WV}, 0"); A(f"s_cbranch_scc1 L_{name}_nt")
        A(f"s_cmp_eq_u32 s{S_TYPE}, 2"); A(f"s_cbranch_scc1 L_{name}_nt")
        A(f"s_load_dwordx2 s[44:45], s[0:1], {KARG['w1']}")
        A("v_lshrrev_b32 v3, 2, v1"); A("v_lshlrev_b32 v3, 3, v3"); A(f"v_add_u32 v3, s{S_MT}, v3")
        A("v_and_b32 v4, 3, v1"); A("v_lshlrev_b32 v4, 7, v4")
        A(f"s_sub_u32 s{S_T0}, s{S_WV}, 1")
        A(f"s_mul_i32 s{S_T1}, s{S_NT}, 448")
        A("s_waitcnt lgkmcnt(0)")
        A(f"s_add_u32 s44, s44, s{S_T1}"); A("s_addc_u32 s45, s45, 0"); A(f"s_sub_u32 s{S_T1}, {1024 * 7168}, s{S_T1}")
        srd(A, S_O, "s44", "s45", f"s{S_T1}")
        A("v_mul_u32_u24 v5, 7168, v3"); A("v_add_u32 v5, v5, v4")
        A(f"s_mul_i32 s{S_T2}, s{S_T0}, {128 * 7168}")
        for k in range(3):
            A(f"buffer_load_dword v21, v5, s[{S_O}:{S_O+3}], s{S_T2} offen")
            if k < 2: A(f"s_add_u32 s{S_T2}, s{S_T2}, {3 * 128 * 7168}")
        if T3 >= 2:
            A("v_mul_u32_u24 v5, 6144, v3"); A("v_add_u32 v5, v5, v4")
            A(f"s_mul_i32 s{S_T2}, s{S_T0}, {128 * 6144}")
            for k in range(3):
                A(f"buffer_load_dword v21, v5, s[{S_W}:{S_W+3}], s{S_T2} offen")
                if k < 2: A(f"s_add_u32 s{S_T2}, s{S_T2}, {3 * 128 * 6144}")
        A.label(f"L_{name}_nt")
    A("v_and_b32 v3, 15, v1"); A("v_lshrrev_b32 v4, 4, v1")
    A("v_lshrrev_b32 v5, 2, v3"); A("v_lshl_add_u32 v5, v4, 3, v5"); A(f"v_mul_u32_u24 v5, {PITCH}, v5")
    A("v_and_b32 v6, 3, v3"); A("v_lshl_add_u32 v5, v6, 3, v5")
    A("v_and_b32 v6, 1, v4"); A("v_lshlrev_b32 v6, 5, v6")
    A(f"v_add_u32 {v(V_TRE)}, v5, v6"); A(f"v_sub_u32 {v(V_TRO)}, v5, v6")
    A(f"v_lshrrev_b32 v5, 3, v3"); A(f"v_mul_u32_u24 v5, {XN_OCT}, v5")
    A("v_lshl_add_u32 v5, v4, 7, v5"); A("v_and_b32 v6, 7, v3")
    A(f"v_lshl_add_u32 {v(V_X)}, v6, 4, v5")
    A("v_mov_b32 v17, v1")
    for i in range(7): A(f"v_mov_b32 {v(V_DMA + i)}, {v(10 + i)}")
    A(f"s_lshr_b32 s{S_XO}, s{S_TOK}, 3"); A(f"s_mul_i32 s{S_XO}, s{S_XO}, {XN_OCT}")
    for tb in range(1, 4): A(f"s_add_u32 s{S_XO + tb}, s{S_XO}, {tb * 2 * XN_OCT}")
    A(f"s_cmp_eq_u32 s{S_WV}, 0")
    A(f"s_cbranch_scc0 L_{name}_got")
    A(f"s_lshl_b32 s{S_T0}, s{S_MT}, 5")
    A(f"v_mov_b32 v19, s{S_T0}"); A("v_mov_b32 v20, 0"); A("v_cmp_eq_u32 vcc, 0, v17"); A("s_nop 1"); A("v_cndmask_b32 v19, v19, v20, vcc")
    A(f"s_mov_b32 s{S_T1}, 0x8000")
    if opt('lnsleep0', 0): A(f"s_sleep {opt('lnsleep0', 0)}")
    A.label(f"L_{name}_poll")
    A(f"buffer_load_dword v18, v19, s[{S_D}:{S_D+3}], 0 offen sc1")
    A("s_waitcnt vmcnt(0)")
    A("v_cmp_le_u32 vcc, 32, v18")
    A(f"s_sub_u32 s{S_T1}, s{S_T1}, 1")
    A(f"s_cmp_eq_u32 s{S_T1}, 0")
    A(f"s_cbranch_scc1 L_{name}_got")
    A("s_nop 1")
    A("s_cmp_eq_u64 vcc, -1")
    A(f"s_cbranch_scc1 L_{name}_got")
    A(f"s_sleep {opt('lnsleep', 3)}")
    A(f"s_branch L_{name}_poll")
    A.label(f"L_{name}_got")
    A("s_waitcnt vmcnt(0)")
    A("s_barrier")
    stamp(A, 'ln_got')
    prol.clear()
    for s_ in range(XD):
        for tb in range(4):
            A(x_load(s_ % 4, tb, (s_ % 4) * 512))
    A(f"s_movk_i32 s{S_IT}, 8")
    sc = " sc1"
    c = (32 ** -0.5) * math.log2(math.e)
    def start_loop(tag, ncb, swap):
        for r in tr_main(0, ncb): A(r)
        A("s_waitcnt vmcnt(0)")
        stamp(A, 1)
        gen_mainloop(A, name + tag, ncb, swap, PD, XD, prol)
        A("s_waitcnt vmcnt(0)")
        A("s_barrier")
        stamp(A, 2)
        A("v_and_b32 v3, 15, v17"); A("v_lshrrev_b32 v4, 4, v17")
        A("v_lshrrev_b32 v7, 1, v4"); A("v_lshlrev_b32 v7, 10, v7")
        A("v_and_b32 v8, 1, v4"); A("v_lshl_add_u32 v7, v8, 9, v7")
    def qkv_srd():
        A(f"s_add_u32 s4, s{S_WS}, {QKV_OFF}"); A(f"s_addc_u32 s5, s{S_WS+1}, 0")
        srd(A, S_O, "s4", "s5", 96 * QKV_BLK)
    def qk_epi(ps):
        A(f"s_add_u32 s4, s{S_WS}, {NRM_OFF}"); A(f"s_addc_u32 s5, s{S_WS+1}, 0")
        srd(A, S_N, "s4", "s5", 512 * 1024)
        A("v_lshl_add_u32 v8, v3, 4, v7")
        A("v_lshrrev_b32 v9, 3, v3"); A("v_lshlrev_b32 v9, 8, v9")
        A("v_and_b32 v10, 7, v3"); A("v_lshl_add_u32 v9, v10, 4, v9")
        A("v_add_u32 v9, v9, v7")
        A("v_lshlrev_b32 v10, 2, v17")
        A("v_and_b32 v11, 1, v4"); A("v_cmp_eq_u32 s[48:49], 1, v11")
        A("v_cmp_le_u32 s[60:61], 2, v4")
        N0 = 24
        for p in ps:
            A(f"s_add_u32 s{S_T0}, s{S_BLK0}, {p}")
            A(f"s_cmp_lt_u32 s{S_T0}, 32")
            A(f"s_cselect_b32 s44, {fbits(c)}, 1.0")
            A(f"s_cselect_b32 s46, 0, 1")
            A("s_mov_b32 s45, s44")
            A(f"s_mul_i32 s{S_T1}, s{S_T0}, {QKV_BLK}")
            A(f"s_lshl_b32 s{S_T2}, s{S_TOK}, 6")
            A(f"s_add_u32 s{S_T1}, s{S_T1}, s{S_T2}")
            A(f"s_lshl_b32 s{S_T2}, s{S_T0}, 13")
            A(f"s_lshl_b32 s{S_T3}, s{S_TOK}, 2")
            A(f"s_add_u32 s{S_T2}, s{S_T2}, s{S_T3}")
            A(f"s_cmp_eq_u32 s46, 1")
            A("s_cselect_b64 vcc, -1, 0")
            A("s_lshr_b32 s47, 256, s46")
            A(f"s_add_u32 s47, s47, s{S_T1}")
            A("v_cndmask_b32 v11, v8, v9, vcc")
            EF = [(acc(2 * p, tb), acc(2 * p + 1, tb)) for tb in range(4)]
            for (E, F) in EF:
                for R in (E, E + 2, F, F + 2): A(f"v_pk_mul_f32 {v(R, 2)}, {v(R, 2)}, s[44:45]")
            for tb, (E, F) in enumerate(EF): A(f"v_pk_mul_f32 {v(N0 + 2 * tb, 2)}, {v(E, 2)}, {v(E, 2)}")
            for k in range(3):
                for tb, (E, F) in enumerate(EF):
                    R = (E + 2, F, F + 2)[k]
                    A(f"v_pk_fma_f32 {v(N0 + 2 * tb, 2)}, {v(R, 2)}, {v(R, 2)}, {v(N0 + 2 * tb, 2)}")
            for tb, (E, F) in enumerate(EF):
                A(f"v_cvt_pk_bf16_f32 {v(E)}, {v(E)}, {v(E + 1)}")
                A(f"v_cvt_pk_bf16_f32 {v(E + 1)}, {v(E + 2)}, {v(E + 3)}")
                A(f"v_cvt_pk_bf16_f32 {v(E + 2)}, {v(F)}, {v(F + 1)}")
                A(f"v_cvt_pk_bf16_f32 {v(E + 3)}, {v(F + 2)}, {v(F + 3)}")
                so = "s47" if tb & 1 else f"s{S_T1}"
                A(f"buffer_store_dwordx4 {v(E, 4)}, v11, s[{S_O}:{S_O+3}], {so} offen offset:{(tb >> 1) * 2048}{sc}")
            for tb in range(4): A(f"v_add_f32 {v(N0 + 2 * tb)}, {v(N0 + 2 * tb)}, {v(N0 + 2 * tb + 1)}")
            for tb in range(4): A(f"v_mov_b32 {v(20 + tb)}, {v(N0 + 2 * tb)}")
            for tb in range(4): A(f"v_permlane32_swap_b32 {v(N0 + 2 * tb)}, {v(20 + tb)}")
            for tb in range(4): A(f"v_add_f32 {v(N0 + 2 * tb)}, {v(N0 + 2 * tb)}, {v(20 + tb)}")
            for tb in range(4): A(f"v_mov_b32 {v(20 + tb)}, {v(N0 + 2 * tb)}")
            for tb in range(4): A(f"v_permlane16_swap_b32 {v(N0 + 2 * tb)}, {v(20 + tb)}")
            for tb in range(4): A(f"v_add_f32 {v(N0 + 2 * tb)}, {v(N0 + 2 * tb)}, {v(20 + tb)}")
            A(f"v_cndmask_b32 {v(N0)}, {v(N0)}, {v(N0 + 2)}, s[48:49]")
            A(f"v_cndmask_b32 {v(N0 + 4)}, {v(N0 + 4)}, {v(N0 + 6)}, s[48:49]")
            A(f"v_cndmask_b32 {v(N0)}, {v(N0)}, {v(N0 + 4)}, s[60:61]")
            A(f"buffer_store_dword {v(N0)}, v10, s[{S_N}:{S_N+3}], s{S_T2} offen sc1")
    def v_epi(cbs):
        A("v_lshl_add_u32 v6, v3, 4, v7")
        A(f"s_mul_i32 s{S_T3}, s{S_BLK0}, {QKV_BLK}")
        A(f"s_lshl_b32 s47, s{S_TOK}, 6")
        A(f"s_add_u32 s{S_T3}, s{S_T3}, s47")
        for kb in range(2):
            for cb in cbs:
                E = acc(cb, 2 * kb); F = acc(cb, 2 * kb + 1)
                A(f"v_cvt_pk_bf16_f32 {v(E)}, {v(E)}, {v(E + 1)}")
                A(f"v_cvt_pk_bf16_f32 {v(E + 1)}, {v(E + 2)}, {v(E + 3)}")
                A(f"v_cvt_pk_bf16_f32 {v(E + 2)}, {v(F)}, {v(F + 1)}")
                A(f"v_cvt_pk_bf16_f32 {v(E + 3)}, {v(F + 2)}, {v(F + 3)}")
                A(f"s_add_u32 s47, s{S_T3}, {(cb >> 1) * QKV_BLK + kb * 2048}")
                A(f"buffer_store_dwordx4 {v(E, 4)}, v6, s[{S_O}:{S_O+3}], s47 offen offset:{(cb & 1) * 256}{sc}")
    A(f"s_cmp_eq_u32 s{S_TYPE}, 2"); A(f"s_cbranch_scc1 L_{name}_hpath")
    A(f"s_cmp_eq_u32 s{S_TYPE}, 1"); A(f"s_cbranch_scc1 L_{name}_vpath")
    A(f"s_cmp_eq_u32 s{S_TYPE}, 3"); A(f"s_cbranch_scc1 L_{name}_mpath")
    start_loop("_n", 12, lambda cb: False)
    qkv_srd(); qk_epi(range(6))
    A(f"s_branch L_{name}_sigqkv")
    A.label(f"L_{name}_mpath")
    start_loop("_m", 12, lambda cb: cb >= 8)
    qkv_srd(); v_epi(range(8, 12)); qk_epi(range(4))
    A(f"s_branch L_{name}_sigqkv")
    A.label(f"L_{name}_vpath")
    start_loop("_v", 12, lambda cb: True)
    qkv_srd(); v_epi(range(12))
    A(f"s_branch L_{name}_sigqkv")
    A.label(f"L_{name}_hpath")
    start_loop("_h", 14, lambda cb: False)
    A(f"s_add_u32 s4, s{S_WS}, {AH_OFF}"); A(f"s_addc_u32 s5, s{S_WS+1}, 0")
    srd(A, S_O, "s4", "s5", 64 * AH_TB)
    A("v_lshl_add_u32 v7, v3, 4, v7")
    A(f"s_lshr_b32 s{S_T1}, s{S_TOK}, 5")
    A(f"s_mul_i32 s{S_T1}, s{S_T1}, {AH_TB}")
    A(f"s_lshl_b32 s{S_T2}, s{S_BLK0}, 11")
    A(f"s_add_u32 s{S_T1}, s{S_T1}, s{S_T2}")
    A(f"s_add_u32 s{S_T1}, s{S_T1}, {32 * 2048}")
    A(f"s_mov_b32 s44, {fbits(-math.log2(math.e))}"); A("s_mov_b32 s45, s44")
    A("s_mov_b32 s46, 1.0"); A("s_mov_b32 s47, 1.0")
    TP = [8, 10, 12, 14]
    for p in range(7):
        for tb in range(4):
            E = acc(2 * p, tb); F = acc(2 * p + 1, tb)
            prs = [E, E + 2, F, F + 2]
            for k, R in enumerate(prs): A(f"v_pk_mul_f32 {v(TP[k], 2)}, {v(R, 2)}, s[44:45]")
            for k in range(4):
                A(f"v_exp_f32 {v(TP[k])}, {v(TP[k])}"); A(f"v_exp_f32 {v(TP[k] + 1)}, {v(TP[k] + 1)}")
            for k in range(4): A(f"v_pk_add_f32 {v(TP[k], 2)}, {v(TP[k], 2)}, s[46:47]")
            for k in range(4):
                A(f"v_rcp_f32 {v(TP[k])}, {v(TP[k])}"); A(f"v_rcp_f32 {v(TP[k] + 1)}, {v(TP[k] + 1)}")
            if not ((4 * p + tb) & 1 and opt("hdefer", 0)):
                A(f"s_add_u32 s{S_T2}, s{S_T1}, {(tb >> 1) * AH_TB + p * 2048 + (tb & 1) * 256}")
            for k, R in enumerate(prs): A(f"v_pk_mul_f32 {v(R, 2)}, {v(R, 2)}, {v(TP[k], 2)}")
            A(f"v_cvt_pk_bf16_f32 {v(E)}, {v(E)}, {v(E + 1)}")
            A(f"v_cvt_pk_bf16_f32 {v(E + 1)}, {v(E + 2)}, {v(E + 3)}")
            A(f"v_cvt_pk_bf16_f32 {v(E + 2)}, {v(F)}, {v(F + 1)}")
            A(f"v_cvt_pk_bf16_f32 {v(E + 3)}, {v(F + 2)}, {v(F + 3)}")
            q = 4 * p + tb
            if q & 1 and opt("hdefer", 0):
                for r in range(4): A(f"v_accvgpr_write_b32 {a(128 + 4 * (q >> 1) + r)}, {v(E + r)}")
            else:
                A(f"buffer_store_dwordx4 {v(E, 4)}, v7, s[{S_O}:{S_O+3}], s{S_T2} offen{sc}")
    A(f"s_mov_b32 s55, s{S_T1}")
    A(f"s_mov_b32 s{S_HSIG}, s{S_MT}")
    A(f"s_branch {fin}")
    A.label(f"L_{name}_sigqkv")
    A(f"s_add_u32 s4, s{S_WS}, {FLAGS_OFF + PRIV_LINE * 128}"); A(f"s_addc_u32 s5, s{S_WS+1}, 0")
    srd(A, S_N, "s4", "s5", 256 * 128)
    A(f"s_mul_i32 s{S_T0}, s{S_NT}, 6")
    A("v_lshrrev_b32 v3, 3, v17"); A(f"v_add_u32 v3, s{S_T0}, v3")
    A("v_cmp_gt_u32 vcc, 48, v17"); A("s_nop 3"); A("s_mov_b64 s[44:45], vcc")
    A("v_and_b32 v3, 31, v3")
    A("v_lshrrev_b32 v4, 2, v3")
    A("v_and_b32 v3, 3, v3"); A("v_lshlrev_b32 v3, 3, v3"); A("v_and_b32 v5, 7, v17"); A("v_or_b32 v3, v3, v5")
    A("v_lshl_add_u32 v3, v3, 3, v4"); A("v_lshlrev_b32 v3, 7, v3")
    A("v_mov_b32 v4, 1")
    A("s_waitcnt vmcnt(0)")
    A("s_barrier")
    A(f"s_cmp_eq_u32 s{S_WV}, 0")
    A(f"s_cbranch_scc0 L_{name}_nosq")
    A("s_mov_b64 exec, s[44:45]")
    A(f"s_cbranch_execz L_{name}_nosq2")
    A(f"buffer_atomic_add v4, v3, s[{S_N}:{S_N+3}], 0 offen")
    A.label(f"L_{name}_nosq2")
    A("s_mov_b64 exec, -1")
    A.label(f"L_{name}_nosq")
    A(f"s_mov_b32 s{S_HSIG}, -1")
    A(f"s_load_dwordx2 s[4:5], s[0:1], {KARG['wo']}")
    A(f"s_load_dwordx2 s[6:7], s[0:1], {KARG['w2']}")
    A(f"s_lshl_b32 s{S_T0}, s{S_NT}, 3"); A(f"s_add_u32 s{S_T0}, s{S_T0}, s{S_MT}")
    A(f"s_lshl_b32 s{S_T1}, s{S_WV}, 6"); A(f"v_add_u32 v9, s{S_T1}, v17"); A("v_lshlrev_b32 v9, 7, v9")
    A("s_waitcnt lgkmcnt(0)")
    A(f"s_mul_i32 s{S_T1}, s{S_T0}, 16384"); A(f"s_add_u32 s4, s4, s{S_T1}"); A("s_addc_u32 s5, s5, 0")
    srd(A, S_W, "s4", "s5", 16384)
    A(f"buffer_load_dword v10, v9, s[{S_W}:{S_W+3}], 0 offen")
    A(f"s_mul_i32 s{S_T1}, s{S_T0}, 57344"); A(f"s_add_u32 s6, s6, s{S_T1}"); A("s_addc_u32 s7, s7, 0")
    srd(A, S_W, "s6", "s7", 57344)
    A(f"buffer_load_dword v10, v9, s[{S_W}:{S_W+3}], 0 offen")
    A(f"s_mov_b32 s{S_T1}, 32768")
    A(f"buffer_load_dword v10, v9, s[{S_W}:{S_W+3}], s{S_T1} offen")
    A.label(fin)
    stamp(A, 'epi_end')
```

```python
class Asm:
    def __init__(self):
        self.lines = []
    def __call__(self, s=""):
        for l in s.split("\n"):
            l = l.strip()
            if l:
                self.lines.append("    " + l)
    def label(self, l):
        self.lines.append(l + ":")
    def raw(self, s):
        self.lines.append(s)
    def c(self, s):
        self.lines.append("    ; " + s)
    def text(self):
        return "\n".join(self.lines) + "\n"

def v(i, n=1):
    return f"v{i}" if n == 1 else f"v[{i}:{i+n-1}]"
def a(i, n=1):
    return f"a{i}" if n == 1 else f"a[{i}:{i+n-1}]"
def s(i, n=1):
    return f"s{i}" if n == 1 else f"s[{i}:{i+n-1}]"

def kernel_begin(A, name):
    A.raw(".text")
    A.raw(f".globl {name}")
    A.raw(".p2align 8")
    A.raw(f".type {name},@function")
    A.label(name)

def kernel_end(A, name, vgpr, accum, sgpr=102):
    A.raw('.section .rodata,"a"')
    A.raw(".p2align 6")
    A.raw(f".amdhsa_kernel {name}")
    A.raw(f"  .amdhsa_next_free_vgpr {vgpr}")
    A.raw(f"  .amdhsa_next_free_sgpr {sgpr}")
    A.raw(f"  .amdhsa_accum_offset {accum}")
    A.raw("  .amdhsa_group_segment_fixed_size 0")
    A.raw("  .amdhsa_kernarg_size 72")
    A.raw("  .amdhsa_user_sgpr_count 2")
    A.raw("  .amdhsa_user_sgpr_kernarg_segment_ptr 1")
    A.raw("  .amdhsa_system_sgpr_workgroup_id_x 1")
    A.raw("  .amdhsa_float_denorm_mode_32 3")
    A.raw(".end_amdhsa_kernel")

def srd(A, d, base_lo, base_hi, nbytes):
    A(f"s_mov_b32 s{d}, {base_lo}")
    A(f"s_and_b32 s{d+1}, {base_hi}, 0xffff")
    A(f"s_mov_b32 s{d+2}, {nbytes}")
    A(f"s_mov_b32 s{d+3}, 0x00020000")

def fbits(x):
    import struct
    return "0x%08x" % struct.unpack("<I", struct.pack("<f", x))[0]

PROF = {"on": False}
PROF_OFF = 60 << 20
OPT = {}
STAMPMAP = {}
def stamp(A, i, real=False):
    if not PROF["on"] or i is None: return
    m = STAMPMAP.get(OPT.get("fine", 0), None)
    if m is not None:
        if i not in m: return
        i = m[i]
    elif not isinstance(i, int): return
    A(f"s_memtime s[{64+4*i}:{65+4*i}]")
    A(f"s_memrealtime s[{66+4*i}:{67+4*i}]")
def prof_flush(A, kidx, nst, wave_sgpr, ws_lo=None):
    if not PROF["on"]: return
    A("s_waitcnt lgkmcnt(0) vmcnt(0)")
    A("s_load_dwordx2 s[4:5], s[0:1], 64")
    A("s_waitcnt lgkmcnt(0)")
    A(f"s_add_u32 s4, s4, {PROF_OFF + kidx * (1 << 18)}")
    A("s_addc_u32 s5, s5, 0")
    A("s_mov_b32 s8, s4"); A("s_and_b32 s9, s5, 0xffff"); A(f"s_mov_b32 s10, {1 << 18}"); A("s_mov_b32 s11, 0x00020000")
    A("s_lshl_b32 s6, s2, 3")
    A(f"s_add_u32 s6, s6, s{wave_sgpr}")
    A("s_lshl_b32 s6, s6, 6")
    A("s_mov_b64 exec, 1")
    for i in range(6):
        for k in range(2):
            A(f"v_mov_b32 v1, s{64+4*i+2*k}")
            A(f"v_mov_b32 v2, {8*i+4*k}")
            A("s_nop 1")
            A("buffer_store_dword v1, v2, s[8:11], s6 offen")
            A("s_nop 1")
    A("s_waitcnt vmcnt(0)")

STAMPMAP[1] = {2: 0, 'epi_end': 1, 'pre_poll': 2, 'poll_done': 3, 'norm_ok': 4, 3: 5}
STAMPMAP[2] = {0: 0, 'ln_loaded': 1, 'ln_stored': 2, 'ln_drained': 3, 'ln_got': 4, 1: 5}
STAMPMAP[4] = {0: 0, 1: 1, 'g1_it1': 2, 2: 3, 3: 4, 5: 5}
STAMPMAP[5] = {0: 0, 3: 1, 'at_b1': 2, 'at_b2': 3, 4: 4, 5: 5}
STAMPMAP[3] = {4: 0, 'g_start': 1, 'g_end': 2, 'p_ready': 3, 't_done': 4, 5: 5}
def opt(k, d=None): return OPT.get(k, d)

def dbg_flush(A, wave_sgpr):
    if not PROF["on"]: return
    A("s_waitcnt lgkmcnt(0) vmcnt(0)")
    A(f"s_cmp_eq_u32 s{wave_sgpr}, 0"); A("s_cbranch_scc0 L_dbgdone")
    A("s_cmp_eq_u32 s2, 200"); A("s_cselect_b32 s6, 4, 0")
    A("s_cmp_eq_u32 s2, 8"); A("s_cselect_b32 s6, 36, s6")
    A("s_cmp_eq_u32 s6, 0"); A("s_cbranch_scc1 L_dbgdone")
    A("s_load_dwordx2 s[4:5], s[0:1], 56")
    A("s_waitcnt lgkmcnt(0)")
    A("s_mov_b32 s8, s4"); A("s_and_b32 s9, s5, 0xffff"); A("s_mov_b32 s10, 256"); A("s_mov_b32 s11, 0x00020000")
    A("s_mov_b64 exec, 1")
    for i in range(1, 6):
        A(f"s_sub_u32 s7, s{66+4*i}, s66")
        A("v_mov_b32 v1, s7")
        A("s_nop 1")
        A(f"buffer_store_dword v1, off, s[8:11], s6 offset:{4*(i-1)}")
        A("s_nop 1")
    A("s_waitcnt vmcnt(0)")
    A.label("L_dbgdone")

def zero_vgprs(A, regs):
    regs = sorted(regs); i = 0
    while i < len(regs):
        r = regs[i]
        if r % 2 == 0 and i + 1 < len(regs) and regs[i + 1] == r + 1:
            A(f"v_mov_b64 v[{r}:{r+1}], 0"); i += 2
        else:
            A(f"v_mov_b32 v{r}, 0"); i += 1
```

```python
from asmlib import *
from layout import *
from vmsim import VmSim
import math

NCB = 14
def acc(cb, tb): return 32 + 4 * (cb * 4 + tb)
def xreg(slot, tb): return (slot * 4 + tb) * 4
def wreg(buf, cb): return 64 + (buf * NCB + cb) * 4
NAGPR = 176
SLOT = 32768
PITCH = 448
LN_LDS = 4 * SLOT
LDS_BYTES = 4 * SLOT + 256
V_X = 0; V_DMA = 1; V_TRE = 8; V_TRO = 9
S_W = 8; S_X = 12; S_O = 16; S_N = 20
S_WOFF = 24; S_XO = 25; S_IT = 29; S_WV = 30; S_MT = 31; S_BLK0 = 32; S_TYPE = 33
S_T0, S_T1, S_T2, S_T3 = 34, 35, 36, 37
S_M0CUR = 38; S_TOK = 39; S_WS = 40; S_LDW = 42; S_STG = 43; S_D = 52; S_M0A = 56; S_SLOT = 57; S_NT = 58

def tr_main(n, ncb=NCB):
    par = (n >> 1) & 1; sub = n & 1
    out = []
    for cb in range(ncb):
        for h in range(2):
            off = par * SLOT + sub * 32 * PITCH + h * 4 * PITCH + cb * 32
            ad = V_TRE if cb % 2 == 0 else V_TRO
            out.append(f"ds_read_b64_tr_b16 {a(wreg(n & 1, cb) + 2 * h, 2)}, {v(ad)} offset:{off}")
    return out
def x_load(slot, tb, imm):
    return f"buffer_load_dwordx4 {a(xreg(slot, tb), 4)}, {v(V_X)}, s[{S_X}:{S_X+3}], s{S_XO + tb} offen offset:{imm}{' sc1' if opt('x_sc1', 1) else ''}"
def dma(i):
    return f"buffer_load_dwordx4 {v(V_DMA + i)}, s[{S_W}:{S_W+3}], s{S_WOFF} offen offset:{(i & 3) * 1024} lds"
def w_next_stage():
    return [f"s_add_u32 s{S_WOFF}, s{S_WOFF}, s{S_STG}",
            f"s_add_u32 s{S_M0CUR}, s{S_M0CUR}, {SLOT}",
            f"s_and_b32 s{S_M0CUR}, s{S_M0CUR}, {4 * SLOT - 1}",
            f"s_mov_b32 m0, s{S_M0CUR}"]
def w_hi():
    return [f"s_add_u32 s{S_T0}, s{S_M0CUR}, 4096", f"s_mov_b32 m0, s{S_T0}"]

def body_vm_ops(it, PD, XD):
    ops = []
    for n in range(4):
        tgt = 4 * it + n + XD
        for tb in range(4): ops.append((n, ('X', tgt, tb)))
        if n & 1:
            st = 2 * it + (n >> 1) + PD
            for i in range(4): ops.append((n, ('W', st, i)))
        else:
            st = 2 * it + (n >> 1) - 1 + PD
            for i in range(4, 7): ops.append((n, ('W', st, i)))
    return ops

def gen_mainloop(A, name, ncb, swap, PD, XD, prologue_ops):
    NM = 4 * ncb
    waits = {n: 63 for n in range(4)}
    sim = VmSim()
    for t in prologue_ops: sim.issue(t)
    for it in range(4):
        ops = body_vm_ops(it, PD, XD)
        for n in range(4):
            g = 4 * it + n
            need = sim.need(lambda t: t[0] == 'X' and t[1] == g)
            if n & 1:
                st = 2 * it + (n >> 1) + 1
                nw = sim.need(lambda t: t[0] == 'W' and t[1] == st)
                if nw is not None: need = nw if need is None else min(need, nw)
            if need is not None: waits[n] = min(waits[n], need)
            for (s_, t) in ops:
                if s_ == n: sim.issue(t)
    A.raw(".p2align 6")
    A.label(f"L_{name}_loop")
    for n in range(4):
        A.c(f"---- step {n}")
        A(f"s_waitcnt vmcnt({waits[n]}) lgkmcnt(0)")
        if n & 1: A("s_barrier")
        reads = []
        if n == 3:
            reads += [f"v_xor_b32 {v(r)}, 0x10000, {v(r)}" for r in (V_TRE, V_TRO)]
        reads += tr_main(n + 1, ncb)
        tail = []
        tgt = n + XD
        if tgt == 4:
            tail += [f"s_add_u32 s{S_XO + tb}, s{S_XO + tb}, 2048" for tb in range(4)]
            tail += [f"s_cmp_eq_u32 s{S_IT}, 1", f"s_cselect_b32 s{S_X+2}, 0, s{S_X+2}"]
        xl = [x_load(tgt % 4, tb, (tgt % 4) * 512) for tb in range(4)]
        if n & 1:
            pre = w_next_stage() + ["s_nop 0"]; dm = [dma(i) for i in range(4)]
        else:
            pre = w_hi() + ["s_nop 0"]; dm = [dma(i) for i in range(4, 7)]
        fill = [[] for _ in range(NM)]
        for k, z in enumerate(reads): fill[k].append(z)
        k0 = 2
        for z in tail: fill[k0].append(z); k0 += 1
        vm = [[z] for z in xl]
        vm.append(pre + [dm[0]])
        vm += [[z] for z in dm[1:]]
        sp = opt("l1_vmsp", 5) if ncb == 14 else 4
        pos = max(k0, 10)
        for grp in vm:
            fill[min(pos, NM - 1)] += grp
            pos += sp
        for m in range(NM):
            cb, tb = (m // 4, m % 4) if not opt("l1_tbouter") else (m % ncb, m // ncb)
            if opt("l1_snake") and not opt("l1_tbouter") and (cb & 1): tb = 3 - tb
            d = v(acc(cb, tb), 4); w = a(wreg(n & 1, cb), 4); x = a(xreg(n, tb), 4)
            A(f"v_mfma_f32_16x16x32_bf16 {d}, {x}, {w}, {d}" if swap(cb) else f"v_mfma_f32_16x16x32_bf16 {d}, {w}, {x}, {d}")
            for z in fill[m]: A(z)
    A(f"s_sub_u32 s{S_IT}, s{S_IT}, 1")
    A(f"s_cmp_lg_u32 s{S_IT}, 0")
    A(f"s_cbranch_scc1 L_{name}_loop")

def ln_loads(A):
    A("v_and_b32 v3, 7, v1"); A("v_lshrrev_b32 v4, 3, v1")
    A("v_lshlrev_b32 v5, 11, v3"); A("v_lshl_add_u32 v5, v4, 4, v5")
    A(f"s_lshl_b32 s{S_T0}, s{S_WV}, 9")
    A(f"v_add_u32 v5, s{S_T0}, v5")
    A(f"s_lshl_b32 s{S_T1}, s2, 14")
    A("v_lshlrev_b32 v6, 11, v3")
    A(f"buffer_load_ushort v30, v6, s[{S_N}:{S_N+3}], s{S_T1} offen")
    for i in range(4):
        A(f"buffer_load_dwordx4 {v(32+4*i,4)}, v5, s[{S_N}:{S_N+3}], s{S_T1} offen offset:{i*128}")

def ln_compute(A, nafter, tag, zero_acc=False, pre_signal=None):
    A("v_and_b32 v24, 7, v1"); A("v_lshlrev_b32 v24, 3, v24")
    A(f"v_add_u32 v24, {LN_LDS}, v24")
    A(f"s_lshl_b32 s{S_T0}, s{S_WV}, 6")
    A(f"v_add_u32 v25, s{S_T0}, v24")
    A("s_mov_b32 s44, 0xffff0000")
    A(f"s_waitcnt vmcnt({nafter + 4})")
    A("v_lshlrev_b32 v30, 16, v30"); A("v_sub_f32 v30, 0, v30"); A("v_mov_b32 v31, v30")
    for i in range(4):
        A(f"s_waitcnt vmcnt({nafter + 3 - i})")
        for r in range(4):
            src = 32 + 4 * i + r
            A(f"v_lshlrev_b32 {v(64+2*(4*i+r))}, 16, {v(src)}")
            A(f"v_and_b32 {v(65+2*(4*i+r))}, s44, {v(src)}")
        for r in range(4):
            A(f"v_pk_add_f32 {v(64+2*(4*i+r),2)}, {v(64+2*(4*i+r),2)}, v[30:31]")
    stamp(A, 'ln_loaded')
    A("v_pk_add_f32 v[32:33], v[64:65], v[66:67]"); A("v_pk_mul_f32 v[34:35], v[64:65], v[64:65]")
    A("v_pk_add_f32 v[36:37], v[68:69], v[70:71]"); A("v_pk_mul_f32 v[38:39], v[66:67], v[66:67]")
    for i in range(2, 16):
        A(f"v_pk_fma_f32 {v(34+4*(i%2),2)}, {v(64+2*i,2)}, {v(64+2*i,2)}, {v(34+4*(i%2),2)}")
        if i >= 4: A(f"v_pk_add_f32 {v(32+4*(i%2),2)}, {v(32+4*(i%2),2)}, {v(64+2*i,2)}")
    A("v_pk_add_f32 v[32:33], v[32:33], v[36:37]"); A("v_pk_add_f32 v[34:35], v[34:35], v[38:39]")
    A("v_add_f32 v26, v32, v33"); A("v_add_f32 v27, v34, v35")
    A("s_nop 0")
    for r in (26, 27):
        A(f"v_add_f32_dpp {v(r)}, {v(r)}, {v(r)} row_ror:8 row_mask:0xf bank_mask:0xf")
    A("v_mov_b32 v28, v26"); A("v_mov_b32 v29, v27"); A("s_nop 0")
    A("v_permlane16_swap_b32 v26, v28"); A("v_permlane16_swap_b32 v27, v29"); A("s_nop 0")
    A("v_add_f32 v26, v26, v28"); A("v_add_f32 v27, v27, v29")
    A("v_mov_b32 v28, v26"); A("v_mov_b32 v29, v27"); A("s_nop 0")
    A("v_permlane32_swap_b32 v26, v28"); A("v_permlane32_swap_b32 v27, v29"); A("s_nop 0")
    A("v_add_f32 v26, v26, v28"); A("v_add_f32 v27, v27, v29")
    A("ds_write_b64 v25, v[26:27]")
    A("s_waitcnt lgkmcnt(0)")
    A("s_barrier")
    for w_ in range(4): A(f"ds_read_b64 {v(32+2*w_,2)}, v24 offset:{64*w_}")
    A("s_waitcnt lgkmcnt(0)")
    A("v_pk_add_f32 v[32:33], v[32:33], v[34:35]"); A("v_pk_add_f32 v[36:37], v[36:37], v[38:39]")
    A("v_pk_add_f32 v[32:33], v[32:33], v[36:37]")
    A(f"v_mul_f32 v32, {fbits(1.0/1024)}, v32")
    A(f"v_mov_b32 v30, {fbits(1e-5)}")
    A(f"v_fmac_f32 v30, {fbits(1.0/1024)}, v33")
    A("v_fma_f32 v30, -v32, v32, v30")
    A(f"v_max_f32 v30, {fbits(1e-5)}, v30")
    A("v_rsq_f32 v30, v30"); A("s_nop 0")
    A("v_mul_f32 v32, -v32, v30"); A("v_mov_b32 v31, v30"); A("v_mov_b32 v33, v32")
    for i in range(16): A(f"v_pk_fma_f32 {v(64+2*i,2)}, {v(64+2*i,2)}, v[30:31], v[32:33]")
    for i in range(16): A(f"v_cvt_pk_bf16_f32 {v(40+i)}, {v(64+2*i)}, {v(65+2*i)}")
    A("v_lshlrev_b32 v24, 4, v1")
    A(f"s_lshl_b32 s{S_T0}, s{S_WV}, 12")
    A(f"v_add_u32 v24, s{S_T0}, v24")
    A(f"s_mul_i32 s{S_T1}, s2, {XN_OCT}")
    for i in range(4):
        A(f"buffer_store_dwordx4 {v(40+4*i,4)}, v24, s[{S_X}:{S_X+3}], s{S_T1} offen offset:{i*1024} sc1")
    if zero_acc:
        zero_vgprs(A, list(range(64, 256)) + list(range(32, 40)))
    if pre_signal: pre_signal()
    stamp(A, 'ln_stored')
    A("s_waitcnt vmcnt(0)")
    A("s_barrier")
    stamp(A, 'ln_drained')
    if zero_acc:
        zero_vgprs(A, range(40, 64))
    A(f"s_cmp_eq_u32 s{S_WV}, 0")
    A(f"s_cbranch_scc0 L_l1_nosig{tag}")
    A(f"s_lshr_b32 s{S_T0}, s2, 5"); A(f"s_lshl_b32 s{S_T0}, s{S_T0}, 5")
    A("v_mov_b32 v24, 1")
    A("s_mov_b64 s[44:45], exec"); A("s_mov_b64 exec, 1")
    A(f"buffer_atomic_add v24, off, s[{S_D}:{S_D+3}], s{S_T0}")
    A("s_mov_b64 exec, s[44:45]")
    A.label(f"L_l1_nosig{tag}")

KNAME = "parallel_sum__softmax_full_mha__dense_activation_silu__prompt_kernel"
S_HSIG = 100
def gen_l1(name, A=None, end=None):
    PD = opt("l1_pd", 3); XD = opt("l1_xd", 3)
    fin = f"L_{name}_fin"
    A("s_cmp_ge_u32 s2, 256")
    A(f"s_cbranch_scc1 {end}")
    stamp(A, 0)
    A(f"s_load_dwordx2 s[4:5], s[0:1], {KARG['wqkv']}")
    A(f"s_load_dwordx2 s[6:7], s[0:1], {KARG['w1']}")
    A(f"s_load_dwordx2 s[{S_WS}:{S_WS+1}], s[0:1], {KARG['ws']}")
    A(f"s_load_dwordx2 s[44:45], s[0:1], {KARG['x']}")
    A(f"s_load_dwordx2 s[46:47], s[0:1], {KARG['dbg']}")
    A("v_mov_b32 v2, v0")
    A("v_and_b32 v1, 63, v0")
    A("v_lshrrev_b32 v3, 6, v0")
    A("s_and_b32 s3, s2, 7")
    A(f"v_readfirstlane_b32 s{S_WV}, v3")
    A(f"s_lshr_b32 s{S_SLOT}, s2, 3")
    A("s_and_b32 s48, s3, 1"); A("s_lshl_b32 s48, s48, 2")
    A(f"s_and_b32 s{S_T0}, s{S_SLOT}, 3")
    A(f"s_add_u32 s{S_MT}, s48, s{S_T0}")
    A("s_lshr_b32 s3, s3, 1"); A("s_lshl_b32 s3, s3, 2")
    A(f"s_lshr_b32 s{S_T0}, s{S_SLOT}, 2")
    A(f"s_and_b32 s{S_T1}, s{S_T0}, 3"); A(f"s_add_u32 s3, s3, s{S_T1}")
    A(f"s_lshr_b32 s{S_T0}, s{S_T0}, 2"); A(f"s_lshl_b32 s{S_T0}, s{S_T0}, 4")
    A(f"s_add_u32 s3, s3, s{S_T0}")
    A(f"s_mov_b32 s{S_NT}, s3")
    A(f"s_lshl_b32 s{S_TOK}, s{S_MT}, 8")
    A(f"s_lshl_b32 s{S_T0}, s{S_WV}, 6")
    A(f"s_add_u32 s{S_TOK}, s{S_TOK}, s{S_T0}")
    A("s_waitcnt lgkmcnt(0)")
    srd(A, S_N, "s44", "s45", 4 * MB)
    srd(A, S_D, "s46", "s47", 256)
    ln_loads(A)
    ncode = 0
    if opt("tlbpf", 0):
        offs = []
        def pad_in_page(pg, base, stride, payload, count):
            for b in range(count):
                a0 = base + b * stride + payload
                a0 = (a0 + 127) // 128 * 128
                if pg * 2 * MB <= a0 and a0 + 128 <= (pg + 1) * 2 * MB and a0 + 128 <= base + (b + 1) * stride: return a0
            return None
        for pg in range(2, 27):
            for (base, stride, payload, count) in ((QKV_OFF, QKV_BLK, 131072, 96), (AH_OFF, AH_TB, 144 * 2048, 64), (PART_OFF, PART_PAIR, 65536, 128), (XN_OFF, XN_OCT, 16384, 256)):
                a0 = pad_in_page(pg, base, stride, payload, count)
                if a0 is not None: offs.append(a0); break
        offs.append(NRM_OFF + 600 * 1024)
        A(f"s_add_u32 s48, s{S_WS}, 0"); A(f"s_addc_u32 s49, s{S_WS+1}, 0")
        srd(A, S_O, "s48", "s49", 64 * MB)
        A(f"v_mov_b32 v8, {offs[0]}")
        for i, o in enumerate(offs[1:], 1):
            A(f"s_mov_b32 s48, {o}"); A(f"v_writelane_b32 v8, s48, {i}")
        A(f"buffer_load_dword a201, v8, s[{S_O}:{S_O+3}], 0 offen"); ncode += 1
        A(f"s_load_dwordx2 s[48:49], s[0:1], {KARG['w2']}"); A(f"s_load_dwordx2 s[60:61], s[0:1], {KARG['wo']}"); A(f"s_load_dwordx2 s[62:63], s[0:1], {KARG['out']}")
        A("v_and_b32 v8, 3, v1"); A("v_lshlrev_b32 v8, 21, v8")
        A("s_waitcnt lgkmcnt(0)")
        for (p, size) in ((48, 3584 * 2048), (60, 1024 * 2048), (62, 4 * MB)):
            srd(A, S_O, f"s{p}", f"s{p+1}", size)
            A(f"buffer_load_dword a201, v8, s[{S_O}:{S_O+3}], 0 offen"); ncode += 1
    if opt("codepf", 0):
        A("s_getpc_b64 s[48:49]")
        A.label(f"L_{name}_pc")
        A(f"s_sub_u32 s48, s48, L_{name}_pc-{opt('kname', None) or KNAME}")
        A("s_subb_u32 s49, s49, 0")
        A("v_lshlrev_b32 v8, 7, v2")
        for k in range(2):
            A(f"v_add_u32 v9, {k * 32768}, v8")
            A(f"v_min_u32 v9, L_end-{KNAME}, v9")
            A("v_mov_b32 v21, s49")
            A("v_add_co_u32 v20, vcc, s48, v9"); A("s_nop 1"); A("v_addc_co_u32 v21, vcc, 0, v21, vcc")
            A("global_load_dword a200, v[20:21], off")
            ncode += 1
    A(f"s_add_u32 s44, s{S_WS}, {XN_OFF}"); A(f"s_addc_u32 s45, s{S_WS+1}, 0")
    srd(A, S_X, "s44", "s45", 256 * XN_OCT)
    A("s_cmp_lt_u32 s3, 16")
    A(f"s_cbranch_scc1 L_{name}_qkv")
    A(f"s_mov_b32 s{S_TYPE}, 2")
    A("s_sub_u32 s3, s3, 16")
    A(f"s_mul_i32 s{S_BLK0}, s3, 7")
    A(f"s_mov_b32 s{S_LDW}, 7168")
    A("s_mov_b32 s4, s6"); A("s_mov_b32 s5, s7")
    A(f"s_mov_b32 s{S_T1}, {1024 * 7168}")
    A("s_movk_i32 s59, 28")
    A(f"s_branch L_{name}_common")
    A.label(f"L_{name}_qkv")
    A(f"s_mov_b32 s{S_LDW}, 6144")
    A(f"s_mov_b32 s{S_T1}, {1024 * 6144}")
    A(f"s_mul_i32 s{S_BLK0}, s3, 6")
    A("s_movk_i32 s59, 24")
    A("s_cmp_lt_u32 s3, 10"); A(f"s_cselect_b32 s{S_TYPE}, 0, 1")
    A("s_cmp_eq_u32 s3, 10"); A(f"s_cselect_b32 s{S_TYPE}, 3, s{S_TYPE}")
    A.label(f"L_{name}_common")
    A(f"s_lshl_b32 s{S_T0}, s{S_BLK0}, 6")
    A(f"s_add_u32 s4, s4, s{S_T0}")
    A("s_addc_u32 s5, s5, 0")
    A(f"s_sub_u32 s{S_T1}, s{S_T1}, s{S_T0}")
    srd(A, S_W, "s4", "s5", f"s{S_T1}")
    A(f"s_lshl_b32 s{S_STG}, s{S_LDW}, 6")
    A(f"s_lshl_b32 s{S_T0}, s{S_WV}, 4")
    A(f"s_movk_i32 s{S_T2}, 2341")
    for i in range(7):
        A(f"v_add_u32 v3, {64 * i}, v1")
        A(f"v_mul_u32_u24 v4, s{S_T2}, v3")
        A("v_lshrrev_b32 v4, 16, v4")
        A("v_mul_u32_u24 v6, 28, v4")
        A("v_sub_u32 v6, v3, v6")
        A("v_lshrrev_b32 v7, 3, v4")
        A("v_lshlrev_b32 v7, 1, v7")
        A("v_xor_b32 v6, v6, v7")
        A(f"v_add_u32 v4, s{S_T0}, v4")
        A(f"v_mul_lo_u32 v4, v4, s{S_LDW}")
        A(f"v_lshl_add_u32 v4, v6, 4, v4")
        if i & 3: A(f"v_subrev_u32 v4, {(i & 3) * 1024}, v4")
        A("v_cmp_gt_u32 vcc, s59, v6"); A("v_mov_b32 v7, 0x7ffff000"); A("s_nop 0")
        A(f"v_cndmask_b32 {v(10 + i)}, v7, v4, vcc")
    A(f"s_mul_i32 s{S_M0A}, s{S_WV}, {16 * PITCH}")
    prol = []
    def dma_p(i, base):
        return f"buffer_load_dwordx4 {v(base + i)}, s[{S_W}:{S_W+3}], s{S_WOFF} offen offset:{(i & 3) * 1024} lds"
    def stage_dma(st, lo, hi, base):
        for i in range(lo, hi):
            if i == 0:
                A(f"s_mul_i32 s{S_WOFF}, s{S_STG}, {st}")
                A(f"s_add_u32 s{S_M0CUR}, s{S_M0A}, {(st & 3) * SLOT}")
                A(f"s_mov_b32 m0, s{S_M0CUR}"); A("s_nop 0")
            if i == 4:
                for z in w_hi(): A(z)
                A("s_nop 0")
            A(dma_p(i, base)); prol.append(('W', st, i))
    NPRE = opt("l1_npre", 0)
    for st in range(NPRE):
        stage_dma(st, 0, 7 if st < PD - 1 else 4, 10)
    ntouch = len(prol) - 7 + ncode
    def zero_flags():
        A("s_cmp_lt_u32 s2, 8")
        A(f"s_cbranch_scc0 L_{name}_nz2")
        A(f"s_add_u32 s44, s{S_WS}, {FLAGS_OFF}"); A(f"s_addc_u32 s45, s{S_WS+1}, 0")
        srd(A, S_N, "s44", "s45", NFLAGS * 128)
        A("v_mov_b32 v20, 0"); A("v_mov_b32 v21, 0"); A("v_mov_b32 v22, 0"); A("v_mov_b32 v23, 0")
        A("v_lshlrev_b32 v9, 4, v2")
        A(f"s_mul_i32 s{S_T1}, s2, {49 * 128}")
        A(f"buffer_store_dwordx4 v[20:23], v9, s[{S_N}:{S_N+3}], s{S_T1} offen sc1")
        A(f"s_add_u32 s{S_T1}, s{S_T1}, 4096")
        A("v_cmp_gt_u32 vcc, 136, v2")
        A("s_and_saveexec_b64 s[44:45], vcc")
        A(f"s_cbranch_execz L_{name}_nz")
        A(f"buffer_store_dwordx4 v[20:23], v9, s[{S_N}:{S_N+3}], s{S_T1} offen sc1")
        A.label(f"L_{name}_nz")
        A("s_mov_b64 exec, s[44:45]")
        A.label(f"L_{name}_nz2")
    ln_compute(A, 7 + ntouch, 't', True, zero_flags)
    prol.clear()
    for st in range(NPRE, PD):
        stage_dma(st, 0, 7 if st < PD - 1 else 4, 10)
    T3 = opt("l1_touch3", 0)
    if T3:
        A(f"s_cmp_eq_u32 s{S_WV}, 0"); A(f"s_cbranch_scc1 L_{name}_nt")
        A(f"s_cmp_eq_u32 s{S_TYPE}, 2"); A(f"s_cbranch_scc1 L_{name}_nt")
        A(f"s_load_dwordx2 s[44:45], s[0:1], {KARG['w1']}")
        A("v_lshrrev_b32 v3, 2, v1"); A("v_lshlrev_b32 v3, 3, v3"); A(f"v_add_u32 v3, s{S_MT}, v3")
        A("v_and_b32 v4, 3, v1"); A("v_lshlrev_b32 v4, 7, v4")
        A(f"s_sub_u32 s{S_T0}, s{S_WV}, 1")
        A(f"s_mul_i32 s{S_T1}, s{S_NT}, 448")
        A("s_waitcnt lgkmcnt(0)")
        A(f"s_add_u32 s44, s44, s{S_T1}"); A("s_addc_u32 s45, s45, 0"); A(f"s_sub_u32 s{S_T1}, {1024 * 7168}, s{S_T1}")
        srd(A, S_O, "s44", "s45", f"s{S_T1}")
        A("v_mul_u32_u24 v5, 7168, v3"); A("v_add_u32 v5, v5, v4")
        A(f"s_mul_i32 s{S_T2}, s{S_T0}, {128 * 7168}")
        for k in range(3):
            A(f"buffer_load_dword v21, v5, s[{S_O}:{S_O+3}], s{S_T2} offen")
            if k < 2: A(f"s_add_u32 s{S_T2}, s{S_T2}, {3 * 128 * 7168}")
        if T3 >= 2:
            A("v_mul_u32_u24 v5, 6144, v3"); A("v_add_u32 v5, v5, v4")
            A(f"s_mul_i32 s{S_T2}, s{S_T0}, {128 * 6144}")
            for k in range(3):
                A(f"buffer_load_dword v21, v5, s[{S_W}:{S_W+3}], s{S_T2} offen")
                if k < 2: A(f"s_add_u32 s{S_T2}, s{S_T2}, {3 * 128 * 6144}")
        A.label(f"L_{name}_nt")
    A("v_and_b32 v3, 15, v1"); A("v_lshrrev_b32 v4, 4, v1")
    A("v_lshrrev_b32 v5, 2, v3"); A("v_lshl_add_u32 v5, v4, 3, v5"); A(f"v_mul_u32_u24 v5, {PITCH}, v5")
    A("v_and_b32 v6, 3, v3"); A("v_lshl_add_u32 v5, v6, 3, v5")
    A("v_and_b32 v6, 1, v4"); A("v_lshlrev_b32 v6, 5, v6")
    A(f"v_add_u32 {v(V_TRE)}, v5, v6"); A(f"v_sub_u32 {v(V_TRO)}, v5, v6")
    A(f"v_lshrrev_b32 v5, 3, v3"); A(f"v_mul_u32_u24 v5, {XN_OCT}, v5")
    A("v_lshl_add_u32 v5, v4, 7, v5"); A("v_and_b32 v6, 7, v3")
    A(f"v_lshl_add_u32 {v(V_X)}, v6, 4, v5")
    A("v_mov_b32 v17, v1")
    for i in range(7): A(f"v_mov_b32 {v(V_DMA + i)}, {v(10 + i)}")
    A(f"s_lshr_b32 s{S_XO}, s{S_TOK}, 3"); A(f"s_mul_i32 s{S_XO}, s{S_XO}, {XN_OCT}")
    for tb in range(1, 4): A(f"s_add_u32 s{S_XO + tb}, s{S_XO}, {tb * 2 * XN_OCT}")
    A(f"s_cmp_eq_u32 s{S_WV}, 0")
    A(f"s_cbranch_scc0 L_{name}_got")
    A(f"s_lshl_b32 s{S_T0}, s{S_MT}, 5")
    A(f"v_mov_b32 v19, s{S_T0}"); A("v_mov_b32 v20, 0"); A("v_cmp_eq_u32 vcc, 0, v17"); A("s_nop 1"); A("v_cndmask_b32 v19, v19, v20, vcc")
    A(f"s_mov_b32 s{S_T1}, 0x8000")
    if opt('lnsleep0', 0): A(f"s_sleep {opt('lnsleep0', 0)}")
    A.label(f"L_{name}_poll")
    A(f"buffer_load_dword v18, v19, s[{S_D}:{S_D+3}], 0 offen sc1")
    A("s_waitcnt vmcnt(0)")
    A("v_cmp_le_u32 vcc, 32, v18")
    A(f"s_sub_u32 s{S_T1}, s{S_T1}, 1")
    A(f"s_cmp_eq_u32 s{S_T1}, 0")
    A(f"s_cbranch_scc1 L_{name}_got")
    A("s_nop 1")
    A("s_cmp_eq_u64 vcc, -1")
    A(f"s_cbranch_scc1 L_{name}_got")
    A(f"s_sleep {opt('lnsleep', 3)}")
    A(f"s_branch L_{name}_poll")
    A.label(f"L_{name}_got")
    A("s_waitcnt vmcnt(0)")
    A("s_barrier")
    stamp(A, 'ln_got')
    prol.clear()
    for s_ in range(XD):
        for tb in range(4):
            A(x_load(s_ % 4, tb, (s_ % 4) * 512))
    A(f"s_movk_i32 s{S_IT}, 8")
    sc = " sc1"
    c = (32 ** -0.5) * math.log2(math.e)
    def start_loop(tag, ncb, swap):
        for r in tr_main(0, ncb): A(r)
        A("s_waitcnt vmcnt(0)")
        stamp(A, 1)
        gen_mainloop(A, name + tag, ncb, swap, PD, XD, prol)
        A("s_waitcnt vmcnt(0)")
        A("s_barrier")
        stamp(A, 2)
        A("v_and_b32 v3, 15, v17"); A("v_lshrrev_b32 v4, 4, v17")
        A("v_lshrrev_b32 v7, 1, v4"); A("v_lshlrev_b32 v7, 10, v7")
        A("v_and_b32 v8, 1, v4"); A("v_lshl_add_u32 v7, v8, 9, v7")
    def qkv_srd():
        A(f"s_add_u32 s4, s{S_WS}, {QKV_OFF}"); A(f"s_addc_u32 s5, s{S_WS+1}, 0")
        srd(A, S_O, "s4", "s5", 96 * QKV_BLK)
    def qk_epi(ps):
        A(f"s_add_u32 s4, s{S_WS}, {NRM_OFF}"); A(f"s_addc_u32 s5, s{S_WS+1}, 0")
        srd(A, S_N, "s4", "s5", 512 * 1024)
        A("v_lshl_add_u32 v8, v3, 4, v7")
        A("v_lshrrev_b32 v9, 3, v3"); A("v_lshlrev_b32 v9, 8, v9")
        A("v_and_b32 v10, 7, v3"); A("v_lshl_add_u32 v9, v10, 4, v9")
        A("v_add_u32 v9, v9, v7")
        A("v_lshlrev_b32 v10, 2, v17")
        A("v_and_b32 v11, 1, v4"); A("v_cmp_eq_u32 s[48:49], 1, v11")
        A("v_cmp_le_u32 s[60:61], 2, v4")
        N0 = 24
        for p in ps:
            A(f"s_add_u32 s{S_T0}, s{S_BLK0}, {p}")
            A(f"s_cmp_lt_u32 s{S_T0}, 32")
            A(f"s_cselect_b32 s44, {fbits(c)}, 1.0")
            A(f"s_cselect_b32 s46, 0, 1")
            A("s_mov_b32 s45, s44")
            A(f"s_mul_i32 s{S_T1}, s{S_T0}, {QKV_BLK}")
            A(f"s_lshl_b32 s{S_T2}, s{S_TOK}, 6")
            A(f"s_add_u32 s{S_T1}, s{S_T1}, s{S_T2}")
            A(f"s_lshl_b32 s{S_T2}, s{S_T0}, 13")
            A(f"s_lshl_b32 s{S_T3}, s{S_TOK}, 2")
            A(f"s_add_u32 s{S_T2}, s{S_T2}, s{S_T3}")
            A(f"s_cmp_eq_u32 s46, 1")
            A("s_cselect_b64 vcc, -1, 0")
            A("s_lshr_b32 s47, 256, s46")
            A(f"s_add_u32 s47, s47, s{S_T1}")
            A("v_cndmask_b32 v11, v8, v9, vcc")
            EF = [(acc(2 * p, tb), acc(2 * p + 1, tb)) for tb in range(4)]
            for (E, F) in EF:
                for R in (E, E + 2, F, F + 2): A(f"v_pk_mul_f32 {v(R, 2)}, {v(R, 2)}, s[44:45]")
            for tb, (E, F) in enumerate(EF): A(f"v_pk_mul_f32 {v(N0 + 2 * tb, 2)}, {v(E, 2)}, {v(E, 2)}")
            for k in range(3):
                for tb, (E, F) in enumerate(EF):
                    R = (E + 2, F, F + 2)[k]
                    A(f"v_pk_fma_f32 {v(N0 + 2 * tb, 2)}, {v(R, 2)}, {v(R, 2)}, {v(N0 + 2 * tb, 2)}")
            for tb, (E, F) in enumerate(EF):
                A(f"v_cvt_pk_bf16_f32 {v(E)}, {v(E)}, {v(E + 1)}")
                A(f"v_cvt_pk_bf16_f32 {v(E + 1)}, {v(E + 2)}, {v(E + 3)}")
                A(f"v_cvt_pk_bf16_f32 {v(E + 2)}, {v(F)}, {v(F + 1)}")
                A(f"v_cvt_pk_bf16_f32 {v(E + 3)}, {v(F + 2)}, {v(F + 3)}")
                so = "s47" if tb & 1 else f"s{S_T1}"
                A(f"buffer_store_dwordx4 {v(E, 4)}, v11, s[{S_O}:{S_O+3}], {so} offen offset:{(tb >> 1) * 2048}{sc}")
            for tb in range(4): A(f"v_add_f32 {v(N0 + 2 * tb)}, {v(N0 + 2 * tb)}, {v(N0 + 2 * tb + 1)}")
            for tb in range(4): A(f"v_mov_b32 {v(20 + tb)}, {v(N0 + 2 * tb)}")
            for tb in range(4): A(f"v_permlane32_swap_b32 {v(N0 + 2 * tb)}, {v(20 + tb)}")
            for tb in range(4): A(f"v_add_f32 {v(N0 + 2 * tb)}, {v(N0 + 2 * tb)}, {v(20 + tb)}")
            for tb in range(4): A(f"v_mov_b32 {v(20 + tb)}, {v(N0 + 2 * tb)}")
            for tb in range(4): A(f"v_permlane16_swap_b32 {v(N0 + 2 * tb)}, {v(20 + tb)}")
            for tb in range(4): A(f"v_add_f32 {v(N0 + 2 * tb)}, {v(N0 + 2 * tb)}, {v(20 + tb)}")
            A(f"v_cndmask_b32 {v(N0)}, {v(N0)}, {v(N0 + 2)}, s[48:49]")
            A(f"v_cndmask_b32 {v(N0 + 4)}, {v(N0 + 4)}, {v(N0 + 6)}, s[48:49]")
            A(f"v_cndmask_b32 {v(N0)}, {v(N0)}, {v(N0 + 4)}, s[60:61]")
            A(f"buffer_store_dword {v(N0)}, v10, s[{S_N}:{S_N+3}], s{S_T2} offen sc1")
    def v_epi(cbs):
        A("v_lshl_add_u32 v6, v3, 4, v7")
        A(f"s_mul_i32 s{S_T3}, s{S_BLK0}, {QKV_BLK}")
        A(f"s_lshl_b32 s47, s{S_TOK}, 6")
        A(f"s_add_u32 s{S_T3}, s{S_T3}, s47")
        for kb in range(2):
            for cb in cbs:
                E = acc(cb, 2 * kb); F = acc(cb, 2 * kb + 1)
                A(f"v_cvt_pk_bf16_f32 {v(E)}, {v(E)}, {v(E + 1)}")
                A(f"v_cvt_pk_bf16_f32 {v(E + 1)}, {v(E + 2)}, {v(E + 3)}")
                A(f"v_cvt_pk_bf16_f32 {v(E + 2)}, {v(F)}, {v(F + 1)}")
                A(f"v_cvt_pk_bf16_f32 {v(E + 3)}, {v(F + 2)}, {v(F + 3)}")
                A(f"s_add_u32 s47, s{S_T3}, {(cb >> 1) * QKV_BLK + kb * 2048}")
                A(f"buffer_store_dwordx4 {v(E, 4)}, v6, s[{S_O}:{S_O+3}], s47 offen offset:{(cb & 1) * 256}{sc}")
    A(f"s_cmp_eq_u32 s{S_TYPE}, 2"); A(f"s_cbranch_scc1 L_{name}_hpath")
    A(f"s_cmp_eq_u32 s{S_TYPE}, 1"); A(f"s_cbranch_scc1 L_{name}_vpath")
    A(f"s_cmp_eq_u32 s{S_TYPE}, 3"); A(f"s_cbranch_scc1 L_{name}_mpath")
    start_loop("_n", 12, lambda cb: False)
    qkv_srd(); qk_epi(range(6))
    A(f"s_branch L_{name}_sigqkv")
    A.label(f"L_{name}_mpath")
    start_loop("_m", 12, lambda cb: cb >= 8)
    qkv_srd(); v_epi(range(8, 12)); qk_epi(range(4))
    A(f"s_branch L_{name}_sigqkv")
    A.label(f"L_{name}_vpath")
    start_loop("_v", 12, lambda cb: True)
    qkv_srd(); v_epi(range(12))
    A(f"s_branch L_{name}_sigqkv")
    A.label(f"L_{name}_hpath")
    start_loop("_h", 14, lambda cb: False)
    A(f"s_add_u32 s4, s{S_WS}, {AH_OFF}"); A(f"s_addc_u32 s5, s{S_WS+1}, 0")
    srd(A, S_O, "s4", "s5", 64 * AH_TB)
    A("v_lshl_add_u32 v7, v3, 4, v7")
    A(f"s_lshr_b32 s{S_T1}, s{S_TOK}, 5")
    A(f"s_mul_i32 s{S_T1}, s{S_T1}, {AH_TB}")
    A(f"s_lshl_b32 s{S_T2}, s{S_BLK0}, 11")
    A(f"s_add_u32 s{S_T1}, s{S_T1}, s{S_T2}")
    A(f"s_add_u32 s{S_T1}, s{S_T1}, {32 * 2048}")
    A(f"s_mov_b32 s44, {fbits(-math.log2(math.e))}"); A("s_mov_b32 s45, s44")
    A("s_mov_b32 s46, 1.0"); A("s_mov_b32 s47, 1.0")
    EARLY = opt("earlyp2", 0) and not opt("hdefer", 0)
    def silu_groups(ps, TP, so, sbase, stmp):
        for p in ps:
            for tb in range(4):
                E = acc(2 * p, tb); F = acc(2 * p + 1, tb)
                prs = [E, E + 2, F, F + 2]
                for k, R in enumerate(prs): A(f"v_pk_mul_f32 {v(TP[k], 2)}, {v(R, 2)}, s[44:45]")
                for k in range(4):
                    A(f"v_exp_f32 {v(TP[k])}, {v(TP[k])}"); A(f"v_exp_f32 {v(TP[k] + 1)}, {v(TP[k] + 1)}")
                for k in range(4): A(f"v_pk_add_f32 {v(TP[k], 2)}, {v(TP[k], 2)}, s[46:47]")
                for k in range(4):
                    A(f"v_rcp_f32 {v(TP[k])}, {v(TP[k])}"); A(f"v_rcp_f32 {v(TP[k] + 1)}, {v(TP[k] + 1)}")
                defer = (4 * p + tb) & 1 and opt("hdefer", 0)
                if not defer: A(f"s_add_u32 s{stmp}, s{sbase}, {(tb >> 1) * AH_TB + p * 2048 + (tb & 1) * 256}")
                for k, R in enumerate(prs): A(f"v_pk_mul_f32 {v(R, 2)}, {v(R, 2)}, {v(TP[k], 2)}")
                A(f"v_cvt_pk_bf16_f32 {v(E)}, {v(E)}, {v(E + 1)}")
                A(f"v_cvt_pk_bf16_f32 {v(E + 1)}, {v(E + 2)}, {v(E + 3)}")
                A(f"v_cvt_pk_bf16_f32 {v(E + 2)}, {v(F)}, {v(F + 1)}")
                A(f"v_cvt_pk_bf16_f32 {v(E + 3)}, {v(F + 2)}, {v(F + 3)}")
                q = 4 * p + tb
                if defer:
                    for r in range(4): A(f"v_accvgpr_write_b32 {a(128 + 4 * (q >> 1) + r)}, {v(E + r)}")
                else:
                    A(f"buffer_store_dwordx4 {v(E, 4)}, v7, s[{so}:{so+3}], s{stmp} offen{sc}")
    NP1 = opt("earlynp", 4) if EARLY else 7
    silu_groups(range(NP1), [8, 10, 12, 14], S_O, S_T1, S_T2)
    A(f"s_mov_b32 s55, s{S_T1}")
    A(f"s_mov_b32 s{S_HSIG}, s{S_MT}")
    A(f"s_branch {fin}")
    if EARLY:
        A.label("L_silu2")
        silu_groups(range(NP1, 7), [24, 26, 28, 30], 20, 55, 59)
        A("s_branch L_p2b")
    A.label(f"L_{name}_sigqkv")
    A(f"s_add_u32 s4, s{S_WS}, {FLAGS_OFF + PRIV_LINE * 128}"); A(f"s_addc_u32 s5, s{S_WS+1}, 0")
    srd(A, S_N, "s4", "s5", 256 * 128)
    A(f"s_mul_i32 s{S_T0}, s{S_NT}, 6")
    A("v_lshrrev_b32 v3, 3, v17"); A(f"v_add_u32 v3, s{S_T0}, v3")
    A("v_cmp_gt_u32 vcc, 48, v17"); A("s_nop 3"); A("s_mov_b64 s[44:45], vcc")
    A("v_and_b32 v3, 31, v3")
    A("v_lshrrev_b32 v4, 2, v3")
    A("v_and_b32 v3, 3, v3"); A("v_lshlrev_b32 v3, 3, v3"); A("v_and_b32 v5, 7, v17"); A("v_or_b32 v3, v3, v5")
    A("v_lshl_add_u32 v3, v3, 3, v4"); A("v_lshlrev_b32 v3, 7, v3")
    A("v_mov_b32 v4, 1")
    A("s_waitcnt vmcnt(0)")
    A("s_barrier")
    A(f"s_cmp_eq_u32 s{S_WV}, 0")
    A(f"s_cbranch_scc0 L_{name}_nosq")
    A("s_mov_b64 exec, s[44:45]")
    A(f"s_cbranch_execz L_{name}_nosq2")
    A(f"buffer_atomic_add v4, v3, s[{S_N}:{S_N+3}], 0 offen")
    A.label(f"L_{name}_nosq2")
    A("s_mov_b64 exec, -1")
    A.label(f"L_{name}_nosq")
    A(f"s_mov_b32 s{S_HSIG}, -1")
    A(f"s_load_dwordx2 s[4:5], s[0:1], {KARG['wo']}")
    A(f"s_load_dwordx2 s[6:7], s[0:1], {KARG['w2']}")
    A(f"s_lshl_b32 s{S_T0}, s{S_NT}, 3"); A(f"s_add_u32 s{S_T0}, s{S_T0}, s{S_MT}")
    A(f"s_lshl_b32 s{S_T1}, s{S_WV}, 6"); A(f"v_add_u32 v9, s{S_T1}, v17"); A("v_lshlrev_b32 v9, 7, v9")
    A("s_waitcnt lgkmcnt(0)")
    A(f"s_mul_i32 s{S_T1}, s{S_T0}, 16384"); A(f"s_add_u32 s4, s4, s{S_T1}"); A("s_addc_u32 s5, s5, 0")
    srd(A, S_W, "s4", "s5", 16384)
    A(f"buffer_load_dword v10, v9, s[{S_W}:{S_W+3}], 0 offen")
    A(f"s_mul_i32 s{S_T1}, s{S_T0}, 57344"); A(f"s_add_u32 s6, s6, s{S_T1}"); A("s_addc_u32 s7, s7, 0")
    srd(A, S_W, "s6", "s7", 57344)
    A(f"buffer_load_dword v10, v9, s[{S_W}:{S_W+3}], 0 offen")
    A(f"s_mov_b32 s{S_T1}, 32768")
    A(f"buffer_load_dword v10, v9, s[{S_W}:{S_W+3}], s{S_T1} offen")
    A.label(fin)
    stamp(A, 'epi_end')
```

```python
from asmlib import *
from layout import *
from vmsim import VmSim
import math

R = 8
V_L16 = 2
Q = {'a': 8, 'b': 16}
S = {'a': 32, 'b': 48}
P = {'a': 64, 'b': 72}
O = {'a': 80, 'b': 96}
L = {'a': 112, 'b': 128}
SEL = 144
M = {'a': 148, 'b': 149}
LS = {'a': 150, 'b': 151}
def kreg(slot, j): return slot * 16 + j * 4
def vreg(slot, j): return slot * 16 + 8 + j * 4
ACC = 152
def gacc(cb): return ACC + cb * 16
V_TR = 216
V_WD = 232
V_F = 221
V_FA = 222
NV = 232
def areg(slot, j): return (128 + (slot * 2 + j) * 4) if slot < 8 else ((slot - 8) * 2 + j) * 4
def wreg(buf, j, cb): return 192 + (buf * 8 + j * 4 + cb) * 4
WSLOT = 32768
LDS_BYTES = 4 * WSLOT
S_K = 8; S_V = 12; S_Q = 16; S_O = 20; S_N = 24
S_KOFF = 28; S_IT = 29; S_WV = 30; S_HEAD = 31; S_TB = 32
S_WS = 34
S_GW = 40; S_GA = 44; S_F = 48
S_WO = 52
S_WOFF = 56; S_AOFF = 57; S_M0 = 58; S_WST = 59; S_AST = 60; S_HALF = 61; S_MT = 62; S_NT = 63
S_WSW = 88; S_ASW = 89; S_AEND = 90; S_FIRST = 91; S_GOTP = 92; S_TD = 93; S_NIT = 94
S_QT = 33

def qk(x, slot, j):
    c = "0" if j == 0 else v(S[x], 16)
    return f"v_mfma_f32_32x32x16_bf16 {v(S[x],16)}, {a(kreg(slot, j),4)}, {v(Q[x]+4*j,4)}, {c}"
def pv(x, slot, j):
    return f"v_mfma_f32_32x32x16_bf16 {v(O[x],16)}, {a(vreg(slot, j),4)}, {v(P[x]+4*j,4)}, {v(O[x],16)}"
def rs(x, j):
    if opt("rs32", 0):
        return f"v_mfma_f32_32x32x16_bf16 {v(L[x],16)}, {v(SEL,4)}, {v(P[x]+4*j,4)}, {v(L[x],16)}"
    return f"v_mfma_f32_16x16x32_bf16 {v(L[x],4)}, {v(SEL,4)}, {v(P[x]+4*j,4)}, {v(L[x],4)}"
def kload(slot, j, off, so=None):
    return f"buffer_load_dwordx4 {a(kreg(slot, j),4)}, {v(V_L16)}, s[{S_K}:{S_K+3}], s{so or S_KOFF} offen offset:{off + j*1024} sc1"
def vload(slot, j, off, so=None):
    return f"buffer_load_dwordx4 {a(vreg(slot, j),4)}, {v(V_L16)}, s[{S_V}:{S_V+3}], s{so or S_KOFF} offen offset:{off + j*1024} sc1"

def half(A, x, mf, extra):
    e = [f"v_exp_f32 {v(S[x]+i)}, {v(S[x]+i)}" for i in range(16)]
    c = [f"v_cvt_pk_bf16_f32 {v(P[x]+i)}, {v(S[x]+2*i)}, {v(S[x]+2*i+1)}" for i in range(8)]
    seq = [e[0], e[1], e[2], e[3], c[0], e[4], e[5], c[1], e[6], e[7], c[2], e[8], e[9], c[3],
           e[10], e[11], c[4], e[12], e[13], c[5], e[14], e[15], c[6], c[7]]
    mpos = opt("mpos", [0, 3, 8, 12, 17, 21]) if not opt("rs32", 0) else [0, 4, 8, 12, 16, 20]
    k = 0
    for i, ins in enumerate(seq):
        if k < len(mf) and i == mpos[k]:
            A(mf[k]); k += 1
        A(ins)
        for z in extra.get(i, []): A(z)

G16 = lambda: opt("g16", 1)
V_TR16 = 240
V_GA = 248
def wreg16(buf, cb): return 192 + (buf * 8 + cb) * 4
def gacc16(cb, tb): return ACC + (cb * 2 + tb) * 4
def g_tr(n):
    st = (n >> 2) & 1; sub = n & 3
    out = []
    if G16():
        for cb in range(8):
            for h in range(2):
                out.append(f"ds_read_b64_tr_b16 {a(wreg16(n & 1, cb) + 2 * h, 2)}, {v(V_TR16 + cb)} offset:{st * WSLOT + sub * 8192 + h * 4096}")
        return out
    for j in range(2):
        for cb in range(4):
            for h in range(2):
                out.append(f"ds_read_b64_tr_b16 {a(wreg(n & 1, j, cb) + 2 * h, 2)}, {v(V_TR + cb)} offset:{st * WSLOT + sub * 8192 + j * 2048 + h * 4096}")
    return out
def g_aload(slot, j, imm):
    if G16():
        return f"buffer_load_dwordx4 {a(areg(slot, j), 4)}, {v(V_GA)}, s[{S_GA}:{S_GA+3}], s{S_AOFF} offen offset:{imm - j * 1024 + j * 256} sc1"
    return f"buffer_load_dwordx4 {a(areg(slot, j), 4)}, {v(V_L16)}, s[{S_GA}:{S_GA+3}], s{S_AOFF} offen offset:{imm} sc1"
def g_dma(i):
    pre = [f"s_add_u32 m0, s{S_M0}, 4096", "s_nop 0"] if i == 4 else []
    return pre + [f"buffer_load_dwordx4 {v(V_WD + i)}, s[{S_GW}:{S_GW+3}], s{S_WOFF} offen offset:{(i & 3) * 1024} lds"]
def g_next_stage(switch=False):
    out = [f"s_add_u32 s{S_WOFF}, s{S_WOFF}, {128 * 2048}"]
    if switch:
        out += [f"s_cmp_eq_u32 s{S_IT}, s{S_AEND}",
                f"s_cselect_b32 s{S_WOFF}, s{S_WSW}, s{S_WOFF}",
                f"s_cselect_b32 s{S_GW}, s{S_WO}, s{S_GW}",
                f"s_cselect_b32 s{S_GW+1}, s{S_WO+1}, s{S_GW+1}",
                f"s_cselect_b32 s{S_GW+2}, s{S_WO+2}, s{S_GW+2}"]
    out += [f"s_add_u32 s{S_M0}, s{S_M0}, {WSLOT}",
            f"s_and_b32 s{S_M0}, s{S_M0}, {4 * WSLOT - 1}",
            f"s_mov_b32 m0, s{S_M0}", "s_nop 0"]
    return out
def g_flagload():
    return f"buffer_load_dword {v(V_F)}, {v(V_FA)}, s[{S_F}:{S_F+3}], 0 offen sc1"

def spin(A, name, tag, lane, target, st1, st2):
    A(f"s_mov_b32 s{st1}, 0x8000")
    A.label(f"L_{name}_spin{tag}")
    A(g_flagload())
    A("s_waitcnt vmcnt(0)")
    A(f"v_readlane_b32 s{st2}, {v(V_F)}, {lane}")
    A(f"s_sub_u32 s{st1}, s{st1}, 1")
    A(f"s_cmp_eq_u32 s{st1}, 0")
    A(f"s_cbranch_scc1 L_{name}_spun{tag}")
    A(f"s_cmp_ge_u32 s{st2}, {target}")
    A(f"s_cbranch_scc1 L_{name}_spun{tag}")
    A(f"s_sleep {opt('spinsleep', 4)}")
    A(f"s_branch L_{name}_spin{tag}")
    A.label(f"L_{name}_spun{tag}")

S_HSIG = 100
V_H = 231
V_HA = 230
def gen_l2(name, A):
    ASYM = opt("gasym", 0)
    PD = 4; XD = 15; NB = 16 if ASYM else 24
    fin = f"L_{name}_fin"
    GS = opt("g_stamps")
    A(f"s_load_dwordx2 s[{S_WS}:{S_WS+1}], s[0:1], {KARG['ws']}")
    A(f"s_load_dwordx2 s[{S_WO}:{S_WO+1}], s[0:1], {KARG['wo']}")
    A(f"s_load_dwordx2 s[4:5], s[0:1], {KARG['w2']}")
    A(f"s_load_dwordx2 s[96:97], s[0:1], {KARG['x']}")
    A(f"s_load_dwordx2 s[98:99], s[0:1], {KARG['out']}")
    A("s_and_b32 s3, s2, 7")
    A("s_lshr_b32 s6, s2, 3")
    A("s_lshl_b32 s7, s3, 2")
    A("s_lshr_b32 s36, s6, 3")
    A(f"s_add_u32 s{S_HEAD}, s7, s36")
    A(f"s_and_b32 s{S_QT}, s6, 7")
    if opt("gmap", 0):
        A(f"s_and_b32 s{S_HALF}, s3, 1")
        A("s_lshr_b32 s7, s3, 1"); A("s_and_b32 s36, s7, 1"); A("s_lshl_b32 s36, s36, 3"); A("s_and_b32 s37, s6, 7")
        A(f"s_add_u32 s{S_MT}, s36, s37")
        A("s_lshr_b32 s7, s7, 1"); A("s_lshl_b32 s7, s7, 2"); A("s_lshr_b32 s36, s6, 3")
        A(f"s_add_u32 s{S_NT}, s7, s36")
    else:
        if ASYM:
            A(f"s_lshr_b32 s{S_HALF}, s6, 4"); A("s_and_b32 s6, s6, 15")
        else:
            A(f"s_and_b32 s{S_HALF}, s6, 1")
            A("s_lshr_b32 s6, s6, 1")
        A("s_and_b32 s7, s3, 3"); A("s_lshl_b32 s7, s7, 2"); A("s_and_b32 s36, s6, 3")
        A(f"s_add_u32 s{S_MT}, s7, s36")
        A("s_lshr_b32 s7, s3, 2"); A("s_lshl_b32 s7, s7, 2"); A("s_lshr_b32 s36, s6, 2")
        A(f"s_add_u32 s{S_NT}, s7, s36")
    A("v_mbcnt_lo_u32_b32 v1, -1, 0"); A("v_mbcnt_hi_u32_b32 v1, -1, v1")
    A(f"v_lshlrev_b32 {v(V_L16)}, 4, v1")
    A(f"s_lshl_b32 s6, s{S_QT}, 3")
    A(f"s_lshl_b32 s7, s{S_WV}, 1")
    A(f"s_add_u32 s{S_TB}, s6, s7")
    A("s_waitcnt lgkmcnt(0)")
    WS = f"s{S_WS}"; WS1 = f"s{S_WS+1}"
    A(f"s_mul_i32 s6, s{S_HEAD}, {QKV_BLK}")
    A(f"s_add_u32 s36, {WS}, {QKV_OFF}"); A(f"s_addc_u32 s37, {WS1}, 0")
    A("s_add_u32 s36, s36, s6"); A("s_addc_u32 s37, s37, 0")
    srd(A, S_Q, "s36", "s37", 131072)
    A(f"s_add_u32 s36, s36, {32*QKV_BLK}"); A("s_addc_u32 s37, s37, 0")
    srd(A, S_K, "s36", "s37", 131072)
    A(f"s_add_u32 s36, s36, {32*QKV_BLK}"); A("s_addc_u32 s37, s37, 0")
    A("s_sub_u32 s38, s36, 2048"); A("s_subb_u32 s39, s37, 0")
    srd(A, S_V, "s38", "s39", 131072 + 2048)
    A(f"s_add_u32 s36, {WS}, {NRM_OFF}"); A(f"s_addc_u32 s37, {WS1}, 0")
    srd(A, S_N, "s36", "s37", 512*1024)
    EARLY = opt("earlyp2", 0) and not opt("hdefer", 0)
    def gemm_setup():
        A(f"s_lshl_b32 s6, s{S_NT}, 8")
        A(f"s_add_u32 s{S_WO}, s{S_WO}, s6"); A(f"s_addc_u32 s{S_WO+1}, s{S_WO+1}, 0")
        A(f"s_and_b32 s{S_WO+1}, s{S_WO+1}, 0xffff")
        A(f"s_sub_u32 s{S_WO+2}, {1024*2048}, s6")
        A("s_add_u32 s4, s4, s6"); A("s_addc_u32 s5, s5, 0")
        A(f"s_sub_u32 s7, {3584*2048}, s6")
        srd(A, S_GW, "s4", "s5", "s7")
        A(f"s_add_u32 s36, {WS}, {AH_OFF}"); A(f"s_addc_u32 s37, {WS1}, 0")
        A(f"s_lshl_b32 s6, s{S_MT}, 2"); A(f"s_add_u32 s6, s6, s{S_WV}")
        A(f"s_mul_i32 s6, s6, {AH_TB}")
        A("s_add_u32 s36, s36, s6"); A("s_addc_u32 s37, s37, 0")
        srd(A, S_GA, "s36", "s37", AH_TB)
        A(f"s_add_u32 s36, {WS}, {FLAGS_OFF}"); A(f"s_addc_u32 s37, {WS1}, 0")
        srd(A, S_F, "s36", "s37", NFLAGS * 128)
        if ASYM:
            A(f"s_cmp_eq_u32 s{S_HALF}, 0")
            A(f"s_cselect_b32 s{S_AOFF}, 32, 0x50"); A(f"s_lshl_b32 s{S_AOFF}, s{S_AOFF}, 11")
            A(f"s_cmp_eq_u32 s{S_HALF}, 0")
            A(f"s_cselect_b32 s{S_WOFF}, 0, {1536*2048}")
            A(f"s_cselect_b32 s{S_AEND}, 3, 0x3e8")
            A(f"s_cselect_b32 s{S_NIT}, 5, 4")
            A(f"s_mov_b32 s{S_WSW}, 0"); A(f"s_mov_b32 s{S_ASW}, 0")
        else:
            A(f"s_mul_i32 s6, s{S_HALF}, 56"); A("s_add_u32 s6, s6, 32"); A(f"s_lshl_b32 s{S_AOFF}, s6, 11")
            A(f"s_mul_i32 s{S_WOFF}, s{S_HALF}, {1792*2048}")
            A(f"s_lshl_b32 s{S_WSW}, s{S_HALF}, 20")
            A(f"s_lshl_b32 s{S_ASW}, s{S_HALF}, 15")
            A(f"s_add_u32 s6, s{S_HALF}, 1"); A("s_lshl_b32 s6, s6, 20"); A(f"s_lshl_b32 s7, s{S_NT}, 8")
            A(f"s_sub_u32 s{S_WO+2}, s6, s7")
            A(f"s_mov_b32 s{S_AEND}, 2"); A(f"s_mov_b32 s{S_NIT}, 3")
        A(f"s_lshr_b32 s6, s{S_MT}, 1"); A("s_lshl_b32 s6, s6, 7")
        A(f"s_lshl_b32 s7, s{S_MT}, 3"); A(f"s_add_u32 s7, s7, s{S_NT}"); A("s_add_u32 s7, s7, 8"); A("s_lshl_b32 s7, s7, 7")
        A(f"s_xor_b32 s36, s{S_HALF}, 1"); A("s_lshl_b32 s36, s36, 2"); A("s_add_u32 s7, s7, s36")
        A("v_mov_b32 v5, s7"); A("v_mov_b32 v6, s6"); A("v_cmp_eq_u32 vcc, 0, v1"); A("s_nop 1")
        A(f"v_cndmask_b32 {v(V_FA)}, v5, v6, vcc")
        A("v_lshrrev_b32 v5, 4, v1"); A("v_and_b32 v6, 15, v1")
        A(f"s_lshl_b32 s6, s{S_WV}, 5")
        if G16():
            for i in range(8):
                A(f"v_add_u32 v7, {4 * (i & 1)}, v5"); A("v_lshlrev_b32 v7, 1, v7"); A("v_xor_b32 v7, v7, v6")
                A("v_add_u32 v24, s6, v5"); A("v_lshlrev_b32 v24, 11, v24"); A("v_lshl_add_u32 v24, v7, 4, v24")
                A(f"v_add_u32 {v(V_WD + i)}, {4 * i * 2048 - (i & 3) * 1024}, v24")
            A("v_lshrrev_b32 v7, 2, v6"); A("v_lshl_add_u32 v7, v5, 2, v7")
            A("v_and_b32 v24, 7, v7")
            A("v_lshlrev_b32 v7, 8, v7"); A("v_and_b32 v25, 3, v6"); A("v_lshl_add_u32 v7, v25, 3, v7")
            for cb in range(8):
                A(f"v_xor_b32 v25, {cb}, v24"); A(f"v_lshl_add_u32 {v(V_TR16+cb)}, v25, 5, v7")
            A("v_lshrrev_b32 v7, 1, v5"); A("v_lshlrev_b32 v7, 10, v7"); A("v_and_b32 v24, 1, v5"); A("v_lshl_add_u32 v7, v24, 9, v7")
            A(f"v_lshl_add_u32 {v(V_GA)}, v6, 4, v7")
        else:
            A("v_lshlrev_b32 v7, 2, v5"); A("v_xor_b32 v7, v7, v6")
            A("v_add_u32 v24, s6, v5"); A("v_lshlrev_b32 v24, 11, v24")
            A(f"v_lshl_add_u32 {v(V_WD)}, v7, 4, v24")
            for i in range(1, 8): A(f"v_add_u32 {v(V_WD + i)}, {4 * i * 2048 - (i & 3) * 1024}, {v(V_WD)}")
            A("v_lshrrev_b32 v7, 2, v6")
            A("v_lshrrev_b32 v24, 5, v1"); A("v_lshl_add_u32 v24, v24, 2, v7")
            A("v_lshlrev_b32 v24, 8, v24")
            A("v_and_b32 v25, 1, v5"); A("v_lshl_add_u32 v24, v25, 5, v24")
            A("v_and_b32 v25, 3, v6"); A("v_lshl_add_u32 v24, v25, 3, v24")
            for cb in range(4):
                A(f"v_xor_b32 v25, {cb}, v7"); A(f"v_lshl_add_u32 {v(V_TR+cb)}, v25, 6, v24")
        for x in "ab":
            zero_vgprs(A, range(O[x], O[x] + 16))
            zero_vgprs(A, range(L[x], L[x] + (16 if opt("rs32", 0) else 4)))
        zero_vgprs(A, range(P['b'], P['b'] + 8))
        zero_vgprs(A, range(ACC, ACC + 64))
        if opt("rs32", 0):
            A("v_and_b32 v5, 31, v1"); A("v_cmp_eq_u32 vcc, 0, v5")
        else:
            A("v_and_b32 v5, 15, v1"); A("v_lshrrev_b32 v6, 4, v1"); A("v_and_b32 v6, 1, v6"); A("v_cmp_eq_u32 vcc, v5, v6")
        A("v_mov_b32 v7, 0x3f803f80")
        A("s_nop 0")
        for r in range(4): A(f"v_cndmask_b32 {v(SEL+r)}, 0, v7, vcc")
    if not EARLY: gemm_setup()
    A(f"s_add_u32 s36, {WS}, {FLAGS_OFF + PRIV_LINE * 128}"); A(f"s_addc_u32 s37, {WS1}, 0")
    srd(A, S_O, "s36", "s37", 256 * 128)
    A("s_lshl_b32 s101, s2, 7")
    stamp(A, 'pre_poll')
    A("s_mov_b32 s6, 0x8000")
    A.label(f"L_{name}_pq")
    A(f"buffer_load_dword v4, off, s[{S_O}:{S_O+3}], s101 sc1")
    A("s_waitcnt vmcnt(0)")
    A("v_readfirstlane_b32 s7, v4")
    A("s_sub_u32 s6, s6, 1")
    A("s_cmp_eq_u32 s6, 0")
    A(f"s_cbranch_scc1 L_{name}_pqd")
    A("s_cmp_ge_u32 s7, 24")
    A(f"s_cbranch_scc1 L_{name}_pqd")
    A("s_sleep 1")
    A(f"s_branch L_{name}_pq")
    A.label(f"L_{name}_pqd")
    stamp(A, 'poll_done')
    A(f"s_add_u32 s36, {WS}, {AH_OFF}"); A(f"s_addc_u32 s37, {WS1}, 0")
    srd(A, S_O, "s36", "s37", 64*AH_TB)
    A(f"s_lshl_b32 s6, s{S_TB}, 11")
    for xi, x in enumerate("ab"):
        for j in range(2):
            A(f"buffer_load_dwordx4 {v(Q[x]+4*j,4)}, {v(V_L16)}, s[{S_Q}:{S_Q+3}], s6 offen offset:{xi*2048 + j*1024} sc1")
    A(f"s_mov_b32 s{S_KOFF}, 0")
    A(kload(0, 0, 0)); A(kload(0, 1, 0))
    A(f"s_lshl_b32 s6, s{S_HEAD}, 13")
    A(f"s_lshl_b32 s7, s{S_TB}, 7")
    A("s_add_u32 s7, s7, s6")
    A("v_lshlrev_b32 v3, 2, v1")
    A(f"buffer_load_dword v4, v3, s[{S_N}:{S_N+3}], s7 offen sc1")
    A(f"s_add_u32 s6, s6, {32*8192}")
    for i in range(8):
        A(f"buffer_load_dwordx4 {v(32+4*i,4)}, {v(V_L16)}, s[{S_N}:{S_N+3}], s6 offen offset:{(i&3)*1024} sc1")
        if i == 3: A("s_add_u32 s6, s6, 4096")
    A(f"s_add_u32 s36, {WS}, {FLAGS_OFF + PRIV_LINE * 128}"); A(f"s_addc_u32 s37, {WS1}, 0")
    srd(A, S_N, "s36", "s37", 256 * 128)
    A("s_add_u32 s101, s101, 4")
    for r in range(8):
        A(f"v_accvgpr_write_b32 {a(vreg(7,0)+r)}, 0")
    NPRE0 = opt("kvpre", 4)
    for kk in range(1, NPRE0):
        vv = kk - 1
        A(f"s_mov_b32 s{S_KOFF}, {kk * 2048}")
        A(kload(kk % R, 0, 0)); A(kload(kk % R, 1, 0))
        A(vload(vv % R, 0, 0)); A(vload(vv % R, 1, 0))
    NRING = 4 * (NPRE0 - 1)
    if EARLY:
        A(f"s_cmp_ge_i32 s{S_HSIG}, 0")
        A("s_cbranch_scc1 L_silu2")
        A.label("L_p2b")
        gemm_setup()
    A("v_and_b32 v5, 15, v1"); A("v_lshrrev_b32 v6, 4, v1")
    A("v_lshrrev_b32 v7, 1, v6"); A("v_lshlrev_b32 v7, 10, v7"); A("v_and_b32 v6, 1, v6"); A("v_lshl_add_u32 v7, v6, 9, v7")
    A(f"v_lshl_add_u32 {v(V_HA)}, v5, 4, v7")
    A(f"s_mov_b32 s{S_Q}, s{S_O}"); A(f"s_mov_b32 s{S_Q+1}, s{S_O+1}"); A(f"s_mov_b32 s{S_Q+3}, 0x00020000")
    A(f"s_cmp_lt_i32 s{S_HSIG}, 0")
    A(f"s_cselect_b32 s{S_Q+2}, 0, s{S_O+2}")
    A(f"s_waitcnt vmcnt({NRING})")
    stamp(A, 'norm_ok')
    for i in range(16): A(f"v_max_f32 {v(32+i)}, {v(32+i)}, {v(48+i)}")
    n = 16
    while n > 1:
        n //= 2
        for i in range(n): A(f"v_max_f32 {v(32+i)}, {v(32+i)}, {v(32+i+n)}")
    def wave_max(r, sd):
        for sh in (8, 4, 2, 1):
            A("s_nop 1")
            A(f"v_max_f32_dpp {v(r)}, {v(r)}, {v(r)} row_ror:{sh} row_mask:0xf bank_mask:0xf")
        A("s_nop 1")
        for k, ln in enumerate((0, 16, 32, 48)): A(f"v_readlane_b32 s{36+k}, {v(r)}, {ln}")
        A("s_nop 1")
        A("s_max_u32 s36, s36, s37"); A("s_max_u32 s38, s38, s39"); A(f"s_max_u32 s{sd}, s36, s38")
    wave_max(32, 6); wave_max(4, 7)
    A("v_mov_b32 v5, s6"); A("v_mul_f32 v5, s7, v5")
    A(f"v_mov_b32 v6, {fbits(4000.0)}")
    A("v_cmp_le_f32 vcc, v5, v6")
    A("s_nop 4")
    A(f"s_cbranch_vccz L_{name}_slow")
    def hspin(tag):
        A("s_mov_b32 s7, 0x8000")
        A.label(f"L_{name}_hs{tag}")
        A(f"buffer_load_dword {v(V_H)}, off, s[{S_N}:{S_N+3}], s101 sc1")
        A("s_waitcnt vmcnt(0)")
        A(f"v_readfirstlane_b32 s6, {v(V_H)}")
        A("s_sub_u32 s7, s7, 1"); A("s_cmp_eq_u32 s7, 0"); A(f"s_cbranch_scc1 L_{name}_hsd{tag}")
        A("s_cmp_ge_u32 s6, 64"); A(f"s_cbranch_scc1 L_{name}_hsd{tag}")
        A("s_sleep 4"); A(f"s_branch L_{name}_hs{tag}")
        A.label(f"L_{name}_hsd{tag}")
    def hsignal(back):
        A(f"s_cmp_lt_i32 s{S_HSIG}, 0")
        A(f"s_cbranch_scc1 {back}")
        A(f"s_lshl_b32 s6, s{S_HSIG}, 1")
        A("v_lshrrev_b32 v4, 4, v1"); A("v_and_b32 v4, 1, v4"); A("v_add_u32 v4, s6, v4")
        if opt("gmap", 0):
            A("v_lshrrev_b32 v5, 3, v1"); A("v_and_b32 v5, 1, v5"); A("v_lshlrev_b32 v5, 1, v5")
            A("v_lshrrev_b32 v6, 3, v4"); A("v_or_b32 v5, v5, v6"); A("v_lshlrev_b32 v5, 1, v5")
            A("v_and_b32 v6, 1, v1"); A("v_or_b32 v5, v5, v6")
            A("v_lshrrev_b32 v6, 1, v1"); A("v_and_b32 v6, 3, v6"); A("v_lshlrev_b32 v6, 3, v6")
            A("v_and_b32 v4, 7, v4"); A("v_or_b32 v6, v6, v4")
        else:
            A("v_lshrrev_b32 v5, 3, v1"); A("v_and_b32 v5, 1, v5"); A("v_lshlrev_b32 v5, 2, v5")
            A("v_lshrrev_b32 v6, 2, v4"); A("v_or_b32 v5, v5, v6")
            A("v_lshrrev_b32 v6, 1, v1"); A("v_and_b32 v6, 3, v6"); A("v_lshlrev_b32 v6, 2, v6")
            A("v_and_b32 v4, 3, v4"); A("v_or_b32 v6, v6, v4")
            if ASYM: A("v_and_b32 v4, 1, v1"); A("v_lshl_add_u32 v6, v4, 4, v6")
            else: A("v_and_b32 v4, 1, v1"); A("v_lshl_add_u32 v6, v6, 1, v4")
        A("v_lshl_add_u32 v6, v6, 3, v5"); A("v_lshlrev_b32 v6, 7, v6")
        A("v_mov_b32 v4, 1")
        A("s_mov_b64 s[36:37], exec"); A("s_mov_b32 exec_lo, -1"); A("s_mov_b32 exec_hi, 0")
        A(f"buffer_atomic_add v4, v6, s[{S_N}:{S_N+3}], 0 offen offset:4")
        A("s_mov_b64 exec, s[36:37]")
    def gemm_prologue_groups():
        g = []
        first = [f"s_lshl_b32 s{S_M0}, s{S_WV}, 13", f"s_mov_b32 m0, s{S_M0}", "s_nop 0"]
        def aload(s_):
            for j in range(2):
                grp = [g_aload(s_, j, (s_ % 2) * 2048 + j * 1024)]
                if s_ % 2 == 1 and j == 1: grp.append(f"s_add_u32 s{S_AOFF}, s{S_AOFF}, 4096")
                g.append((grp, ('A', s_, j)))
        for i in range(8): g.append(((first if i == 0 else []) + g_dma(i), ('W', 0, i)))
        for s_ in range(8): aload(s_)
        for st in (1, 2):
            for i in range(8): g.append(((g_next_stage() if i == 0 else []) + g_dma(i), ('W', st, i)))
        for s_ in range(8, XD): aload(s_)
        for i in range(2): g.append(((g_next_stage() if i == 0 else []) + g_dma(i), ('W', 3, i)))
        return g
    GPRO = [t for _, t in gemm_prologue_groups()]
    A(qk('a', 0, 0)); A(qk('a', 0, 1))
    A(f"s_mov_b32 s{S_KOFF}, {8*2048}")
    A(f"s_movk_i32 s{S_IT}, 6")
    A("s_nop 7"); A("s_nop 7")
    stamp(A, 3)
    KB4 = [S_KOFF, 36, 37, 38]
    def kv_bases(): return [f"s_add_u32 s{KB4[i]}, s{S_KOFF}, {i * 4096}" for i in range(1, 4)]
    p0, p1 = opt("kvp0", 9), opt("kvp1", 20)
    def hstore(i):
        q = 2 * i + 1; p, tb = q >> 2, q & 3
        return [f"s_add_u32 s6, s55, {(tb >> 1) * AH_TB + p * 2048 + (tb & 1) * 256}",
                f"buffer_store_dwordx4 {a(128 + 4 * i, 4)}, {v(V_HA)}, s[{S_Q}:{S_Q+3}], s6 offen sc1"]
    HD = opt("hdefer", 0)
    POS = [5, 9, 15, 20]
    NPRE = opt("kvpre", 4)
    def kl(kb, j, slot, so, off): return ([kload(slot, j, off, so)], ('K', kb, j))
    def vl(kb, j, slot, so, off): return ([vload(slot, j, off, so)], ('V', kb, j))
    def sched(kind, u, hf, gp):
        ops = []
        if kind == 'last':
            if u == 0 and hf == 'b':
                free = [5, 15]
                ops += [(9, *vl(63, 0, 7, S_KOFF, 0)), (20, *vl(63, 1, 7, S_KOFF, 0))]
            else: free = list(POS)
            for p_ in free:
                if gp: ops.append((p_, *gp.pop(0)))
            return sorted(ops, key=lambda o: o[0])
        base = 0 if kind == 'first' else None
        if hf == 'a':
            ops += [(9, [kload(u, 0, (u & 1) * 2048, KB4[u >> 1])], ('Kn', u, 0)), (20, [kload(u, 1, (u & 1) * 2048, KB4[u >> 1])], ('Kn', u, 1))]
            if kind == 'mid' and u == 0: ops.append((2, [f"buffer_load_dword {v(V_H)}, off, s[{S_N}:{S_N+3}], s101 sc1"], ('H',)))
        else:
            ops += [(9, [vload((u-1) % R, 0, (u & 1) * 2048, KB4[u >> 1])], ('Vn', u, 0)), (20, [vload((u-1) % R, 1, (u & 1) * 2048, KB4[u >> 1])], ('Vn', u, 1))]
        if kind == 'first':
            k = NPRE + 2 * u + (hf == 'b')
            if k <= 7:
                so = [f"s_mov_b32 s3, {k * 2048}"]
                ops += [(1, so + [kload(k % R, 0, 0, 3)], ('K', k, 0)), (3, [kload(k % R, 1, 0, 3)], ('K', k, 1)),
                        (5, [vload((k-1) % R, 0, 0, 3)], ('V', k - 1, 0)), (7, [vload((k-1) % R, 1, 0, 3)], ('V', k - 1, 1))]
            if HD and u < 7: ops.append((15, hstore(2 * u + (hf == 'b')), ('HS',)))
        return sorted(ops, key=lambda o: o[0])
    def retag(t, kb):
        if t[0] == 'Kn': return ('K', kb + 8, t[2])
        if t[0] == 'Vn': return ('V', kb + 7, t[2])
        return t
    sim = VmSim()
    for k in range(1, NPRE):
        for j in range(2): sim.issue(('K', k, j))
        for j in range(2): sim.issue(('V', k - 1, j))
    kvw = {}
    gp_sim = gemm_prologue_groups()
    for kb in range(64):
        u = kb & 7; kind = 'first' if kb < 8 else 'last' if kb >= 56 else 'mid'
        for o in sched(kind, u, 'a', gp_sim): sim.issue(retag(o[2], kb))
        need = sim.need(lambda t: t == ('V', kb, 1))
        if kb + 1 < 64: need = min(need, sim.need(lambda t: t == ('K', kb + 1, 1)))
        kvw[(kind, u)] = min(kvw.get((kind, u), 63), need)
        for o in sched(kind, u, 'b', gp_sim): sim.issue(retag(o[2], kb))
    assert not gp_sim
    def attn_body(kind):
        last = kind == 'last'
        gp = gemm_prologue_groups() if last else None
        for u in range(R):
            ea = {}
            for (p_, ins, _) in sched(kind, u, 'a', gp): ea.setdefault(p_, []).extend(ins)
            if u == 0 and not last: ea.setdefault(0, []).extend(kv_bases())
            half(A, 'a', [qk('b', u, 0), qk('b', u, 1), pv('b', (u-1) % R, 0), pv('b', (u-1) % R, 1), rs('b', 0), rs('b', 1)], ea)
            A(f"s_waitcnt vmcnt({min(kvw[(kind, u)], 63)})")
            eb = {}
            for (p_, ins, _) in sched(kind, u, 'b', gp): eb.setdefault(p_, []).extend(ins)
            mf = [qk('a', (u+1) % R, 0), qk('a', (u+1) % R, 1), pv('a', u, 0), pv('a', u, 1), rs('a', 0), rs('a', 1)]
            if last and u == R - 1: mf[0] = "s_nop 0"; mf[1] = "s_nop 0"
            half(A, 'b', mf, eb)
        if last: assert not gp
    for _ in range(opt("idle", 0)): A("s_sleep 36")
    attn_body('first')
    stamp(A, 'at_b1')
    A(f"s_add_u32 s{S_KOFF}, s{S_KOFF}, {R*2048}")
    A.raw(".p2align 6")
    A.label(f"L_{name}_loop")
    attn_body('mid')
    A(f"s_add_u32 s{S_KOFF}, s{S_KOFF}, {R*2048}")
    A(f"s_sub_u32 s{S_IT}, s{S_IT}, 1")
    A(f"s_cmp_eq_u32 s{S_IT}, 5")
    A(f"s_cbranch_scc1 L_{name}_hsig")
    A.label(f"L_{name}_hback")
    if PROF["on"] and opt("fine") == 5:
        A(f"s_cmp_eq_u32 s{S_IT}, 5"); A(f"s_cbranch_scc0 L_{name}_ns"); stamp(A, 'at_b2'); A.label(f"L_{name}_ns")
    A(f"s_cmp_lg_u32 s{S_IT}, 0")
    A(f"s_cbranch_scc1 L_{name}_loop")
    A(f"v_readfirstlane_b32 s6, {v(V_H)}")
    A("s_nop 3")
    A("s_cmp_ge_u32 s6, 64")
    A(f"s_cbranch_scc1 L_{name}_hok")
    hspin("f")
    A.label(f"L_{name}_hok")
    attn_body('last')
    stamp(A, 4)
    A("s_nop 1")
    A(pv('b', 7, 0)); A(pv('b', 7, 1)); A(rs('b', 0)); A(rs('b', 1))
    A("s_nop 7"); A("s_nop 7")
    if opt("rs32", 0):
        for x in "ab":
            A(f"v_mov_b32 {v(LS[x])}, {v(L[x])}"); A(f"v_mov_b32 v5, {v(L[x])}"); A("s_nop 1")
            A(f"v_permlane32_swap_b32 {v(LS[x])}, v5")
    else:
        A("v_and_b32 v3, 15, v1"); A("v_lshlrev_b32 v3, 2, v3")
        A("v_lshrrev_b32 v4, 4, v1"); A("v_and_b32 v4, 1, v4"); A("v_cmp_eq_u32 vcc, 1, v4")
        for x in "ab":
            A(f"ds_bpermute_b32 v5, v3, {v(L[x])}"); A(f"ds_bpermute_b32 v6, v3, {v(L[x]+1)}")
            A("s_waitcnt lgkmcnt(0)")
            A(f"v_cndmask_b32 {v(LS[x])}, v5, v6, vcc")
    A(f"s_branch L_{name}_afin")
    A.label(f"L_{name}_hsig")
    hsignal(f"L_{name}_hback")
    A(f"s_branch L_{name}_hback")
    A.label(f"L_{name}_slow")
    if opt("hdefer", 0):
        for i in range(14):
            for z in hstore(i): A(z)
    A("s_waitcnt vmcnt(0)")
    hsignal(f"L_{name}_slow2")
    A.label(f"L_{name}_slow2")
    for x in "ab":
        A(f"v_mov_b32 {v(M[x])}, 0xff800000"); A(f"v_mov_b32 {v(LS[x])}, 0")
    A(f"s_mov_b32 s{S_KOFF}, 0")
    A(f"s_movk_i32 s{S_IT}, 64")
    A.label(f"L_{name}_sloop")
    A(kload(0, 0, 0)); A(kload(0, 1, 0)); A(vload(0, 0, 2048)); A(vload(0, 1, 2048))
    A("s_waitcnt vmcnt(0)")
    for x in "ab":
        A(qk(x, 0, 0)); A(qk(x, 0, 1))
        A("s_nop 7"); A("s_nop 7")
        A(f"v_max3_f32 v3, {v(S[x])}, {v(S[x]+1)}, {v(M[x])}")
        for i in range(2, 16, 2): A(f"v_max3_f32 v3, {v(S[x]+i)}, {v(S[x]+i+1)}, v3")
        A("v_mov_b32 v4, v3"); A("s_nop 1")
        A("v_permlane32_swap_b32 v3, v4"); A("s_nop 1")
        A("v_max_f32 v3, v3, v4")
        A(f"v_sub_f32 v4, {v(M[x])}, v3")
        A("v_exp_f32 v4, v4")
        A(f"v_mov_b32 {v(M[x])}, v3")
        for i in range(16): A(f"v_sub_f32 {v(S[x]+i)}, {v(S[x]+i)}, v3")
        for i in range(16): A(f"v_exp_f32 {v(S[x]+i)}, {v(S[x]+i)}")
        for i in range(16): A(f"v_mul_f32 {v(O[x]+i)}, {v(O[x]+i)}, v4")
        for i in range(8): A(f"v_cvt_pk_bf16_f32 {v(P[x]+i)}, {v(S[x]+2*i)}, {v(S[x]+2*i+1)}")
        A(f"v_mul_f32 {v(LS[x])}, {v(LS[x])}, v4")
        for i in range(16): A(f"v_add_f32 {v(LS[x])}, {v(LS[x])}, {v(S[x]+i)}")
        A(pv(x, 0, 0)); A(pv(x, 0, 1))
        A("s_nop 7"); A("s_nop 7")
    A(f"s_add_u32 s{S_KOFF}, s{S_KOFF}, 2048")
    A(f"s_sub_u32 s{S_IT}, s{S_IT}, 1")
    A(f"s_cmp_lg_u32 s{S_IT}, 0")
    A(f"s_cbranch_scc1 L_{name}_sloop")
    for x in "ab":
        A(f"v_mov_b32 v4, {v(LS[x])}"); A("s_nop 1")
        A(f"v_permlane32_swap_b32 {v(LS[x])}, v4"); A("s_nop 1")
        A(f"v_add_f32 {v(LS[x])}, {v(LS[x])}, v4")
    hspin("s")
    for grp, _ in gemm_prologue_groups():
        for z in grp: A(z)
    A.label(f"L_{name}_afin")
    A(f"s_mul_i32 s6, s{S_TB}, {AH_TB}")
    A(f"s_lshl_b32 s7, s{S_HEAD}, 11"); A("s_add_u32 s6, s6, s7")
    for xi, x in enumerate("ab"):
        A(f"v_rcp_f32 v4, {v(LS[x])}"); A("s_nop 0")
        for i in range(16): A(f"v_mul_f32 {v(O[x]+i)}, {v(O[x]+i)}, v4")
        T = S[x]
        for j in range(2):
            A(f"v_cvt_pk_bf16_f32 {v(T+4*j)}, {v(O[x]+4*j)}, {v(O[x]+4*j+1)}")
            A(f"v_cvt_pk_bf16_f32 {v(T+4*j+1)}, {v(O[x]+4*j+2)}, {v(O[x]+4*j+3)}")
            A(f"v_cvt_pk_bf16_f32 {v(T+4*j+2)}, {v(O[x]+8+4*j)}, {v(O[x]+8+4*j+1)}")
            A(f"v_cvt_pk_bf16_f32 {v(T+4*j+3)}, {v(O[x]+8+4*j+2)}, {v(O[x]+8+4*j+3)}")
            A(f"buffer_store_dwordx4 {v(T+4*j,4)}, {v(V_L16)}, s[{S_O}:{S_O+3}], s6 offen offset:{j*1024} sc1")
        if xi == 0: A(f"s_add_u32 s6, s6, {AH_TB}")
    srd(A, S_V, "s96", "s97", 4*MB)
    srd(A, S_Q, "s98", "s99", 4*MB)
    A("v_lshrrev_b32 v5, 3, v1"); A("v_and_b32 v6, 7, v1")
    A("v_lshlrev_b32 v3, 11, v5"); A("v_lshl_add_u32 v3, v6, 4, v3")
    A(f"s_lshl_b32 s7, s{S_MT}, 7"); A(f"s_lshl_b32 s36, s{S_WV}, 5"); A("s_add_u32 s7, s7, s36")
    A("s_lshl_b32 s7, s7, 11"); A(f"s_lshl_b32 s36, s{S_NT}, 8"); A("s_add_u32 s7, s7, s36")
    A(f"s_lshl_b32 s36, s{S_HALF}, 7"); A("s_add_u32 s95, s7, s36")
    XR = 112
    A("s_mov_b32 s7, s95")
    for i in range(4):
        A(f"buffer_load_dwordx4 {v(XR + 4*i, 4)}, v3, s[{S_V}:{S_V+3}], s7 offen")
        if i < 3: A(f"s_add_u32 s7, s7, {8 * 2048}")
    A("s_waitcnt vmcnt(56)")
    A("s_barrier")
    stamp(A, 'g_start')
    A(f"s_mov_b32 s{S_IT}, s{S_NIT}")
    A(f"s_mov_b32 s{S_FIRST}, 1")
    for r in g_tr(0): A(r)
    def body_ops(it):
        ops = []
        for n in range(NB):
            ph = (n + 1) % 4
            st = (NB // 4) * it + ((n + 1) >> 2) - 1 + PD
            if n == 2: ops.append((n, ('F', it)))
            ops.append((n, ('A', NB * it + n + XD, 0))); ops.append((n, ('W', st, 2 * ph)))
            ops.append((n, ('A', NB * it + n + XD, 1))); ops.append((n, ('W', st, 2 * ph + 1)))
        return ops
    waits = {n: 63 for n in range(NB)}
    sim = VmSim()
    for t in GPRO + [('S', i) for i in range(4)] + [('X', i) for i in range(4)]: sim.issue(t)
    SIGN = 7; sig_wait = None
    NSW, NEND, NWS = (1, 1, 3) if ASYM else (17, 9, 19)
    for it in range(3):
        ops = body_ops(it)
        for n in range(NB):
            g = NB * it + n
            need = sim.need(lambda t: t[0] == 'A' and t[1] == g)
            if n % 4 == 3:
                need = min(need, sim.need(lambda t: t[0] == 'W' and t[1] == (NB // 4) * it + (n >> 2) + 1))
            if n == NSW and (not ASYM or it > 0): need = min(need, sim.need(lambda t: t[0] == 'F' and t[1] == (it - 1 if ASYM else it)))
            if n == SIGN and it == 0: sig_wait = sim.need(lambda t: t[0] == 'S')
            waits[n] = min(waits[n], need)
            for (s_, t) in ops:
                if s_ == n: sim.issue(t)
    assert max(waits.values()) <= 63
    PR = 32
    A.raw(".p2align 6")
    A.label(f"L_{name}_gloop")
    for n in range(NB):
        A.c(f"gemm step {n}")
        A(f"s_waitcnt vmcnt({waits[n]}) lgkmcnt(0)")
        if n % 4 == 3 and not opt("g_nobar"): A("s_barrier")
        NM = 16 if G16() else 8
        q = NM // 8
        fill = [[] for _ in range(NM)]
        reads = []
        trs = [V_TR16 + cb for cb in range(8)] if G16() else [V_TR + cb for cb in range(4)]
        if n % 8 == 7: reads += [f"v_xor_b32 {v(r)}, 0x10000, {v(r)}" for r in trs]
        reads += g_tr(n + 1) if not opt("g_notr") else []
        k = 0; m = 0
        while k < len(reads):
            cnt = (2 if G16() else 3) + (1 if (n % 8 == 7 and m < (8 if G16() else 1)) else 0)
            fill[m] += reads[k:k + cnt]; k += cnt; m += 1
        tgt = n + XD
        pre = []
        if n == NSW:
            pre += [f"s_cmp_eq_u32 s{S_IT}, s{S_AEND}", ("BR", f"s_cbranch_scc1 L_{name}_asw", f"L_{name}_aback")]
        if n == NEND:
            pre += [f"s_cmp_eq_u32 s{S_IT}, 1", f"s_cselect_b32 s{S_GA+2}, 0, s{S_GA+2}"]
        if n == 2: pre += [g_flagload()]
        if n == SIGN:
            pre += [f"s_cmp_eq_u32 s{S_FIRST}, 1", ("BR", f"s_cbranch_scc1 L_{name}_sig", f"L_{name}_sigback")]
        ph = (n + 1) % 4
        ns = g_next_stage(n == NWS) if ph == 0 else []
        imm = (tgt % 2) * 2048
        fill[0] = pre + fill[0]
        fill[1 * q].append(g_aload(tgt % NB, 0, imm))
        fill[2 * q] += ns
        fill[3 * q] += g_dma(2 * ph)
        fill[5 * q].append(g_aload(tgt % NB, 1, imm + 1024))
        if tgt % 2 == 1: fill[5 * q].append(f"s_add_u32 s{S_AOFF}, s{S_AOFF}, 4096")
        fill[7 * q] += g_dma(2 * ph + 1)
        if opt("g_novm"):
            fill = [[z for z in f if isinstance(z, tuple) or not z.startswith("buffer_load")] for f in fill]
        for m in range(NM):
            if G16():
                cb, tb = m // 2, m % 2
                d = v(gacc16(cb, tb), 4)
                A(f"v_mfma_f32_16x16x32_bf16 {d}, {a(wreg16(n & 1, cb), 4)}, {a(areg(n, tb), 4)}, {d}")
            else:
                j, cb = m // 4, m % 4
                d = v(gacc(cb), 16)
                A(f"v_mfma_f32_32x32x16_bf16 {d}, {a(wreg(n & 1, j, cb), 4)}, {a(areg(n, j), 4)}, {d}")
            for z in fill[m]:
                if isinstance(z, tuple):
                    A(z[1]); A.label(z[2])
                else: A(z)
    A(f"s_sub_u32 s{S_IT}, s{S_IT}, 1")
    A(f"s_cmp_lg_u32 s{S_IT}, 0")
    A(f"s_cbranch_scc1 L_{name}_gloop")
    A(f"s_branch L_{name}_gdone")
    A.label(f"L_{name}_asw")
    A(f"v_readlane_b32 s6, {v(V_F)}, 0")
    A("s_nop 3")
    A("s_cmp_ge_u32 s6, 128")
    A(f"s_cbranch_scc1 L_{name}_asw2")
    spin(A, name, "o", 0, 128, 7, 6)
    A.label(f"L_{name}_asw2")
    A(f"s_mov_b32 s{S_AOFF}, s{S_ASW}")
    A(f"s_branch L_{name}_aback")
    A.label(f"L_{name}_sig")
    A(f"s_mov_b32 s{S_FIRST}, 0")
    A(f"s_waitcnt vmcnt({sig_wait})")
    A(f"s_lshl_b32 s6, s{S_QT}, 7")
    A("v_mov_b32 v4, 1")
    A("s_mov_b64 s[36:37], exec"); A("s_mov_b64 exec, 1")
    A(f"buffer_atomic_add v4, off, s[{S_F}:{S_F+3}], s6")
    A("s_mov_b64 exec, s[36:37]")
    A(f"s_branch L_{name}_sigback")
    A.label(f"L_{name}_gdone")
    stamp(A, 'g_end')
    A(f"s_lshl_b32 s6, s{S_MT}, 3"); A(f"s_add_u32 s6, s6, s{S_NT}")
    A(f"s_add_u32 s36, {WS}, {PART_OFF}"); A(f"s_addc_u32 s37, {WS1}, 0")
    A(f"s_mul_i32 s7, s6, {PART_PAIR}"); A(f"s_lshl_b32 s38, s{S_WV}, 13"); A("s_add_u32 s7, s7, s38")
    A("s_add_u32 s36, s36, s7"); A("s_addc_u32 s37, s37, 0")
    srd(A, S_K, "s36", "s37", 65536)
    A(f"s_lshl_b32 s38, s{S_HALF}, 15")
    A("s_xor_b32 s39, s38, 0x8000")
    A("s_add_u32 s6, s6, 8"); A("s_lshl_b32 s6, s6, 7"); A(f"s_lshl_b32 s7, s{S_HALF}, 2"); A("s_add_u32 s6, s6, s7")
    PR = 32
    def finish(h):
        keep = gacc(2 * h); send = gacc(2 * (1 - h))
        for i in range(8):
            if i == 4: A("s_add_u32 s38, s38, 4096")
            A(f"buffer_store_dwordx4 {v(send + 4*i, 4)}, {v(V_L16)}, s[{S_K}:{S_K+3}], s38 offen offset:{(i % 4) * 1024} sc1")
        if G16():
            A("v_and_b32 v5, 15, v1"); A("v_lshrrev_b32 v6, 4, v1")
            A("v_lshlrev_b32 v7, 8, v5"); A(f"s_lshl_b32 s7, s{S_WV}, 13"); A("v_add_u32 v7, s7, v7")
            A("v_and_b32 v5, 7, v5")
            for i in range(8):
                A(f"v_add_u32 {v(64 + i)}, {4 * (i >> 1)}, v6"); A(f"v_xor_b32 {v(64 + i)}, {v(64 + i)}, v5")
                A(f"v_lshl_add_u32 {v(64 + i)}, {v(64 + i)}, 4, v7")
                if i & 1: A(f"v_add_u32 {v(64 + i)}, 4096, {v(64 + i)}")
        else:
            A("v_and_b32 v5, 31, v1"); A("v_lshrrev_b32 v6, 5, v1")
            A("v_lshlrev_b32 v7, 8, v5"); A(f"s_lshl_b32 s7, s{S_WV}, 13"); A("v_add_u32 v7, s7, v7")
            A("v_and_b32 v5, 7, v5")
            for cq in range(8):
                A(f"v_add_u32 {v(64 + cq)}, {2 * cq}, v6"); A(f"v_xor_b32 {v(64 + cq)}, {v(64 + cq)}, v5")
                A(f"v_lshl_add_u32 {v(64 + cq)}, {v(64 + cq)}, 4, v7")
        A("v_lshrrev_b32 v5, 3, v1"); A("v_and_b32 v6, 7, v1"); A("v_lshlrev_b32 v6, 1, v6"); A("v_xor_b32 v6, v6, v5")
        A("v_lshlrev_b32 v7, 8, v5"); A("v_add_u32 v7, s7, v7"); A("v_lshl_add_u32 v72, v6, 4, v7"); A("v_xor_b32 v73, 16, v72")
        A("s_waitcnt vmcnt(0)")
        A("s_barrier")
        A(f"s_cmp_eq_u32 s{S_WV}, 0")
        A(f"s_cbranch_scc0 L_{name}_nf{h}")
        A("v_mov_b32 v4, 1")
        A("s_mov_b64 exec, 1")
        A(f"buffer_store_dword v4, off, s[{S_F}:{S_F+3}], s6 sc1")
        A("s_mov_b64 exec, -1")
        A.label(f"L_{name}_nf{h}")
        spin(A, name, f"p{h}", 1, 1, 7, 36)
        for i in range(8):
            if i == 4: A("s_add_u32 s39, s39, 4096")
            A(f"buffer_load_dwordx4 {v(PR + 4*i, 4)}, {v(V_L16)}, s[{S_K}:{S_K+3}], s39 offen offset:{(i % 4) * 1024} sc1")
        for i in range(8):
            A(f"s_waitcnt vmcnt({7 - i})")
            A(f"v_pk_add_f32 {v(keep + 4*i, 2)}, {v(keep + 4*i, 2)}, {v(PR + 4*i, 2)}")
            A(f"v_pk_add_f32 {v(keep + 4*i + 2, 2)}, {v(keep + 4*i + 2, 2)}, {v(PR + 4*i + 2, 2)}")
            A(f"ds_write_b128 {v(64 + i)}, {v(keep + 4*i, 4)}")
        stamp(A, 'p_ready')
        A("s_waitcnt lgkmcnt(0)")
        for i in range(4):
            A(f"ds_read_b128 {v(PR + 8*i, 4)}, v72 offset:{i * 2048}")
            A(f"ds_read_b128 {v(PR + 8*i + 4, 4)}, v73 offset:{i * 2048}")
        stamp(A, 't_done')
        A("s_mov_b32 s39, 0xffff0000")
        A("s_mov_b32 s7, s95")
        for i in range(4):
            A(f"s_waitcnt lgkmcnt({6 - 2*i})")
            b = PR + 8*i; xr = XR + 4*i
            for r in range(4):
                A(f"v_lshlrev_b32 v24, 16, {v(xr+r)}"); A(f"v_and_b32 v25, s39, {v(xr+r)}")
                A(f"v_pk_add_f32 {v(b+2*r, 2)}, {v(b+2*r, 2)}, v[24:25]")
            for r in range(4): A(f"v_cvt_pk_bf16_f32 {v(xr+r)}, {v(b+2*r)}, {v(b+2*r+1)}")
            A(f"buffer_store_dwordx4 {v(xr, 4)}, v3, s[{S_Q}:{S_Q+3}], s7 offen{' sc1' if opt('out_sc1', 1) else ''}")
            if i < 3: A(f"s_add_u32 s7, s7, {8 * 2048}")
    A(f"s_cmp_eq_u32 s{S_HALF}, 0")
    A(f"s_cbranch_scc0 L_{name}_fin1")
    finish(0)
    A(f"s_branch {fin}")
    A.label(f"L_{name}_fin1")
    finish(1)
    A.label(fin)
```

```python
from asmlib import *
from layout import *
from vmsim import VmSim
import math

NCB = 14
def acc(cb, tb): return 32 + 4 * (cb * 4 + tb)
def xreg(slot, tb): return (slot * 4 + tb) * 4
def wreg(buf, cb): return 64 + (buf * NCB + cb) * 4
NAGPR = 176
SLOT = 32768
PITCH = 448
LN_LDS = 4 * SLOT
LDS_BYTES = 4 * SLOT + 256
V_X = 0; V_DMA = 1; V_TRE = 8; V_TRO = 9
S_W = 8; S_X = 12; S_O = 16; S_N = 20
S_WOFF = 24; S_XO = 25; S_IT = 29; S_WV = 30; S_MT = 31; S_BLK0 = 32; S_TYPE = 33
S_T0, S_T1, S_T2, S_T3 = 34, 35, 36, 37
S_M0CUR = 38; S_TOK = 39; S_WS = 40; S_LDW = 42; S_STG = 43; S_D = 52; S_M0A = 56; S_SLOT = 57; S_NT = 58

def tr_main(n, ncb=NCB):
    par = (n >> 1) & 1; sub = n & 1
    out = []
    for cb in range(ncb):
        for h in range(2):
            off = par * SLOT + sub * 32 * PITCH + h * 4 * PITCH + cb * 32
            ad = V_TRE if cb % 2 == 0 else V_TRO
            out.append(f"ds_read_b64_tr_b16 {a(wreg(n & 1, cb) + 2 * h, 2)}, {v(ad)} offset:{off}")
    return out
def x_load(slot, tb, imm):
    return f"buffer_load_dwordx4 {a(xreg(slot, tb), 4)}, {v(V_X)}, s[{S_X}:{S_X+3}], s{S_XO + tb} offen offset:{imm}{' sc1' if opt('x_sc1', 1) else ''}"
def dma(i):
    return f"buffer_load_dwordx4 {v(V_DMA + i)}, s[{S_W}:{S_W+3}], s{S_WOFF} offen offset:{(i & 3) * 1024} lds"
def w_next_stage():
    return [f"s_add_u32 s{S_WOFF}, s{S_WOFF}, s{S_STG}",
            f"s_add_u32 s{S_M0CUR}, s{S_M0CUR}, {SLOT}",
            f"s_and_b32 s{S_M0CUR}, s{S_M0CUR}, {4 * SLOT - 1}",
            f"s_mov_b32 m0, s{S_M0CUR}"]
def w_hi():
    return [f"s_add_u32 s{S_T0}, s{S_M0CUR}, 4096", f"s_mov_b32 m0, s{S_T0}"]

def body_vm_ops(it, PD, XD):
    ops = []
    for n in range(4):
        tgt = 4 * it + n + XD
        for tb in range(4): ops.append((n, ('X', tgt, tb)))
        if n & 1:
            st = 2 * it + (n >> 1) + PD
            for i in range(4): ops.append((n, ('W', st, i)))
        else:
            st = 2 * it + (n >> 1) - 1 + PD
            for i in range(4, 7): ops.append((n, ('W', st, i)))
    return ops

def gen_mainloop(A, name, ncb, swap, PD, XD, prologue_ops):
    NM = 4 * ncb
    waits = {n: 63 for n in range(4)}
    sim = VmSim()
    for t in prologue_ops: sim.issue(t)
    for it in range(4):
        ops = body_vm_ops(it, PD, XD)
        for n in range(4):
            g = 4 * it + n
            need = sim.need(lambda t: t[0] == 'X' and t[1] == g)
            if n & 1:
                st = 2 * it + (n >> 1) + 1
                nw = sim.need(lambda t: t[0] == 'W' and t[1] == st)
                if nw is not None: need = nw if need is None else min(need, nw)
            if need is not None: waits[n] = min(waits[n], need)
            for (s_, t) in ops:
                if s_ == n: sim.issue(t)
    A.raw(".p2align 6")
    A.label(f"L_{name}_loop")
    for n in range(4):
        A.c(f"---- step {n}")
        A(f"s_waitcnt vmcnt({waits[n]}) lgkmcnt(0)")
        if n & 1: A("s_barrier")
        reads = []
        if n == 3:
            reads += [f"v_xor_b32 {v(r)}, 0x10000, {v(r)}" for r in (V_TRE, V_TRO)]
        reads += tr_main(n + 1, ncb)
        tail = []
        tgt = n + XD
        if tgt == 4:
            tail += [f"s_add_u32 s{S_XO + tb}, s{S_XO + tb}, 2048" for tb in range(4)]
            tail += [f"s_cmp_eq_u32 s{S_IT}, 1", f"s_cselect_b32 s{S_X+2}, 0, s{S_X+2}"]
        xl = [x_load(tgt % 4, tb, (tgt % 4) * 512) for tb in range(4)]
        if n & 1:
            pre = w_next_stage() + ["s_nop 0"]; dm = [dma(i) for i in range(4)]
        else:
            pre = w_hi() + ["s_nop 0"]; dm = [dma(i) for i in range(4, 7)]
        fill = [[] for _ in range(NM)]
        for k, z in enumerate(reads): fill[k].append(z)
        k0 = 2
        for z in tail: fill[k0].append(z); k0 += 1
        vm = [[z] for z in xl]
        vm.append(pre + [dm[0]])
        vm += [[z] for z in dm[1:]]
        sp = opt("l1_vmsp", 5) if ncb == 14 else 4
        pos = max(k0, 10)
        for grp in vm:
            fill[min(pos, NM - 1)] += grp
            pos += sp
        for m in range(NM):
            cb, tb = (m // 4, m % 4) if not opt("l1_tbouter") else (m % ncb, m // ncb)
            if opt("l1_snake") and not opt("l1_tbouter") and (cb & 1): tb = 3 - tb
            d = v(acc(cb, tb), 4); w = a(wreg(n & 1, cb), 4); x = a(xreg(n, tb), 4)
            A(f"v_mfma_f32_16x16x32_bf16 {d}, {x}, {w}, {d}" if swap(cb) else f"v_mfma_f32_16x16x32_bf16 {d}, {w}, {x}, {d}")
            for z in fill[m]: A(z)
    A(f"s_sub_u32 s{S_IT}, s{S_IT}, 1")
    A(f"s_cmp_lg_u32 s{S_IT}, 0")
    A(f"s_cbranch_scc1 L_{name}_loop")

def ln_loads(A):
    A("v_and_b32 v3, 7, v1"); A("v_lshrrev_b32 v4, 3, v1")
    A("v_lshlrev_b32 v5, 11, v3"); A("v_lshl_add_u32 v5, v4, 4, v5")
    A(f"s_lshl_b32 s{S_T0}, s{S_WV}, 9")
    A(f"v_add_u32 v5, s{S_T0}, v5")
    A(f"s_lshl_b32 s{S_T1}, s2, 14")
    A("v_lshlrev_b32 v6, 11, v3")
    A(f"buffer_load_ushort v30, v6, s[{S_N}:{S_N+3}], s{S_T1} offen")
    for i in range(4):
        A(f"buffer_load_dwordx4 {v(32+4*i,4)}, v5, s[{S_N}:{S_N+3}], s{S_T1} offen offset:{i*128}")

def ln_compute(A, nafter, tag, zero_acc=False, pre_signal=None):
    A("v_and_b32 v24, 7, v1"); A("v_lshlrev_b32 v24, 3, v24")
    A(f"v_add_u32 v24, {LN_LDS}, v24")
    A(f"s_lshl_b32 s{S_T0}, s{S_WV}, 6")
    A(f"v_add_u32 v25, s{S_T0}, v24")
    A("s_mov_b32 s44, 0xffff0000")
    A(f"s_waitcnt vmcnt({nafter + 4})")
    A("v_lshlrev_b32 v30, 16, v30"); A("v_sub_f32 v30, 0, v30"); A("v_mov_b32 v31, v30")
    for i in range(4):
        A(f"s_waitcnt vmcnt({nafter + 3 - i})")
        for r in range(4):
            src = 32 + 4 * i + r
            A(f"v_lshlrev_b32 {v(64+2*(4*i+r))}, 16, {v(src)}")
            A(f"v_and_b32 {v(65+2*(4*i+r))}, s44, {v(src)}")
        for r in range(4):
            A(f"v_pk_add_f32 {v(64+2*(4*i+r),2)}, {v(64+2*(4*i+r),2)}, v[30:31]")
    stamp(A, 'ln_loaded')
    A("v_pk_add_f32 v[32:33], v[64:65], v[66:67]"); A("v_pk_mul_f32 v[34:35], v[64:65], v[64:65]")
    A("v_pk_add_f32 v[36:37], v[68:69], v[70:71]"); A("v_pk_mul_f32 v[38:39], v[66:67], v[66:67]")
    for i in range(2, 16):
        A(f"v_pk_fma_f32 {v(34+4*(i%2),2)}, {v(64+2*i,2)}, {v(64+2*i,2)}, {v(34+4*(i%2),2)}")
        if i >= 4: A(f"v_pk_add_f32 {v(32+4*(i%2),2)}, {v(32+4*(i%2),2)}, {v(64+2*i,2)}")
    A("v_pk_add_f32 v[32:33], v[32:33], v[36:37]"); A("v_pk_add_f32 v[34:35], v[34:35], v[38:39]")
    A("v_add_f32 v26, v32, v33"); A("v_add_f32 v27, v34, v35")
    A("s_nop 0")
    for r in (26, 27):
        A(f"v_add_f32_dpp {v(r)}, {v(r)}, {v(r)} row_ror:8 row_mask:0xf bank_mask:0xf")
    A("v_mov_b32 v28, v26"); A("v_mov_b32 v29, v27"); A("s_nop 0")
    A("v_permlane16_swap_b32 v26, v28"); A("v_permlane16_swap_b32 v27, v29"); A("s_nop 0")
    A("v_add_f32 v26, v26, v28"); A("v_add_f32 v27, v27, v29")
    A("v_mov_b32 v28, v26"); A("v_mov_b32 v29, v27"); A("s_nop 0")
    A("v_permlane32_swap_b32 v26, v28"); A("v_permlane32_swap_b32 v27, v29"); A("s_nop 0")
    A("v_add_f32 v26, v26, v28"); A("v_add_f32 v27, v27, v29")
    A("ds_write_b64 v25, v[26:27]")
    A("s_waitcnt lgkmcnt(0)")
    A("s_barrier")
    for w_ in range(4): A(f"ds_read_b64 {v(32+2*w_,2)}, v24 offset:{64*w_}")
    A("s_waitcnt lgkmcnt(0)")
    A("v_pk_add_f32 v[32:33], v[32:33], v[34:35]"); A("v_pk_add_f32 v[36:37], v[36:37], v[38:39]")
    A("v_pk_add_f32 v[32:33], v[32:33], v[36:37]")
    A(f"v_mul_f32 v32, {fbits(1.0/1024)}, v32")
    A(f"v_mov_b32 v30, {fbits(1e-5)}")
    A(f"v_fmac_f32 v30, {fbits(1.0/1024)}, v33")
    A("v_fma_f32 v30, -v32, v32, v30")
    A(f"v_max_f32 v30, {fbits(1e-5)}, v30")
    A("v_rsq_f32 v30, v30"); A("s_nop 0")
    A("v_mul_f32 v32, -v32, v30"); A("v_mov_b32 v31, v30"); A("v_mov_b32 v33, v32")
    for i in range(16): A(f"v_pk_fma_f32 {v(64+2*i,2)}, {v(64+2*i,2)}, v[30:31], v[32:33]")
    for i in range(16): A(f"v_cvt_pk_bf16_f32 {v(40+i)}, {v(64+2*i)}, {v(65+2*i)}")
    A("v_lshlrev_b32 v24, 4, v1")
    A(f"s_lshl_b32 s{S_T0}, s{S_WV}, 12")
    A(f"v_add_u32 v24, s{S_T0}, v24")
    A(f"s_mul_i32 s{S_T1}, s2, {XN_OCT}")
    for i in range(4):
        A(f"buffer_store_dwordx4 {v(40+4*i,4)}, v24, s[{S_X}:{S_X+3}], s{S_T1} offen offset:{i*1024} sc1")
    if zero_acc:
        zero_vgprs(A, list(range(64, 256)) + list(range(32, 40)))
    if pre_signal: pre_signal()
    stamp(A, 'ln_stored')
    A("s_waitcnt vmcnt(0)")
    A("s_barrier")
    stamp(A, 'ln_drained')
    if zero_acc:
        zero_vgprs(A, range(40, 64))
    A(f"s_cmp_eq_u32 s{S_WV}, 0")
    A(f"s_cbranch_scc0 L_l1_nosig{tag}")
    A(f"s_lshr_b32 s{S_T0}, s2, 5"); A(f"s_lshl_b32 s{S_T0}, s{S_T0}, 5")
    A("v_mov_b32 v24, 1")
    A("s_mov_b64 s[44:45], exec"); A("s_mov_b64 exec, 1")
    A(f"buffer_atomic_add v24, off, s[{S_D}:{S_D+3}], s{S_T0}")
    A("s_mov_b64 exec, s[44:45]")
    A.label(f"L_l1_nosig{tag}")

KNAME = "parallel_sum__softmax_full_mha__dense_activation_silu__prompt_kernel"
S_HSIG = 100
def gen_l1(name, A=None, end=None):
    PD = opt("l1_pd", 3); XD = opt("l1_xd", 3)
    fin = f"L_{name}_fin"
    A("s_cmp_ge_u32 s2, 256")
    A(f"s_cbranch_scc1 {end}")
    stamp(A, 0)
    A(f"s_load_dwordx2 s[4:5], s[0:1], {KARG['wqkv']}")
    A(f"s_load_dwordx2 s[6:7], s[0:1], {KARG['w1']}")
    A(f"s_load_dwordx2 s[{S_WS}:{S_WS+1}], s[0:1], {KARG['ws']}")
    A(f"s_load_dwordx2 s[44:45], s[0:1], {KARG['x']}")
    A(f"s_load_dwordx2 s[46:47], s[0:1], {KARG['dbg']}")
    A("v_mov_b32 v2, v0")
    A("v_and_b32 v1, 63, v0")
    A("v_lshrrev_b32 v3, 6, v0")
    A("s_and_b32 s3, s2, 7")
    A(f"v_readfirstlane_b32 s{S_WV}, v3")
    A(f"s_lshr_b32 s{S_SLOT}, s2, 3")
    A("s_and_b32 s48, s3, 1"); A("s_lshl_b32 s48, s48, 2")
    A(f"s_and_b32 s{S_T0}, s{S_SLOT}, 3")
    A(f"s_add_u32 s{S_MT}, s48, s{S_T0}")
    A("s_lshr_b32 s3, s3, 1"); A("s_lshl_b32 s3, s3, 2")
    A(f"s_lshr_b32 s{S_T0}, s{S_SLOT}, 2")
    A(f"s_and_b32 s{S_T1}, s{S_T0}, 3"); A(f"s_add_u32 s3, s3, s{S_T1}")
    A(f"s_lshr_b32 s{S_T0}, s{S_T0}, 2"); A(f"s_lshl_b32 s{S_T0}, s{S_T0}, 4")
    A(f"s_add_u32 s3, s3, s{S_T0}")
    A(f"s_mov_b32 s{S_NT}, s3")
    A(f"s_lshl_b32 s{S_TOK}, s{S_MT}, 8")
    A(f"s_lshl_b32 s{S_T0}, s{S_WV}, 6")
    A(f"s_add_u32 s{S_TOK}, s{S_TOK}, s{S_T0}")
    A("s_waitcnt lgkmcnt(0)")
    srd(A, S_N, "s44", "s45", 4 * MB)
    srd(A, S_D, "s46", "s47", 256)
    ln_loads(A)
    ncode = 0
    if opt("tlbpf", 0):
        offs = []
        def pad_in_page(pg, base, stride, payload, count):
            for b in range(count):
                a0 = base + b * stride + payload
                a0 = (a0 + 127) // 128 * 128
                if pg * 2 * MB <= a0 and a0 + 128 <= (pg + 1) * 2 * MB and a0 + 128 <= base + (b + 1) * stride: return a0
            return None
        for pg in range(2, 27):
            for (base, stride, payload, count) in ((QKV_OFF, QKV_BLK, 131072, 96), (AH_OFF, AH_TB, 144 * 2048, 64), (PART_OFF, PART_PAIR, 65536, 128), (XN_OFF, XN_OCT, 16384, 256)):
                a0 = pad_in_page(pg, base, stride, payload, count)
                if a0 is not None: offs.append(a0); break
        offs.append(NRM_OFF + 600 * 1024)
        A(f"s_add_u32 s48, s{S_WS}, 0"); A(f"s_addc_u32 s49, s{S_WS+1}, 0")
        srd(A, S_O, "s48", "s49", 64 * MB)
        A(f"v_mov_b32 v8, {offs[0]}")
        for i, o in enumerate(offs[1:], 1):
            A(f"s_mov_b32 s48, {o}"); A(f"v_writelane_b32 v8, s48, {i}")
        A(f"buffer_load_dword a201, v8, s[{S_O}:{S_O+3}], 0 offen"); ncode += 1
        A(f"s_load_dwordx2 s[48:49], s[0:1], {KARG['w2']}"); A(f"s_load_dwordx2 s[60:61], s[0:1], {KARG['wo']}"); A(f"s_load_dwordx2 s[62:63], s[0:1], {KARG['out']}")
        A("v_and_b32 v8, 3, v1"); A("v_lshlrev_b32 v8, 21, v8")
        A("s_waitcnt lgkmcnt(0)")
        for (p, size) in ((48, 3584 * 2048), (60, 1024 * 2048), (62, 4 * MB)):
            srd(A, S_O, f"s{p}", f"s{p+1}", size)
            A(f"buffer_load_dword a201, v8, s[{S_O}:{S_O+3}], 0 offen"); ncode += 1
    if opt("codepf", 0):
        A("s_getpc_b64 s[48:49]")
        A.label(f"L_{name}_pc")
        A(f"s_sub_u32 s48, s48, L_{name}_pc-{KNAME}")
        A("s_subb_u32 s49, s49, 0")
        A(f"s_lshl_b32 s{S_T0}, s{S_SLOT}, 2"); A(f"s_add_u32 s{S_T0}, s{S_T0}, s{S_WV}"); A(f"s_lshl_b32 s{S_T0}, s{S_T0}, 9")
        A("v_and_b32 v8, 3, v1"); A("v_lshlrev_b32 v8, 7, v8"); A(f"v_add_u32 v9, s{S_T0}, v8")
        A(f"v_min_u32 v9, L_end-{KNAME}, v9")
        A("v_mov_b32 v21, s49")
        A("v_add_co_u32 v20, vcc, s48, v9"); A("s_nop 1"); A("v_addc_co_u32 v21, vcc, 0, v21, vcc")
        A("s_mov_b64 exec, 15")
        A("global_load_dword a200, v[20:21], off")
        A("s_mov_b64 exec, -1")
        ncode += 1
    A(f"s_add_u32 s44, s{S_WS}, {XN_OFF}"); A(f"s_addc_u32 s45, s{S_WS+1}, 0")
    srd(A, S_X, "s44", "s45", 256 * XN_OCT)
    A("s_cmp_lt_u32 s3, 16")
    A(f"s_cbranch_scc1 L_{name}_qkv")
    A(f"s_mov_b32 s{S_TYPE}, 2")
    A("s_sub_u32 s3, s3, 16")
    A(f"s_mul_i32 s{S_BLK0}, s3, 7")
    A(f"s_mov_b32 s{S_LDW}, 7168")
    A("s_mov_b32 s4, s6"); A("s_mov_b32 s5, s7")
    A(f"s_mov_b32 s{S_T1}, {1024 * 7168}")
    A("s_movk_i32 s59, 28")
    A(f"s_branch L_{name}_common")
    A.label(f"L_{name}_qkv")
    A(f"s_mov_b32 s{S_LDW}, 6144")
    A(f"s_mov_b32 s{S_T1}, {1024 * 6144}")
    A(f"s_mul_i32 s{S_BLK0}, s3, 6")
    A("s_movk_i32 s59, 24")
    A("s_cmp_lt_u32 s3, 10"); A(f"s_cselect_b32 s{S_TYPE}, 0, 1")
    A("s_cmp_eq_u32 s3, 10"); A(f"s_cselect_b32 s{S_TYPE}, 3, s{S_TYPE}")
    A.label(f"L_{name}_common")
    A(f"s_lshl_b32 s{S_T0}, s{S_BLK0}, 6")
    A(f"s_add_u32 s4, s4, s{S_T0}")
    A("s_addc_u32 s5, s5, 0")
    A(f"s_sub_u32 s{S_T1}, s{S_T1}, s{S_T0}")
    srd(A, S_W, "s4", "s5", f"s{S_T1}")
    A(f"s_lshl_b32 s{S_STG}, s{S_LDW}, 6")
    A(f"s_lshl_b32 s{S_T0}, s{S_WV}, 4")
    A(f"s_movk_i32 s{S_T2}, 2341")
    for i in range(7):
        A(f"v_add_u32 v3, {64 * i}, v1")
        A(f"v_mul_u32_u24 v4, s{S_T2}, v3")
        A("v_lshrrev_b32 v4, 16, v4")
        A("v_mul_u32_u24 v6, 28, v4")
        A("v_sub_u32 v6, v3, v6")
        A("v_lshrrev_b32 v7, 3, v4")
        A("v_lshlrev_b32 v7, 1, v7")
        A("v_xor_b32 v6, v6, v7")
        A(f"v_add_u32 v4, s{S_T0}, v4")
        A(f"v_mul_lo_u32 v4, v4, s{S_LDW}")
        A(f"v_lshl_add_u32 v4, v6, 4, v4")
        if i & 3: A(f"v_subrev_u32 v4, {(i & 3) * 1024}, v4")
        A("v_cmp_gt_u32 vcc, s59, v6"); A("v_mov_b32 v7, 0x7ffff000"); A("s_nop 0")
        A(f"v_cndmask_b32 {v(10 + i)}, v7, v4, vcc")
    A(f"s_mul_i32 s{S_M0A}, s{S_WV}, {16 * PITCH}")
    prol = []
    def dma_p(i, base):
        return f"buffer_load_dwordx4 {v(base + i)}, s[{S_W}:{S_W+3}], s{S_WOFF} offen offset:{(i & 3) * 1024} lds"
    def stage_dma(st, lo, hi, base):
        for i in range(lo, hi):
            if i == 0:
                A(f"s_mul_i32 s{S_WOFF}, s{S_STG}, {st}")
                A(f"s_add_u32 s{S_M0CUR}, s{S_M0A}, {(st & 3) * SLOT}")
                A(f"s_mov_b32 m0, s{S_M0CUR}"); A("s_nop 0")
            if i == 4:
                for z in w_hi(): A(z)
                A("s_nop 0")
            A(dma_p(i, base)); prol.append(('W', st, i))
    NPRE = opt("l1_npre", 0)
    for st in range(NPRE):
        stage_dma(st, 0, 7 if st < PD - 1 else 4, 10)
    ntouch = len(prol) - 7 + ncode
    def zero_flags():
        A("s_cmp_lt_u32 s2, 8")
        A(f"s_cbranch_scc0 L_{name}_nz2")
        A(f"s_add_u32 s44, s{S_WS}, {FLAGS_OFF}"); A(f"s_addc_u32 s45, s{S_WS+1}, 0")
        srd(A, S_N, "s44", "s45", NFLAGS * 128)
        A("v_mov_b32 v20, 0"); A("v_mov_b32 v21, 0"); A("v_mov_b32 v22, 0"); A("v_mov_b32 v23, 0")
        A("v_lshlrev_b32 v9, 4, v2")
        A(f"s_mul_i32 s{S_T1}, s2, {49 * 128}")
        A(f"buffer_store_dwordx4 v[20:23], v9, s[{S_N}:{S_N+3}], s{S_T1} offen sc1")
        A(f"s_add_u32 s{S_T1}, s{S_T1}, 4096")
        A("v_cmp_gt_u32 vcc, 136, v2")
        A("s_and_saveexec_b64 s[44:45], vcc")
        A(f"s_cbranch_execz L_{name}_nz")
        A(f"buffer_store_dwordx4 v[20:23], v9, s[{S_N}:{S_N+3}], s{S_T1} offen sc1")
        A.label(f"L_{name}_nz")
        A("s_mov_b64 exec, s[44:45]")
        A.label(f"L_{name}_nz2")
    ln_compute(A, 7 + ntouch, 't', True, zero_flags)
    prol.clear()
    for st in range(NPRE, PD):
        stage_dma(st, 0, 7 if st < PD - 1 else 4, 10)
    T3 = opt("l1_touch3", 0)
    if T3:
        A(f"s_cmp_eq_u32 s{S_WV}, 0"); A(f"s_cbranch_scc1 L_{name}_nt")
        A(f"s_cmp_eq_u32 s{S_TYPE}, 2"); A(f"s_cbranch_scc1 L_{name}_nt")
        A(f"s_load_dwordx2 s[44:45], s[0:1], {KARG['w1']}")
        A("v_lshrrev_b32 v3, 2, v1"); A("v_lshlrev_b32 v3, 3, v3"); A(f"v_add_u32 v3, s{S_MT}, v3")
        A("v_and_b32 v4, 3, v1"); A("v_lshlrev_b32 v4, 7, v4")
        A(f"s_sub_u32 s{S_T0}, s{S_WV}, 1")
        A(f"s_mul_i32 s{S_T1}, s{S_NT}, 448")
        A("s_waitcnt lgkmcnt(0)")
        A(f"s_add_u32 s44, s44, s{S_T1}"); A("s_addc_u32 s45, s45, 0"); A(f"s_sub_u32 s{S_T1}, {1024 * 7168}, s{S_T1}")
        srd(A, S_O, "s44", "s45", f"s{S_T1}")
        A("v_mul_u32_u24 v5, 7168, v3"); A("v_add_u32 v5, v5, v4")
        A(f"s_mul_i32 s{S_T2}, s{S_T0}, {128 * 7168}")
        for k in range(3):
            A(f"buffer_load_dword v21, v5, s[{S_O}:{S_O+3}], s{S_T2} offen")
            if k < 2: A(f"s_add_u32 s{S_T2}, s{S_T2}, {3 * 128 * 7168}")
        if T3 >= 2:
            A("v_mul_u32_u24 v5, 6144, v3"); A("v_add_u32 v5, v5, v4")
            A(f"s_mul_i32 s{S_T2}, s{S_T0}, {128 * 6144}")
            for k in range(3):
                A(f"buffer_load_dword v21, v5, s[{S_W}:{S_W+3}], s{S_T2} offen")
                if k < 2: A(f"s_add_u32 s{S_T2}, s{S_T2}, {3 * 128 * 6144}")
        A.label(f"L_{name}_nt")
    A("v_and_b32 v3, 15, v1"); A("v_lshrrev_b32 v4, 4, v1")
    A("v_lshrrev_b32 v5, 2, v3"); A("v_lshl_add_u32 v5, v4, 3, v5"); A(f"v_mul_u32_u24 v5, {PITCH}, v5")
    A("v_and_b32 v6, 3, v3"); A("v_lshl_add_u32 v5, v6, 3, v5")
    A("v_and_b32 v6, 1, v4"); A("v_lshlrev_b32 v6, 5, v6")
    A(f"v_add_u32 {v(V_TRE)}, v5, v6"); A(f"v_sub_u32 {v(V_TRO)}, v5, v6")
    A(f"v_lshrrev_b32 v5, 3, v3"); A(f"v_mul_u32_u24 v5, {XN_OCT}, v5")
    A("v_lshl_add_u32 v5, v4, 7, v5"); A("v_and_b32 v6, 7, v3")
    A(f"v_lshl_add_u32 {v(V_X)}, v6, 4, v5")
    A("v_mov_b32 v17, v1")
    for i in range(7): A(f"v_mov_b32 {v(V_DMA + i)}, {v(10 + i)}")
    A(f"s_lshr_b32 s{S_XO}, s{S_TOK}, 3"); A(f"s_mul_i32 s{S_XO}, s{S_XO}, {XN_OCT}")
    for tb in range(1, 4): A(f"s_add_u32 s{S_XO + tb}, s{S_XO}, {tb * 2 * XN_OCT}")
    A(f"s_cmp_eq_u32 s{S_WV}, 0")
    A(f"s_cbranch_scc0 L_{name}_got")
    A(f"s_lshl_b32 s{S_T0}, s{S_MT}, 5")
    A(f"v_mov_b32 v19, s{S_T0}"); A("v_mov_b32 v20, 0"); A("v_cmp_eq_u32 vcc, 0, v17"); A("s_nop 1"); A("v_cndmask_b32 v19, v19, v20, vcc")
    A(f"s_mov_b32 s{S_T1}, 0x8000")
    if opt('lnsleep0', 0): A(f"s_sleep {opt('lnsleep0', 0)}")
    A.label(f"L_{name}_poll")
    A(f"buffer_load_dword v18, v19, s[{S_D}:{S_D+3}], 0 offen sc1")
    A("s_waitcnt vmcnt(0)")
    A("v_cmp_le_u32 vcc, 32, v18")
    A(f"s_sub_u32 s{S_T1}, s{S_T1}, 1")
    A(f"s_cmp_eq_u32 s{S_T1}, 0")
    A(f"s_cbranch_scc1 L_{name}_got")
    A("s_nop 1")
    A("s_cmp_eq_u64 vcc, -1")
    A(f"s_cbranch_scc1 L_{name}_got")
    A(f"s_sleep {opt('lnsleep', 3)}")
    A(f"s_branch L_{name}_poll")
    A.label(f"L_{name}_got")
    A("s_waitcnt vmcnt(0)")
    A("s_barrier")
    stamp(A, 'ln_got')
    prol.clear()
    for s_ in range(XD):
        for tb in range(4):
            A(x_load(s_ % 4, tb, (s_ % 4) * 512))
    A(f"s_movk_i32 s{S_IT}, 8")
    sc = " sc1"
    c = (32 ** -0.5) * math.log2(math.e)
    def start_loop(tag, ncb, swap):
        for r in tr_main(0, ncb): A(r)
        A("s_waitcnt vmcnt(0)")
        stamp(A, 1)
        gen_mainloop(A, name + tag, ncb, swap, PD, XD, prol)
        A("s_waitcnt vmcnt(0)")
        A("s_barrier")
        stamp(A, 2)
        A("v_and_b32 v3, 15, v17"); A("v_lshrrev_b32 v4, 4, v17")
        A("v_lshrrev_b32 v7, 1, v4"); A("v_lshlrev_b32 v7, 10, v7")
        A("v_and_b32 v8, 1, v4"); A("v_lshl_add_u32 v7, v8, 9, v7")
    def qkv_srd():
        A(f"s_add_u32 s4, s{S_WS}, {QKV_OFF}"); A(f"s_addc_u32 s5, s{S_WS+1}, 0")
        srd(A, S_O, "s4", "s5", 96 * QKV_BLK)
    def qk_epi(ps):
        A(f"s_add_u32 s4, s{S_WS}, {NRM_OFF}"); A(f"s_addc_u32 s5, s{S_WS+1}, 0")
        srd(A, S_N, "s4", "s5", 512 * 1024)
        A("v_lshl_add_u32 v8, v3, 4, v7")
        A("v_lshrrev_b32 v9, 3, v3"); A("v_lshlrev_b32 v9, 8, v9")
        A("v_and_b32 v10, 7, v3"); A("v_lshl_add_u32 v9, v10, 4, v9")
        A("v_add_u32 v9, v9, v7")
        A("v_lshlrev_b32 v10, 2, v17")
        A("v_and_b32 v11, 1, v4"); A("v_cmp_eq_u32 s[48:49], 1, v11")
        A("v_cmp_le_u32 s[60:61], 2, v4")
        N0 = 24
        for p in ps:
            A(f"s_add_u32 s{S_T0}, s{S_BLK0}, {p}")
            A(f"s_cmp_lt_u32 s{S_T0}, 32")
            A(f"s_cselect_b32 s44, {fbits(c)}, 1.0")
            A(f"s_cselect_b32 s46, 0, 1")
            A("s_mov_b32 s45, s44")
            A(f"s_mul_i32 s{S_T1}, s{S_T0}, {QKV_BLK}")
            A(f"s_lshl_b32 s{S_T2}, s{S_TOK}, 6")
            A(f"s_add_u32 s{S_T1}, s{S_T1}, s{S_T2}")
            A(f"s_lshl_b32 s{S_T2}, s{S_T0}, 13")
            A(f"s_lshl_b32 s{S_T3}, s{S_TOK}, 2")
            A(f"s_add_u32 s{S_T2}, s{S_T2}, s{S_T3}")
            A(f"s_cmp_eq_u32 s46, 1")
            A("s_cselect_b64 vcc, -1, 0")
            A("s_lshr_b32 s47, 256, s46")
            A(f"s_add_u32 s47, s47, s{S_T1}")
            A("v_cndmask_b32 v11, v8, v9, vcc")
            EF = [(acc(2 * p, tb), acc(2 * p + 1, tb)) for tb in range(4)]
            for (E, F) in EF:
                for R in (E, E + 2, F, F + 2): A(f"v_pk_mul_f32 {v(R, 2)}, {v(R, 2)}, s[44:45]")
            for tb, (E, F) in enumerate(EF): A(f"v_pk_mul_f32 {v(N0 + 2 * tb, 2)}, {v(E, 2)}, {v(E, 2)}")
            for k in range(3):
                for tb, (E, F) in enumerate(EF):
                    R = (E + 2, F, F + 2)[k]
                    A(f"v_pk_fma_f32 {v(N0 + 2 * tb, 2)}, {v(R, 2)}, {v(R, 2)}, {v(N0 + 2 * tb, 2)}")
            for tb, (E, F) in enumerate(EF):
                A(f"v_cvt_pk_bf16_f32 {v(E)}, {v(E)}, {v(E + 1)}")
                A(f"v_cvt_pk_bf16_f32 {v(E + 1)}, {v(E + 2)}, {v(E + 3)}")
                A(f"v_cvt_pk_bf16_f32 {v(E + 2)}, {v(F)}, {v(F + 1)}")
                A(f"v_cvt_pk_bf16_f32 {v(E + 3)}, {v(F + 2)}, {v(F + 3)}")
                so = "s47" if tb & 1 else f"s{S_T1}"
                A(f"buffer_store_dwordx4 {v(E, 4)}, v11, s[{S_O}:{S_O+3}], {so} offen offset:{(tb >> 1) * 2048}{sc}")
            for tb in range(4): A(f"v_add_f32 {v(N0 + 2 * tb)}, {v(N0 + 2 * tb)}, {v(N0 + 2 * tb + 1)}")
            for tb in range(4): A(f"v_mov_b32 {v(20 + tb)}, {v(N0 + 2 * tb)}")
            for tb in range(4): A(f"v_permlane32_swap_b32 {v(N0 + 2 * tb)}, {v(20 + tb)}")
            for tb in range(4): A(f"v_add_f32 {v(N0 + 2 * tb)}, {v(N0 + 2 * tb)}, {v(20 + tb)}")
            for tb in range(4): A(f"v_mov_b32 {v(20 + tb)}, {v(N0 + 2 * tb)}")
            for tb in range(4): A(f"v_permlane16_swap_b32 {v(N0 + 2 * tb)}, {v(20 + tb)}")
            for tb in range(4): A(f"v_add_f32 {v(N0 + 2 * tb)}, {v(N0 + 2 * tb)}, {v(20 + tb)}")
            A(f"v_cndmask_b32 {v(N0)}, {v(N0)}, {v(N0 + 2)}, s[48:49]")
            A(f"v_cndmask_b32 {v(N0 + 4)}, {v(N0 + 4)}, {v(N0 + 6)}, s[48:49]")
            A(f"v_cndmask_b32 {v(N0)}, {v(N0)}, {v(N0 + 4)}, s[60:61]")
            A(f"buffer_store_dword {v(N0)}, v10, s[{S_N}:{S_N+3}], s{S_T2} offen sc1")
    def v_epi(cbs):
        A("v_lshl_add_u32 v6, v3, 4, v7")
        A(f"s_mul_i32 s{S_T3}, s{S_BLK0}, {QKV_BLK}")
        A(f"s_lshl_b32 s47, s{S_TOK}, 6")
        A(f"s_add_u32 s{S_T3}, s{S_T3}, s47")
        for kb in range(2):
            for cb in cbs:
                E = acc(cb, 2 * kb); F = acc(cb, 2 * kb + 1)
                A(f"v_cvt_pk_bf16_f32 {v(E)}, {v(E)}, {v(E + 1)}")
                A(f"v_cvt_pk_bf16_f32 {v(E + 1)}, {v(E + 2)}, {v(E + 3)}")
                A(f"v_cvt_pk_bf16_f32 {v(E + 2)}, {v(F)}, {v(F + 1)}")
                A(f"v_cvt_pk_bf16_f32 {v(E + 3)}, {v(F + 2)}, {v(F + 3)}")
                A(f"s_add_u32 s47, s{S_T3}, {(cb >> 1) * QKV_BLK + kb * 2048}")
                A(f"buffer_store_dwordx4 {v(E, 4)}, v6, s[{S_O}:{S_O+3}], s47 offen offset:{(cb & 1) * 256}{sc}")
    A(f"s_cmp_eq_u32 s{S_TYPE}, 2"); A(f"s_cbranch_scc1 L_{name}_hpath")
    A(f"s_cmp_eq_u32 s{S_TYPE}, 1"); A(f"s_cbranch_scc1 L_{name}_vpath")
    A(f"s_cmp_eq_u32 s{S_TYPE}, 3"); A(f"s_cbranch_scc1 L_{name}_mpath")
    start_loop("_n", 12, lambda cb: False)
    qkv_srd(); qk_epi(range(6))
    A(f"s_branch L_{name}_sigqkv")
    A.label(f"L_{name}_mpath")
    start_loop("_m", 12, lambda cb: cb >= 8)
    qkv_srd(); v_epi(range(8, 12)); qk_epi(range(4))
    A(f"s_branch L_{name}_sigqkv")
    A.label(f"L_{name}_vpath")
    start_loop("_v", 12, lambda cb: True)
    qkv_srd(); v_epi(range(12))
    A(f"s_branch L_{name}_sigqkv")
    A.label(f"L_{name}_hpath")
    start_loop("_h", 14, lambda cb: False)
    A(f"s_add_u32 s4, s{S_WS}, {AH_OFF}"); A(f"s_addc_u32 s5, s{S_WS+1}, 0")
    srd(A, S_O, "s4", "s5", 64 * AH_TB)
    A("v_lshl_add_u32 v7, v3, 4, v7")
    A(f"s_lshr_b32 s{S_T1}, s{S_TOK}, 5")
    A(f"s_mul_i32 s{S_T1}, s{S_T1}, {AH_TB}")
    A(f"s_lshl_b32 s{S_T2}, s{S_BLK0}, 11")
    A(f"s_add_u32 s{S_T1}, s{S_T1}, s{S_T2}")
    A(f"s_add_u32 s{S_T1}, s{S_T1}, {32 * 2048}")
    A(f"s_mov_b32 s44, {fbits(-math.log2(math.e))}"); A("s_mov_b32 s45, s44")
    A("s_mov_b32 s46, 1.0"); A("s_mov_b32 s47, 1.0")
    EARLY = opt("earlyp2", 0) and not opt("hdefer", 0)
    def silu_groups(ps, TP, so, sbase, stmp):
        for p in ps:
            for tb in range(4):
                E = acc(2 * p, tb); F = acc(2 * p + 1, tb)
                prs = [E, E + 2, F, F + 2]
                for k, R in enumerate(prs): A(f"v_pk_mul_f32 {v(TP[k], 2)}, {v(R, 2)}, s[44:45]")
                for k in range(4):
                    A(f"v_exp_f32 {v(TP[k])}, {v(TP[k])}"); A(f"v_exp_f32 {v(TP[k] + 1)}, {v(TP[k] + 1)}")
                for k in range(4): A(f"v_pk_add_f32 {v(TP[k], 2)}, {v(TP[k], 2)}, s[46:47]")
                for k in range(4):
                    A(f"v_rcp_f32 {v(TP[k])}, {v(TP[k])}"); A(f"v_rcp_f32 {v(TP[k] + 1)}, {v(TP[k] + 1)}")
                defer = (4 * p + tb) & 1 and opt("hdefer", 0)
                if not defer: A(f"s_add_u32 s{stmp}, s{sbase}, {(tb >> 1) * AH_TB + p * 2048 + (tb & 1) * 256}")
                for k, R in enumerate(prs): A(f"v_pk_mul_f32 {v(R, 2)}, {v(R, 2)}, {v(TP[k], 2)}")
                A(f"v_cvt_pk_bf16_f32 {v(E)}, {v(E)}, {v(E + 1)}")
                A(f"v_cvt_pk_bf16_f32 {v(E + 1)}, {v(E + 2)}, {v(E + 3)}")
                A(f"v_cvt_pk_bf16_f32 {v(E + 2)}, {v(F)}, {v(F + 1)}")
                A(f"v_cvt_pk_bf16_f32 {v(E + 3)}, {v(F + 2)}, {v(F + 3)}")
                q = 4 * p + tb
                if defer:
                    for r in range(4): A(f"v_accvgpr_write_b32 {a(128 + 4 * (q >> 1) + r)}, {v(E + r)}")
                else:
                    A(f"buffer_store_dwordx4 {v(E, 4)}, v7, s[{so}:{so+3}], s{stmp} offen{sc}")
    NP1 = opt("earlynp", 4) if EARLY else 7
    silu_groups(range(NP1), [8, 10, 12, 14], S_O, S_T1, S_T2)
    A(f"s_mov_b32 s55, s{S_T1}")
    A(f"s_mov_b32 s{S_HSIG}, s{S_MT}")
    A(f"s_branch {fin}")
    if EARLY:
        A.label("L_silu2")
        silu_groups(range(NP1, 7), [24, 26, 28, 30], 20, 55, 59)
        A("s_branch L_p2b")
    A.label(f"L_{name}_sigqkv")
    A(f"s_add_u32 s4, s{S_WS}, {FLAGS_OFF + PRIV_LINE * 128}"); A(f"s_addc_u32 s5, s{S_WS+1}, 0")
    srd(A, S_N, "s4", "s5", 256 * 128)
    A(f"s_mul_i32 s{S_T0}, s{S_NT}, 6")
    A("v_lshrrev_b32 v3, 3, v17"); A(f"v_add_u32 v3, s{S_T0}, v3")
    A("v_cmp_gt_u32 vcc, 48, v17"); A("s_nop 3"); A("s_mov_b64 s[44:45], vcc")
    A("v_and_b32 v3, 31, v3")
    A("v_lshrrev_b32 v4, 2, v3")
    A("v_and_b32 v3, 3, v3"); A("v_lshlrev_b32 v3, 3, v3"); A("v_and_b32 v5, 7, v17"); A("v_or_b32 v3, v3, v5")
    A("v_lshl_add_u32 v3, v3, 3, v4"); A("v_lshlrev_b32 v3, 7, v3")
    A("v_mov_b32 v4, 1")
    A("s_waitcnt vmcnt(0)")
    A("s_barrier")
    A(f"s_cmp_eq_u32 s{S_WV}, 0")
    A(f"s_cbranch_scc0 L_{name}_nosq")
    A("s_mov_b64 exec, s[44:45]")
    A(f"s_cbranch_execz L_{name}_nosq2")
    A(f"buffer_atomic_add v4, v3, s[{S_N}:{S_N+3}], 0 offen")
    A.label(f"L_{name}_nosq2")
    A("s_mov_b64 exec, -1")
    A.label(f"L_{name}_nosq")
    A(f"s_mov_b32 s{S_HSIG}, -1")
    A(f"s_load_dwordx2 s[4:5], s[0:1], {KARG['wo']}")
    A(f"s_load_dwordx2 s[6:7], s[0:1], {KARG['w2']}")
    A(f"s_lshl_b32 s{S_T0}, s{S_NT}, 3"); A(f"s_add_u32 s{S_T0}, s{S_T0}, s{S_MT}")
    A(f"s_lshl_b32 s{S_T1}, s{S_WV}, 6"); A(f"v_add_u32 v9, s{S_T1}, v17"); A("v_lshlrev_b32 v9, 7, v9")
    A("s_waitcnt lgkmcnt(0)")
    A(f"s_mul_i32 s{S_T1}, s{S_T0}, 16384"); A(f"s_add_u32 s4, s4, s{S_T1}"); A("s_addc_u32 s5, s5, 0")
    srd(A, S_W, "s4", "s5", 16384)
    A(f"buffer_load_dword v10, v9, s[{S_W}:{S_W+3}], 0 offen")
    A(f"s_mul_i32 s{S_T1}, s{S_T0}, 57344"); A(f"s_add_u32 s6, s6, s{S_T1}"); A("s_addc_u32 s7, s7, 0")
    srd(A, S_W, "s6", "s7", 57344)
    A(f"buffer_load_dword v10, v9, s[{S_W}:{S_W+3}], 0 offen")
    A(f"s_mov_b32 s{S_T1}, 32768")
    A(f"buffer_load_dword v10, v9, s[{S_W}:{S_W+3}], s{S_T1} offen")
    A.label(fin)
    stamp(A, 'epi_end')
```

```python
from asmlib import *
from layout import *
from vmsim import VmSim
import math

NCB = 14
def acc(cb, tb): return 32 + 4 * (cb * 4 + tb)
def xreg(slot, tb): return (slot * 4 + tb) * 4
def wreg(buf, cb): return 64 + (buf * NCB + cb) * 4
NAGPR = 176
SLOT = 32768
PITCH = 448
LN_LDS = 4 * SLOT
LDS_BYTES = 4 * SLOT + 256
V_X = 0; V_DMA = 1; V_TRE = 8; V_TRO = 9
S_W = 8; S_X = 12; S_O = 16; S_N = 20
S_WOFF = 24; S_XO = 25; S_IT = 29; S_WV = 30; S_MT = 31; S_BLK0 = 32; S_TYPE = 33
S_T0, S_T1, S_T2, S_T3 = 34, 35, 36, 37
S_M0CUR = 38; S_TOK = 39; S_WS = 40; S_LDW = 42; S_STG = 43; S_D = 52; S_M0A = 56; S_SLOT = 57; S_NT = 58

def tr_main(n, ncb=NCB):
    par = (n >> 1) & 1; sub = n & 1
    out = []
    for cb in range(ncb):
        for h in range(2):
            off = par * SLOT + sub * 32 * PITCH + h * 4 * PITCH + cb * 32
            ad = V_TRE if cb % 2 == 0 else V_TRO
            out.append(f"ds_read_b64_tr_b16 {a(wreg(n & 1, cb) + 2 * h, 2)}, {v(ad)} offset:{off}")
    return out
def x_load(slot, tb, imm):
    return f"buffer_load_dwordx4 {a(xreg(slot, tb), 4)}, {v(V_X)}, s[{S_X}:{S_X+3}], s{S_XO + tb} offen offset:{imm}{' sc1' if opt('x_sc1', 1) else ''}"
def dma(i):
    return f"buffer_load_dwordx4 {v(V_DMA + i)}, s[{S_W}:{S_W+3}], s{S_WOFF} offen offset:{(i & 3) * 1024} lds"
def w_next_stage():
    return [f"s_add_u32 s{S_WOFF}, s{S_WOFF}, s{S_STG}",
            f"s_add_u32 s{S_M0CUR}, s{S_M0CUR}, {SLOT}",
            f"s_and_b32 s{S_M0CUR}, s{S_M0CUR}, {4 * SLOT - 1}",
            f"s_mov_b32 m0, s{S_M0CUR}"]
def w_hi():
    return [f"s_add_u32 s{S_T0}, s{S_M0CUR}, 4096", f"s_mov_b32 m0, s{S_T0}"]

def body_vm_ops(it, PD, XD):
    ops = []
    for n in range(4):
        tgt = 4 * it + n + XD
        for tb in range(4): ops.append((n, ('X', tgt, tb)))
        if n & 1:
            st = 2 * it + (n >> 1) + PD
            for i in range(4): ops.append((n, ('W', st, i)))
        else:
            st = 2 * it + (n >> 1) - 1 + PD
            for i in range(4, 7): ops.append((n, ('W', st, i)))
    return ops

def gen_mainloop(A, name, ncb, swap, PD, XD, prologue_ops):
    NM = 4 * ncb
    waits = {n: 63 for n in range(4)}
    sim = VmSim()
    for t in prologue_ops: sim.issue(t)
    for it in range(4):
        ops = body_vm_ops(it, PD, XD)
        for n in range(4):
            g = 4 * it + n
            need = sim.need(lambda t: t[0] == 'X' and t[1] == g)
            if n & 1:
                st = 2 * it + (n >> 1) + 1
                nw = sim.need(lambda t: t[0] == 'W' and t[1] == st)
                if nw is not None: need = nw if need is None else min(need, nw)
            if need is not None: waits[n] = min(waits[n], need)
            for (s_, t) in ops:
                if s_ == n: sim.issue(t)
    A.raw(".p2align 6")
    A.label(f"L_{name}_loop")
    for n in range(4):
        A.c(f"---- step {n}")
        A(f"s_waitcnt vmcnt({waits[n]}) lgkmcnt(0)")
        if n & 1: A("s_barrier")
        reads = []
        if n == 3:
            reads += [f"v_xor_b32 {v(r)}, 0x10000, {v(r)}" for r in (V_TRE, V_TRO)]
        reads += tr_main(n + 1, ncb)
        tail = []
        tgt = n + XD
        if tgt == 4:
            tail += [f"s_add_u32 s{S_XO + tb}, s{S_XO + tb}, 2048" for tb in range(4)]
            tail += [f"s_cmp_eq_u32 s{S_IT}, 1", f"s_cselect_b32 s{S_X+2}, 0, s{S_X+2}"]
        xl = [x_load(tgt % 4, tb, (tgt % 4) * 512) for tb in range(4)]
        if n & 1:
            pre = w_next_stage() + ["s_nop 0"]; dm = [dma(i) for i in range(4)]
        else:
            pre = w_hi() + ["s_nop 0"]; dm = [dma(i) for i in range(4, 7)]
        fill = [[] for _ in range(NM)]
        for k, z in enumerate(reads): fill[k].append(z)
        k0 = 2
        for z in tail: fill[k0].append(z); k0 += 1
        vm = [[z] for z in xl]
        vm.append(pre + [dm[0]])
        vm += [[z] for z in dm[1:]]
        sp = opt("l1_vmsp", 5) if ncb == 14 else 4
        pos = max(k0, 10)
        for grp in vm:
            fill[min(pos, NM - 1)] += grp
            pos += sp
        for m in range(NM):
            cb, tb = (m // 4, m % 4) if not opt("l1_tbouter") else (m % ncb, m // ncb)
            if opt("l1_snake") and not opt("l1_tbouter") and (cb & 1): tb = 3 - tb
            d = v(acc(cb, tb), 4); w = a(wreg(n & 1, cb), 4); x = a(xreg(n, tb), 4)
            A(f"v_mfma_f32_16x16x32_bf16 {d}, {x}, {w}, {d}" if swap(cb) else f"v_mfma_f32_16x16x32_bf16 {d}, {w}, {x}, {d}")
            for z in fill[m]: A(z)
    A(f"s_sub_u32 s{S_IT}, s{S_IT}, 1")
    A(f"s_cmp_lg_u32 s{S_IT}, 0")
    A(f"s_cbranch_scc1 L_{name}_loop")

def ln_loads(A):
    A("v_and_b32 v3, 7, v1"); A("v_lshrrev_b32 v4, 3, v1")
    A("v_lshlrev_b32 v5, 11, v3"); A("v_lshl_add_u32 v5, v4, 4, v5")
    A(f"s_lshl_b32 s{S_T0}, s{S_WV}, 9")
    A(f"v_add_u32 v5, s{S_T0}, v5")
    A(f"s_lshl_b32 s{S_T1}, s2, 14")
    A("v_lshlrev_b32 v6, 11, v3")
    A(f"buffer_load_ushort v30, v6, s[{S_N}:{S_N+3}], s{S_T1} offen")
    for i in range(4):
        A(f"buffer_load_dwordx4 {v(32+4*i,4)}, v5, s[{S_N}:{S_N+3}], s{S_T1} offen offset:{i*128}")

def ln_compute(A, nafter, tag, zero_acc=False, pre_signal=None):
    A("v_and_b32 v24, 7, v1"); A("v_lshlrev_b32 v24, 3, v24")
    A(f"v_add_u32 v24, {LN_LDS}, v24")
    A(f"s_lshl_b32 s{S_T0}, s{S_WV}, 6")
    A(f"v_add_u32 v25, s{S_T0}, v24")
    A("s_mov_b32 s44, 0xffff0000")
    A(f"s_waitcnt vmcnt({nafter + 4})")
    A("v_lshlrev_b32 v30, 16, v30"); A("v_sub_f32 v30, 0, v30"); A("v_mov_b32 v31, v30")
    for i in range(4):
        A(f"s_waitcnt vmcnt({nafter + 3 - i})")
        for r in range(4):
            src = 32 + 4 * i + r
            A(f"v_lshlrev_b32 {v(64+2*(4*i+r))}, 16, {v(src)}")
            A(f"v_and_b32 {v(65+2*(4*i+r))}, s44, {v(src)}")
        for r in range(4):
            A(f"v_pk_add_f32 {v(64+2*(4*i+r),2)}, {v(64+2*(4*i+r),2)}, v[30:31]")
    stamp(A, 'ln_loaded')
    A("v_pk_add_f32 v[32:33], v[64:65], v[66:67]"); A("v_pk_mul_f32 v[34:35], v[64:65], v[64:65]")
    A("v_pk_add_f32 v[36:37], v[68:69], v[70:71]"); A("v_pk_mul_f32 v[38:39], v[66:67], v[66:67]")
    for i in range(2, 16):
        A(f"v_pk_fma_f32 {v(34+4*(i%2),2)}, {v(64+2*i,2)}, {v(64+2*i,2)}, {v(34+4*(i%2),2)}")
        if i >= 4: A(f"v_pk_add_f32 {v(32+4*(i%2),2)}, {v(32+4*(i%2),2)}, {v(64+2*i,2)}")
    A("v_pk_add_f32 v[32:33], v[32:33], v[36:37]"); A("v_pk_add_f32 v[34:35], v[34:35], v[38:39]")
    A("v_add_f32 v26, v32, v33"); A("v_add_f32 v27, v34, v35")
    A("s_nop 0")
    for r in (26, 27):
        A(f"v_add_f32_dpp {v(r)}, {v(r)}, {v(r)} row_ror:8 row_mask:0xf bank_mask:0xf")
    A("v_mov_b32 v28, v26"); A("v_mov_b32 v29, v27"); A("s_nop 0")
    A("v_permlane16_swap_b32 v26, v28"); A("v_permlane16_swap_b32 v27, v29"); A("s_nop 0")
    A("v_add_f32 v26, v26, v28"); A("v_add_f32 v27, v27, v29")
    A("v_mov_b32 v28, v26"); A("v_mov_b32 v29, v27"); A("s_nop 0")
    A("v_permlane32_swap_b32 v26, v28"); A("v_permlane32_swap_b32 v27, v29"); A("s_nop 0")
    A("v_add_f32 v26, v26, v28"); A("v_add_f32 v27, v27, v29")
    A("ds_write_b64 v25, v[26:27]")
    A("s_waitcnt lgkmcnt(0)")
    A("s_barrier")
    for w_ in range(4): A(f"ds_read_b64 {v(32+2*w_,2)}, v24 offset:{64*w_}")
    A("s_waitcnt lgkmcnt(0)")
    A("v_pk_add_f32 v[32:33], v[32:33], v[34:35]"); A("v_pk_add_f32 v[36:37], v[36:37], v[38:39]")
    A("v_pk_add_f32 v[32:33], v[32:33], v[36:37]")
    A(f"v_mul_f32 v32, {fbits(1.0/1024)}, v32")
    A(f"v_mov_b32 v30, {fbits(1e-5)}")
    A(f"v_fmac_f32 v30, {fbits(1.0/1024)}, v33")
    A("v_fma_f32 v30, -v32, v32, v30")
    A(f"v_max_f32 v30, {fbits(1e-5)}, v30")
    A("v_rsq_f32 v30, v30"); A("s_nop 0")
    A("v_mul_f32 v32, -v32, v30"); A("v_mov_b32 v31, v30"); A("v_mov_b32 v33, v32")
    for i in range(16): A(f"v_pk_fma_f32 {v(64+2*i,2)}, {v(64+2*i,2)}, v[30:31], v[32:33]")
    for i in range(16): A(f"v_cvt_pk_bf16_f32 {v(40+i)}, {v(64+2*i)}, {v(65+2*i)}")
    A("v_lshlrev_b32 v24, 4, v1")
    A(f"s_lshl_b32 s{S_T0}, s{S_WV}, 12")
    A(f"v_add_u32 v24, s{S_T0}, v24")
    A(f"s_mul_i32 s{S_T1}, s2, {XN_OCT}")
    for i in range(4):
        A(f"buffer_store_dwordx4 {v(40+4*i,4)}, v24, s[{S_X}:{S_X+3}], s{S_T1} offen offset:{i*1024} sc1")
    if zero_acc:
        zero_vgprs(A, list(range(64, 256)) + list(range(32, 40)))
    if pre_signal: pre_signal()
    stamp(A, 'ln_stored')
    A("s_waitcnt vmcnt(0)")
    A("s_barrier")
    stamp(A, 'ln_drained')
    if zero_acc:
        zero_vgprs(A, range(40, 64))
    A(f"s_cmp_eq_u32 s{S_WV}, 0")
    A(f"s_cbranch_scc0 L_l1_nosig{tag}")
    A(f"s_lshr_b32 s{S_T0}, s2, 5"); A(f"s_lshl_b32 s{S_T0}, s{S_T0}, 5")
    A("v_mov_b32 v24, 1")
    A("s_mov_b64 s[44:45], exec"); A("s_mov_b64 exec, 1")
    A(f"buffer_atomic_add v24, off, s[{S_D}:{S_D+3}], s{S_T0}")
    A("s_mov_b64 exec, s[44:45]")
    A.label(f"L_l1_nosig{tag}")

KNAME = "parallel_sum__softmax_full_mha__dense_activation_silu__prompt_kernel"
S_HSIG = 100
def gen_l1(name, A=None, end=None):
    PD = opt("l1_pd", 3); XD = opt("l1_xd", 3)
    fin = f"L_{name}_fin"
    A("s_cmp_ge_u32 s2, 256")
    A(f"s_cbranch_scc1 {end}")
    stamp(A, 0)
    A(f"s_load_dwordx2 s[4:5], s[0:1], {KARG['wqkv']}")
    A(f"s_load_dwordx2 s[6:7], s[0:1], {KARG['w1']}")
    A(f"s_load_dwordx2 s[{S_WS}:{S_WS+1}], s[0:1], {KARG['ws']}")
    A(f"s_load_dwordx2 s[44:45], s[0:1], {KARG['x']}")
    A(f"s_load_dwordx2 s[46:47], s[0:1], {KARG['dbg']}")
    A("v_mov_b32 v2, v0")
    A("v_and_b32 v1, 63, v0")
    A("v_lshrrev_b32 v3, 6, v0")
    A("s_and_b32 s3, s2, 7")
    A(f"v_readfirstlane_b32 s{S_WV}, v3")
    A(f"s_lshr_b32 s{S_SLOT}, s2, 3")
    nc = [0]
    def code_prefetch():
        A("s_getpc_b64 s[48:49]")
        A.label(f"L_{name}_pc")
        A(f"s_sub_u32 s48, s48, L_{name}_pc-{KNAME}")
        A("s_subb_u32 s49, s49, 0")
        A(f"s_lshl_b32 s{S_T0}, s{S_SLOT}, 2"); A(f"s_add_u32 s{S_T0}, s{S_T0}, s{S_WV}"); A(f"s_lshl_b32 s{S_T0}, s{S_T0}, 9")
        A("v_and_b32 v8, 3, v1"); A("v_lshlrev_b32 v8, 7, v8"); A(f"v_add_u32 v9, s{S_T0}, v8")
        A(f"v_min_u32 v9, L_end-{KNAME}, v9")
        A("v_mov_b32 v21, s49")
        A("v_add_co_u32 v20, vcc, s48, v9"); A("s_nop 1"); A("v_addc_co_u32 v21, vcc, 0, v21, vcc")
        A("s_mov_b64 exec, 15")
        A("global_load_dword a200, v[20:21], off")
        A("s_mov_b64 exec, -1")
        nc[0] += 1
    if opt("codepf", 1) == 2:
        A("s_nop 1"); code_prefetch()
    A("s_and_b32 s48, s3, 1"); A("s_lshl_b32 s48, s48, 2")
    A(f"s_and_b32 s{S_T0}, s{S_SLOT}, 3")
    A(f"s_add_u32 s{S_MT}, s48, s{S_T0}")
    A("s_lshr_b32 s3, s3, 1"); A("s_lshl_b32 s3, s3, 2")
    A(f"s_lshr_b32 s{S_T0}, s{S_SLOT}, 2")
    A(f"s_and_b32 s{S_T1}, s{S_T0}, 3"); A(f"s_add_u32 s3, s3, s{S_T1}")
    A(f"s_lshr_b32 s{S_T0}, s{S_T0}, 2"); A(f"s_lshl_b32 s{S_T0}, s{S_T0}, 4")
    A(f"s_add_u32 s3, s3, s{S_T0}")
    A(f"s_mov_b32 s{S_NT}, s3")
    A(f"s_lshl_b32 s{S_TOK}, s{S_MT}, 8")
    A(f"s_lshl_b32 s{S_T0}, s{S_WV}, 6")
    A(f"s_add_u32 s{S_TOK}, s{S_TOK}, s{S_T0}")
    A("s_waitcnt lgkmcnt(0)")
    srd(A, S_N, "s44", "s45", 4 * MB)
    srd(A, S_D, "s46", "s47", 256)
    ln_loads(A)
    ncode = 0
    if opt("tlbpf", 0):
        offs = []
        def pad_in_page(pg, base, stride, payload, count):
            for b in range(count):
                a0 = base + b * stride + payload
                a0 = (a0 + 127) // 128 * 128
                if pg * 2 * MB <= a0 and a0 + 128 <= (pg + 1) * 2 * MB and a0 + 128 <= base + (b + 1) * stride: return a0
            return None
        for pg in range(2, 27):
            for (base, stride, payload, count) in ((QKV_OFF, QKV_BLK, 131072, 96), (AH_OFF, AH_TB, 144 * 2048, 64), (PART_OFF, PART_PAIR, 65536, 128), (XN_OFF, XN_OCT, 16384, 256)):
                a0 = pad_in_page(pg, base, stride, payload, count)
                if a0 is not None: offs.append(a0); break
        offs.append(NRM_OFF + 600 * 1024)
        A(f"s_add_u32 s48, s{S_WS}, 0"); A(f"s_addc_u32 s49, s{S_WS+1}, 0")
        srd(A, S_O, "s48", "s49", 64 * MB)
        A(f"v_mov_b32 v8, {offs[0]}")
        for i, o in enumerate(offs[1:], 1):
            A(f"s_mov_b32 s48, {o}"); A(f"v_writelane_b32 v8, s48, {i}")
        A(f"buffer_load_dword a201, v8, s[{S_O}:{S_O+3}], 0 offen"); ncode += 1
        A(f"s_load_dwordx2 s[48:49], s[0:1], {KARG['w2']}"); A(f"s_load_dwordx2 s[60:61], s[0:1], {KARG['wo']}"); A(f"s_load_dwordx2 s[62:63], s[0:1], {KARG['out']}")
        A("v_and_b32 v8, 3, v1"); A("v_lshlrev_b32 v8, 21, v8")
        A("s_waitcnt lgkmcnt(0)")
        for (p, size) in ((48, 3584 * 2048), (60, 1024 * 2048), (62, 4 * MB)):
            srd(A, S_O, f"s{p}", f"s{p+1}", size)
            A(f"buffer_load_dword a201, v8, s[{S_O}:{S_O+3}], 0 offen"); ncode += 1
    if opt("codepf", 1) == 1: code_prefetch()
    A(f"s_add_u32 s44, s{S_WS}, {XN_OFF}"); A(f"s_addc_u32 s45, s{S_WS+1}, 0")
    srd(A, S_X, "s44", "s45", 256 * XN_OCT)
    A("s_cmp_lt_u32 s3, 16")
    A(f"s_cbranch_scc1 L_{name}_qkv")
    A(f"s_mov_b32 s{S_TYPE}, 2")
    A("s_sub_u32 s3, s3, 16")
    A(f"s_mul_i32 s{S_BLK0}, s3, 7")
    A(f"s_mov_b32 s{S_LDW}, 7168")
    A("s_mov_b32 s4, s6"); A("s_mov_b32 s5, s7")
    A(f"s_mov_b32 s{S_T1}, {1024 * 7168}")
    A("s_movk_i32 s59, 28")
    A(f"s_branch L_{name}_common")
    A.label(f"L_{name}_qkv")
    A(f"s_mov_b32 s{S_LDW}, 6144")
    A(f"s_mov_b32 s{S_T1}, {1024 * 6144}")
    A(f"s_mul_i32 s{S_BLK0}, s3, 6")
    A("s_movk_i32 s59, 24")
    A("s_cmp_lt_u32 s3, 10"); A(f"s_cselect_b32 s{S_TYPE}, 0, 1")
    A("s_cmp_eq_u32 s3, 10"); A(f"s_cselect_b32 s{S_TYPE}, 3, s{S_TYPE}")
    A.label(f"L_{name}_common")
    A(f"s_lshl_b32 s{S_T0}, s{S_BLK0}, 6")
    A(f"s_add_u32 s4, s4, s{S_T0}")
    A("s_addc_u32 s5, s5, 0")
    A(f"s_sub_u32 s{S_T1}, s{S_T1}, s{S_T0}")
    srd(A, S_W, "s4", "s5", f"s{S_T1}")
    A(f"s_lshl_b32 s{S_STG}, s{S_LDW}, 6")
    A(f"s_lshl_b32 s{S_T0}, s{S_WV}, 4")
    A(f"s_movk_i32 s{S_T2}, 2341")
    for i in range(7):
        A(f"v_add_u32 v3, {64 * i}, v1")
        A(f"v_mul_u32_u24 v4, s{S_T2}, v3")
        A("v_lshrrev_b32 v4, 16, v4")
        A("v_mul_u32_u24 v6, 28, v4")
        A("v_sub_u32 v6, v3, v6")
        A("v_lshrrev_b32 v7, 3, v4")
        A("v_lshlrev_b32 v7, 1, v7")
        A("v_xor_b32 v6, v6, v7")
        A(f"v_add_u32 v4, s{S_T0}, v4")
        A(f"v_mul_lo_u32 v4, v4, s{S_LDW}")
        A(f"v_lshl_add_u32 v4, v6, 4, v4")
        if i & 3: A(f"v_subrev_u32 v4, {(i & 3) * 1024}, v4")
        A("v_cmp_gt_u32 vcc, s59, v6"); A("v_mov_b32 v7, 0x7ffff000"); A("s_nop 0")
        A(f"v_cndmask_b32 {v(10 + i)}, v7, v4, vcc")
    A(f"s_mul_i32 s{S_M0A}, s{S_WV}, {16 * PITCH}")
    prol = []
    def dma_p(i, base):
        return f"buffer_load_dwordx4 {v(base + i)}, s[{S_W}:{S_W+3}], s{S_WOFF} offen offset:{(i & 3) * 1024} lds"
    def stage_dma(st, lo, hi, base):
        for i in range(lo, hi):
            if i == 0:
                A(f"s_mul_i32 s{S_WOFF}, s{S_STG}, {st}")
                A(f"s_add_u32 s{S_M0CUR}, s{S_M0A}, {(st & 3) * SLOT}")
                A(f"s_mov_b32 m0, s{S_M0CUR}"); A("s_nop 0")
            if i == 4:
                for z in w_hi(): A(z)
                A("s_nop 0")
            A(dma_p(i, base)); prol.append(('W', st, i))
    NPRE = opt("l1_npre", 0)
    for st in range(NPRE):
        stage_dma(st, 0, 7 if st < PD - 1 else 4, 10)
    ntouch = len(prol) - 7 + ncode + (nc[0] if opt("codepf", 1) == 1 else 0)
    def zero_flags():
        A("s_cmp_lt_u32 s2, 8")
        A(f"s_cbranch_scc0 L_{name}_nz2")
        A(f"s_add_u32 s44, s{S_WS}, {FLAGS_OFF}"); A(f"s_addc_u32 s45, s{S_WS+1}, 0")
        srd(A, S_N, "s44", "s45", NFLAGS * 128)
        A("v_mov_b32 v20, 0"); A("v_mov_b32 v21, 0"); A("v_mov_b32 v22, 0"); A("v_mov_b32 v23, 0")
        A("v_lshlrev_b32 v9, 4, v2")
        A(f"s_mul_i32 s{S_T1}, s2, {49 * 128}")
        A(f"buffer_store_dwordx4 v[20:23], v9, s[{S_N}:{S_N+3}], s{S_T1} offen sc1")
        A(f"s_add_u32 s{S_T1}, s{S_T1}, 4096")
        A("v_cmp_gt_u32 vcc, 136, v2")
        A("s_and_saveexec_b64 s[44:45], vcc")
        A(f"s_cbranch_execz L_{name}_nz")
        A(f"buffer_store_dwordx4 v[20:23], v9, s[{S_N}:{S_N+3}], s{S_T1} offen sc1")
        A.label(f"L_{name}_nz")
        A("s_mov_b64 exec, s[44:45]")
        A.label(f"L_{name}_nz2")
    ln_compute(A, 7 + ntouch, 't', True, zero_flags)
    prol.clear()
    for st in range(NPRE, PD):
        stage_dma(st, 0, 7 if st < PD - 1 else 4, 10)
    T3 = opt("l1_touch3", 0)
    if T3:
        A(f"s_cmp_eq_u32 s{S_WV}, 0"); A(f"s_cbranch_scc1 L_{name}_nt")
        A(f"s_cmp_eq_u32 s{S_TYPE}, 2"); A(f"s_cbranch_scc1 L_{name}_nt")
        A(f"s_load_dwordx2 s[44:45], s[0:1], {KARG['w1']}")
        A("v_lshrrev_b32 v3, 2, v1"); A("v_lshlrev_b32 v3, 3, v3"); A(f"v_add_u32 v3, s{S_MT}, v3")
        A("v_and_b32 v4, 3, v1"); A("v_lshlrev_b32 v4, 7, v4")
        A(f"s_sub_u32 s{S_T0}, s{S_WV}, 1")
        A(f"s_mul_i32 s{S_T1}, s{S_NT}, 448")
        A("s_waitcnt lgkmcnt(0)")
        A(f"s_add_u32 s44, s44, s{S_T1}"); A("s_addc_u32 s45, s45, 0"); A(f"s_sub_u32 s{S_T1}, {1024 * 7168}, s{S_T1}")
        srd(A, S_O, "s44", "s45", f"s{S_T1}")
        A("v_mul_u32_u24 v5, 7168, v3"); A("v_add_u32 v5, v5, v4")
        A(f"s_mul_i32 s{S_T2}, s{S_T0}, {128 * 7168}")
        for k in range(3):
            A(f"buffer_load_dword v21, v5, s[{S_O}:{S_O+3}], s{S_T2} offen")
            if k < 2: A(f"s_add_u32 s{S_T2}, s{S_T2}, {3 * 128 * 7168}")
        if T3 >= 2:
            A("v_mul_u32_u24 v5, 6144, v3"); A("v_add_u32 v5, v5, v4")
            A(f"s_mul_i32 s{S_T2}, s{S_T0}, {128 * 6144}")
            for k in range(3):
                A(f"buffer_load_dword v21, v5, s[{S_W}:{S_W+3}], s{S_T2} offen")
                if k < 2: A(f"s_add_u32 s{S_T2}, s{S_T2}, {3 * 128 * 6144}")
        A.label(f"L_{name}_nt")
    A("v_and_b32 v3, 15, v1"); A("v_lshrrev_b32 v4, 4, v1")
    A("v_lshrrev_b32 v5, 2, v3"); A("v_lshl_add_u32 v5, v4, 3, v5"); A(f"v_mul_u32_u24 v5, {PITCH}, v5")
    A("v_and_b32 v6, 3, v3"); A("v_lshl_add_u32 v5, v6, 3, v5")
    A("v_and_b32 v6, 1, v4"); A("v_lshlrev_b32 v6, 5, v6")
    A(f"v_add_u32 {v(V_TRE)}, v5, v6"); A(f"v_sub_u32 {v(V_TRO)}, v5, v6")
    A(f"v_lshrrev_b32 v5, 3, v3"); A(f"v_mul_u32_u24 v5, {XN_OCT}, v5")
    A("v_lshl_add_u32 v5, v4, 7, v5"); A("v_and_b32 v6, 7, v3")
    A(f"v_lshl_add_u32 {v(V_X)}, v6, 4, v5")
    A("v_mov_b32 v17, v1")
    for i in range(7): A(f"v_mov_b32 {v(V_DMA + i)}, {v(10 + i)}")
    A(f"s_lshr_b32 s{S_XO}, s{S_TOK}, 3"); A(f"s_mul_i32 s{S_XO}, s{S_XO}, {XN_OCT}")
    for tb in range(1, 4): A(f"s_add_u32 s{S_XO + tb}, s{S_XO}, {tb * 2 * XN_OCT}")
    A(f"s_cmp_eq_u32 s{S_WV}, 0")
    A(f"s_cbranch_scc0 L_{name}_got")
    A(f"s_lshl_b32 s{S_T0}, s{S_MT}, 5")
    A(f"v_mov_b32 v19, s{S_T0}"); A("v_mov_b32 v20, 0"); A("v_cmp_eq_u32 vcc, 0, v17"); A("s_nop 1"); A("v_cndmask_b32 v19, v19, v20, vcc")
    A(f"s_mov_b32 s{S_T1}, 0x8000")
    if opt('lnsleep0', 0): A(f"s_sleep {opt('lnsleep0', 0)}")
    A.label(f"L_{name}_poll")
    A(f"buffer_load_dword v18, v19, s[{S_D}:{S_D+3}], 0 offen sc1")
    A("s_waitcnt vmcnt(0)")
    A("v_cmp_le_u32 vcc, 32, v18")
    A(f"s_sub_u32 s{S_T1}, s{S_T1}, 1")
    A(f"s_cmp_eq_u32 s{S_T1}, 0")
    A(f"s_cbranch_scc1 L_{name}_got")
    A("s_nop 1")
    A("s_cmp_eq_u64 vcc, -1")
    A(f"s_cbranch_scc1 L_{name}_got")
    A(f"s_sleep {opt('lnsleep', 3)}")
    A(f"s_branch L_{name}_poll")
    A.label(f"L_{name}_got")
    A("s_waitcnt vmcnt(0)")
    A("s_barrier")
    stamp(A, 'ln_got')
    prol.clear()
    for s_ in range(XD):
        for tb in range(4):
            A(x_load(s_ % 4, tb, (s_ % 4) * 512))
    A(f"s_movk_i32 s{S_IT}, 8")
    sc = " sc1"
    c = (32 ** -0.5) * math.log2(math.e)
    def start_loop(tag, ncb, swap):
        for r in tr_main(0, ncb): A(r)
        A("s_waitcnt vmcnt(0)")
        stamp(A, 1)
        gen_mainloop(A, name + tag, ncb, swap, PD, XD, prol)
        A("s_waitcnt vmcnt(0)")
        A("s_barrier")
        stamp(A, 2)
        A("v_and_b32 v3, 15, v17"); A("v_lshrrev_b32 v4, 4, v17")
        A("v_lshrrev_b32 v7, 1, v4"); A("v_lshlrev_b32 v7, 10, v7")
        A("v_and_b32 v8, 1, v4"); A("v_lshl_add_u32 v7, v8, 9, v7")
    def qkv_srd():
        A(f"s_add_u32 s4, s{S_WS}, {QKV_OFF}"); A(f"s_addc_u32 s5, s{S_WS+1}, 0")
        srd(A, S_O, "s4", "s5", 96 * QKV_BLK)
    def qk_epi(ps):
        A(f"s_add_u32 s4, s{S_WS}, {NRM_OFF}"); A(f"s_addc_u32 s5, s{S_WS+1}, 0")
        srd(A, S_N, "s4", "s5", 512 * 1024)
        A("v_lshl_add_u32 v8, v3, 4, v7")
        A("v_lshrrev_b32 v9, 3, v3"); A("v_lshlrev_b32 v9, 8, v9")
        A("v_and_b32 v10, 7, v3"); A("v_lshl_add_u32 v9, v10, 4, v9")
        A("v_add_u32 v9, v9, v7")
        A("v_lshlrev_b32 v10, 2, v17")
        A("v_and_b32 v11, 1, v4"); A("v_cmp_eq_u32 s[48:49], 1, v11")
        A("v_cmp_le_u32 s[60:61], 2, v4")
        N0 = 24
        for p in ps:
            A(f"s_add_u32 s{S_T0}, s{S_BLK0}, {p}")
            A(f"s_cmp_lt_u32 s{S_T0}, 32")
            A(f"s_cselect_b32 s44, {fbits(c)}, 1.0")
            A(f"s_cselect_b32 s46, 0, 1")
            A("s_mov_b32 s45, s44")
            A(f"s_mul_i32 s{S_T1}, s{S_T0}, {QKV_BLK}")
            A(f"s_lshl_b32 s{S_T2}, s{S_TOK}, 6")
            A(f"s_add_u32 s{S_T1}, s{S_T1}, s{S_T2}")
            A(f"s_lshl_b32 s{S_T2}, s{S_T0}, 13")
            A(f"s_lshl_b32 s{S_T3}, s{S_TOK}, 2")
            A(f"s_add_u32 s{S_T2}, s{S_T2}, s{S_T3}")
            A(f"s_cmp_eq_u32 s46, 1")
            A("s_cselect_b64 vcc, -1, 0")
            A("s_lshr_b32 s47, 256, s46")
            A(f"s_add_u32 s47, s47, s{S_T1}")
            A("v_cndmask_b32 v11, v8, v9, vcc")
            EF = [(acc(2 * p, tb), acc(2 * p + 1, tb)) for tb in range(4)]
            for (E, F) in EF:
                for R in (E, E + 2, F, F + 2): A(f"v_pk_mul_f32 {v(R, 2)}, {v(R, 2)}, s[44:45]")
            for tb, (E, F) in enumerate(EF): A(f"v_pk_mul_f32 {v(N0 + 2 * tb, 2)}, {v(E, 2)}, {v(E, 2)}")
            for k in range(3):
                for tb, (E, F) in enumerate(EF):
                    R = (E + 2, F, F + 2)[k]
                    A(f"v_pk_fma_f32 {v(N0 + 2 * tb, 2)}, {v(R, 2)}, {v(R, 2)}, {v(N0 + 2 * tb, 2)}")
            for tb, (E, F) in enumerate(EF):
                A(f"v_cvt_pk_bf16_f32 {v(E)}, {v(E)}, {v(E + 1)}")
                A(f"v_cvt_pk_bf16_f32 {v(E + 1)}, {v(E + 2)}, {v(E + 3)}")
                A(f"v_cvt_pk_bf16_f32 {v(E + 2)}, {v(F)}, {v(F + 1)}")
                A(f"v_cvt_pk_bf16_f32 {v(E + 3)}, {v(F + 2)}, {v(F + 3)}")
                so = "s47" if tb & 1 else f"s{S_T1}"
                A(f"buffer_store_dwordx4 {v(E, 4)}, v11, s[{S_O}:{S_O+3}], {so} offen offset:{(tb >> 1) * 2048}{sc}")
            for tb in range(4): A(f"v_add_f32 {v(N0 + 2 * tb)}, {v(N0 + 2 * tb)}, {v(N0 + 2 * tb + 1)}")
            for tb in range(4): A(f"v_mov_b32 {v(20 + tb)}, {v(N0 + 2 * tb)}")
            for tb in range(4): A(f"v_permlane32_swap_b32 {v(N0 + 2 * tb)}, {v(20 + tb)}")
            for tb in range(4): A(f"v_add_f32 {v(N0 + 2 * tb)}, {v(N0 + 2 * tb)}, {v(20 + tb)}")
            for tb in range(4): A(f"v_mov_b32 {v(20 + tb)}, {v(N0 + 2 * tb)}")
            for tb in range(4): A(f"v_permlane16_swap_b32 {v(N0 + 2 * tb)}, {v(20 + tb)}")
            for tb in range(4): A(f"v_add_f32 {v(N0 + 2 * tb)}, {v(N0 + 2 * tb)}, {v(20 + tb)}")
            A(f"v_cndmask_b32 {v(N0)}, {v(N0)}, {v(N0 + 2)}, s[48:49]")
            A(f"v_cndmask_b32 {v(N0 + 4)}, {v(N0 + 4)}, {v(N0 + 6)}, s[48:49]")
            A(f"v_cndmask_b32 {v(N0)}, {v(N0)}, {v(N0 + 4)}, s[60:61]")
            A(f"buffer_store_dword {v(N0)}, v10, s[{S_N}:{S_N+3}], s{S_T2} offen sc1")
    def v_epi(cbs):
        A("v_lshl_add_u32 v6, v3, 4, v7")
        A(f"s_mul_i32 s{S_T3}, s{S_BLK0}, {QKV_BLK}")
        A(f"s_lshl_b32 s47, s{S_TOK}, 6")
        A(f"s_add_u32 s{S_T3}, s{S_T3}, s47")
        for kb in range(2):
            for cb in cbs:
                E = acc(cb, 2 * kb); F = acc(cb, 2 * kb + 1)
                A(f"v_cvt_pk_bf16_f32 {v(E)}, {v(E)}, {v(E + 1)}")
                A(f"v_cvt_pk_bf16_f32 {v(E + 1)}, {v(E + 2)}, {v(E + 3)}")
                A(f"v_cvt_pk_bf16_f32 {v(E + 2)}, {v(F)}, {v(F + 1)}")
                A(f"v_cvt_pk_bf16_f32 {v(E + 3)}, {v(F + 2)}, {v(F + 3)}")
                A(f"s_add_u32 s47, s{S_T3}, {(cb >> 1) * QKV_BLK + kb * 2048}")
                A(f"buffer_store_dwordx4 {v(E, 4)}, v6, s[{S_O}:{S_O+3}], s47 offen offset:{(cb & 1) * 256}{sc}")
    A(f"s_cmp_eq_u32 s{S_TYPE}, 2"); A(f"s_cbranch_scc1 L_{name}_hpath")
    A(f"s_cmp_eq_u32 s{S_TYPE}, 1"); A(f"s_cbranch_scc1 L_{name}_vpath")
    A(f"s_cmp_eq_u32 s{S_TYPE}, 3"); A(f"s_cbranch_scc1 L_{name}_mpath")
    start_loop("_n", 12, lambda cb: False)
    qkv_srd(); qk_epi(range(6))
    A(f"s_branch L_{name}_sigqkv")
    A.label(f"L_{name}_mpath")
    start_loop("_m", 12, lambda cb: cb >= 8)
    qkv_srd(); v_epi(range(8, 12)); qk_epi(range(4))
    A(f"s_branch L_{name}_sigqkv")
    A.label(f"L_{name}_vpath")
    start_loop("_v", 12, lambda cb: True)
    qkv_srd(); v_epi(range(12))
    A(f"s_branch L_{name}_sigqkv")
    A.label(f"L_{name}_hpath")
    start_loop("_h", 14, lambda cb: False)
    A(f"s_add_u32 s4, s{S_WS}, {AH_OFF}"); A(f"s_addc_u32 s5, s{S_WS+1}, 0")
    srd(A, S_O, "s4", "s5", 64 * AH_TB)
    A("v_lshl_add_u32 v7, v3, 4, v7")
    A(f"s_lshr_b32 s{S_T1}, s{S_TOK}, 5")
    A(f"s_mul_i32 s{S_T1}, s{S_T1}, {AH_TB}")
    A(f"s_lshl_b32 s{S_T2}, s{S_BLK0}, 11")
    A(f"s_add_u32 s{S_T1}, s{S_T1}, s{S_T2}")
    A(f"s_add_u32 s{S_T1}, s{S_T1}, {32 * 2048}")
    A(f"s_mov_b32 s44, {fbits(-math.log2(math.e))}"); A("s_mov_b32 s45, s44")
    A("s_mov_b32 s46, 1.0"); A("s_mov_b32 s47, 1.0")
    EARLY = opt("earlyp2", 0) and not opt("hdefer", 0)
    def silu_groups(ps, TP, so, sbase, stmp):
        for p in ps:
            for tb in range(4):
                E = acc(2 * p, tb); F = acc(2 * p + 1, tb)
                prs = [E, E + 2, F, F + 2]
                for k, R in enumerate(prs): A(f"v_pk_mul_f32 {v(TP[k], 2)}, {v(R, 2)}, s[44:45]")
                for k in range(4):
                    A(f"v_exp_f32 {v(TP[k])}, {v(TP[k])}"); A(f"v_exp_f32 {v(TP[k] + 1)}, {v(TP[k] + 1)}")
                for k in range(4): A(f"v_pk_add_f32 {v(TP[k], 2)}, {v(TP[k], 2)}, s[46:47]")
                for k in range(4):
                    A(f"v_rcp_f32 {v(TP[k])}, {v(TP[k])}"); A(f"v_rcp_f32 {v(TP[k] + 1)}, {v(TP[k] + 1)}")
                defer = (4 * p + tb) & 1 and opt("hdefer", 0)
                if not defer: A(f"s_add_u32 s{stmp}, s{sbase}, {(tb >> 1) * AH_TB + p * 2048 + (tb & 1) * 256}")
                for k, R in enumerate(prs): A(f"v_pk_mul_f32 {v(R, 2)}, {v(R, 2)}, {v(TP[k], 2)}")
                A(f"v_cvt_pk_bf16_f32 {v(E)}, {v(E)}, {v(E + 1)}")
                A(f"v_cvt_pk_bf16_f32 {v(E + 1)}, {v(E + 2)}, {v(E + 3)}")
                A(f"v_cvt_pk_bf16_f32 {v(E + 2)}, {v(F)}, {v(F + 1)}")
                A(f"v_cvt_pk_bf16_f32 {v(E + 3)}, {v(F + 2)}, {v(F + 3)}")
                q = 4 * p + tb
                if defer:
                    for r in range(4): A(f"v_accvgpr_write_b32 {a(128 + 4 * (q >> 1) + r)}, {v(E + r)}")
                else:
                    A(f"buffer_store_dwordx4 {v(E, 4)}, v7, s[{so}:{so+3}], s{stmp} offen{sc}")
    NP1 = opt("earlynp", 4) if EARLY else 7
    silu_groups(range(NP1), [8, 10, 12, 14], S_O, S_T1, S_T2)
    A(f"s_mov_b32 s55, s{S_T1}")
    A(f"s_mov_b32 s{S_HSIG}, s{S_MT}")
    A(f"s_branch {fin}")
    if EARLY:
        A.label("L_silu2")
        silu_groups(range(NP1, 7), [24, 26, 28, 30], 20, 55, 59)
        A("s_branch L_p2b")
    A.label(f"L_{name}_sigqkv")
    A(f"s_add_u32 s4, s{S_WS}, {FLAGS_OFF + PRIV_LINE * 128}"); A(f"s_addc_u32 s5, s{S_WS+1}, 0")
    srd(A, S_N, "s4", "s5", 256 * 128)
    A(f"s_mul_i32 s{S_T0}, s{S_NT}, 6")
    A("v_lshrrev_b32 v3, 3, v17"); A(f"v_add_u32 v3, s{S_T0}, v3")
    A("v_cmp_gt_u32 vcc, 48, v17"); A("s_nop 3"); A("s_mov_b64 s[44:45], vcc")
    A("v_and_b32 v3, 31, v3")
    A("v_lshrrev_b32 v4, 2, v3")
    A("v_and_b32 v3, 3, v3"); A("v_lshlrev_b32 v3, 3, v3"); A("v_and_b32 v5, 7, v17"); A("v_or_b32 v3, v3, v5")
    A("v_lshl_add_u32 v3, v3, 3, v4"); A("v_lshlrev_b32 v3, 7, v3")
    A("v_mov_b32 v4, 1")
    A("s_waitcnt vmcnt(0)")
    A("s_barrier")
    A(f"s_cmp_eq_u32 s{S_WV}, 0")
    A(f"s_cbranch_scc0 L_{name}_nosq")
    A("s_mov_b64 exec, s[44:45]")
    A(f"s_cbranch_execz L_{name}_nosq2")
    A(f"buffer_atomic_add v4, v3, s[{S_N}:{S_N+3}], 0 offen")
    A.label(f"L_{name}_nosq2")
    A("s_mov_b64 exec, -1")
    A.label(f"L_{name}_nosq")
    A(f"s_mov_b32 s{S_HSIG}, -1")
    A(f"s_load_dwordx2 s[4:5], s[0:1], {KARG['wo']}")
    A(f"s_load_dwordx2 s[6:7], s[0:1], {KARG['w2']}")
    A(f"s_lshl_b32 s{S_T0}, s{S_NT}, 3"); A(f"s_add_u32 s{S_T0}, s{S_T0}, s{S_MT}")
    A(f"s_lshl_b32 s{S_T1}, s{S_WV}, 6"); A(f"v_add_u32 v9, s{S_T1}, v17"); A("v_lshlrev_b32 v9, 7, v9")
    A("s_waitcnt lgkmcnt(0)")
    A(f"s_mul_i32 s{S_T1}, s{S_T0}, 16384"); A(f"s_add_u32 s4, s4, s{S_T1}"); A("s_addc_u32 s5, s5, 0")
    srd(A, S_W, "s4", "s5", 16384)
    A(f"buffer_load_dword v10, v9, s[{S_W}:{S_W+3}], 0 offen")
    A(f"s_mul_i32 s{S_T1}, s{S_T0}, 57344"); A(f"s_add_u32 s6, s6, s{S_T1}"); A("s_addc_u32 s7, s7, 0")
    srd(A, S_W, "s6", "s7", 57344)
    A(f"buffer_load_dword v10, v9, s[{S_W}:{S_W+3}], 0 offen")
    A(f"s_mov_b32 s{S_T1}, 32768")
    A(f"buffer_load_dword v10, v9, s[{S_W}:{S_W+3}], s{S_T1} offen")
    A.label(fin)
    stamp(A, 'epi_end')
```

```python
from asmlib import *
from layout import *
from vmsim import VmSim
import math

NCB = 14
def acc(cb, tb): return 32 + 4 * (cb * 4 + tb)
def RX(): return opt("l1_rx", 4)
def xreg(slot, tb): return (slot * 4 + tb) * 4
def wreg(buf, cb): return 16 * RX() + (buf * NCB + cb) * 4
NAGPR = 240
SLOT = 32768
PITCH = 448
LN_LDS = 4 * SLOT
LDS_BYTES = 4 * SLOT + 256
V_X = 0; V_DMA = 1; V_TRE = 8; V_TRO = 9
S_W = 8; S_X = 12; S_O = 16; S_N = 20
S_WOFF = 24; S_XO = 25; S_IT = 29; S_WV = 30; S_MT = 31; S_BLK0 = 32; S_TYPE = 33
S_T0, S_T1, S_T2, S_T3 = 34, 35, 36, 37
S_M0CUR = 38; S_TOK = 39; S_WS = 40; S_LDW = 42; S_STG = 43; S_D = 52; S_M0A = 56; S_SLOT = 57; S_NT = 58

def tr_main(n, ncb=NCB):
    par = (n >> 1) & 1; sub = n & 1
    out = []
    for cb in range(ncb):
        for h in range(2):
            off = par * SLOT + sub * 32 * PITCH + h * 4 * PITCH + cb * 32
            ad = V_TRE if cb % 2 == 0 else V_TRO
            out.append(f"ds_read_b64_tr_b16 {a(wreg(n & 1, cb) + 2 * h, 2)}, {v(ad)} offset:{off}")
    return out
def x_load(slot, tb, imm):
    return f"buffer_load_dwordx4 {a(xreg(slot, tb), 4)}, {v(V_X)}, s[{S_X}:{S_X+3}], s{S_XO + tb} offen offset:{imm}{' sc1' if opt('x_sc1', 1) else ''}"
def dma(i):
    return f"buffer_load_dwordx4 {v(V_DMA + i)}, s[{S_W}:{S_W+3}], s{S_WOFF} offen offset:{(i & 3) * 1024} lds"
def w_next_stage():
    return [f"s_add_u32 s{S_WOFF}, s{S_WOFF}, s{S_STG}",
            f"s_add_u32 s{S_M0CUR}, s{S_M0CUR}, {SLOT}",
            f"s_and_b32 s{S_M0CUR}, s{S_M0CUR}, {4 * SLOT - 1}",
            f"s_mov_b32 m0, s{S_M0CUR}"]
def w_hi():
    return [f"s_add_u32 s{S_T0}, s{S_M0CUR}, 4096", f"s_mov_b32 m0, s{S_T0}"]

def body_vm_ops(it, PD, XD):
    NB = RX(); ops = []
    for n in range(NB):
        tgt = NB * it + n + XD
        if n == 0 and opt("l1_ltouch", 1) and NB == 8: ops.append((n, ('T', it)))
        for tb in range(4): ops.append((n, ('X', tgt, tb)))
        if n & 1:
            st = (NB // 2) * it + (n >> 1) + PD
            for i in range(4): ops.append((n, ('W', st, i)))
        else:
            st = (NB // 2) * it + (n >> 1) - 1 + PD
            for i in range(4, 7): ops.append((n, ('W', st, i)))
    return ops

def gen_mainloop(A, name, ncb, swap, PD, XD, prologue_ops):
    NM = 4 * ncb; NB = RX()
    waits = {n: 63 for n in range(NB)}
    sim = VmSim()
    for t in prologue_ops: sim.issue(t)
    for it in range(4):
        ops = body_vm_ops(it, PD, XD)
        for n in range(NB):
            g = NB * it + n
            need = sim.need(lambda t: t[0] == 'X' and t[1] == g)
            if n & 1:
                st = (NB // 2) * it + (n >> 1) + 1
                nw = sim.need(lambda t: t[0] == 'W' and t[1] == st)
                if nw is not None: need = nw if need is None else min(need, nw)
            if need is not None: waits[n] = min(waits[n], need)
            for (s_, t) in ops:
                if s_ == n: sim.issue(t)
    assert max(waits.values()) <= 63
    A.raw(".p2align 6")
    A.label(f"L_{name}_loop")
    for n in range(NB):
        A.c(f"---- step {n}")
        A(f"s_waitcnt vmcnt({waits[n]}) lgkmcnt(0)")
        if n & 1: A("s_barrier")
        reads = []
        if n % 4 == 3:
            reads += [f"v_xor_b32 {v(r)}, 0x10000, {v(r)}" for r in (V_TRE, V_TRO)]
        reads += tr_main(n + 1, ncb)
        tail = []
        tgt = n + XD
        if tgt == NB:
            tail += [f"s_add_u32 s{S_XO + tb}, s{S_XO + tb}, {NB * 512}" for tb in range(4)]
            tail += [f"s_cmp_eq_u32 s{S_IT}, 1", f"s_cselect_b32 s{S_X+2}, 0, s{S_X+2}"]
        xl = [x_load(tgt % NB, tb, (tgt % NB) * 512) for tb in range(4)]
        if n & 1:
            pre = w_next_stage() + ["s_nop 0"]; dm = [dma(i) for i in range(4)]
        else:
            pre = w_hi() + ["s_nop 0"]; dm = [dma(i) for i in range(4, 7)]
        fill = [[] for _ in range(NM)]
        for k, z in enumerate(reads): fill[k].append(z)
        k0 = 2
        for z in tail: fill[k0].append(z); k0 += 1
        vm = [[z] for z in xl]
        if n == 0 and opt("l1_ltouch", 1) and NB == 8:
            vm = [[f"buffer_load_dword a251, v19, s[{S_W}:{S_W+3}], s60 offen", f"s_add_u32 s60, s60, s62"]] + vm
        vm.append(pre + [dm[0]])
        vm += [[z] for z in dm[1:]]
        sp = opt("l1_vmsp", 5) if ncb == 14 else 4
        pos = max(k0, 10)
        for grp in vm:
            fill[min(pos, NM - 1)] += grp
            pos += sp
        for m in range(NM):
            cb, tb = (m // 4, m % 4) if not opt("l1_tbouter") else (m % ncb, m // ncb)
            if opt("l1_snake") and not opt("l1_tbouter") and (cb & 1): tb = 3 - tb
            d = v(acc(cb, tb), 4); w = a(wreg(n & 1, cb), 4); x = a(xreg(n, tb), 4)
            A(f"v_mfma_f32_16x16x32_bf16 {d}, {x}, {w}, {d}" if swap(cb) else f"v_mfma_f32_16x16x32_bf16 {d}, {w}, {x}, {d}")
            for z in fill[m]: A(z)
    A(f"s_sub_u32 s{S_IT}, s{S_IT}, 1")
    if PROF["on"] and opt("fine") == 4:
        A(f"s_cmp_eq_u32 s{S_IT}, 7"); A(f"s_cbranch_scc0 L_{name}_ns"); stamp(A, 'g1_it1'); A.label(f"L_{name}_ns")
    A(f"s_cmp_lg_u32 s{S_IT}, 0")
    A(f"s_cbranch_scc1 L_{name}_loop")

def ln_loads(A):
    A("v_and_b32 v3, 7, v1"); A("v_lshrrev_b32 v4, 3, v1")
    A("v_lshlrev_b32 v5, 11, v3"); A("v_lshl_add_u32 v5, v4, 4, v5")
    A(f"s_lshl_b32 s{S_T0}, s{S_WV}, 9")
    A(f"v_add_u32 v5, s{S_T0}, v5")
    A(f"s_lshl_b32 s{S_T1}, s2, 14")
    A("v_lshlrev_b32 v6, 11, v3")
    A(f"buffer_load_ushort v30, v6, s[{S_N}:{S_N+3}], s{S_T1} offen")
    for i in range(4):
        A(f"buffer_load_dwordx4 {v(32+4*i,4)}, v5, s[{S_N}:{S_N+3}], s{S_T1} offen offset:{i*128}")

def ln_compute(A, nafter, tag, zero_acc=False, pre_signal=None):
    A("v_and_b32 v24, 7, v1"); A("v_lshlrev_b32 v24, 3, v24")
    A(f"v_add_u32 v24, {LN_LDS}, v24")
    A(f"s_lshl_b32 s{S_T0}, s{S_WV}, 6")
    A(f"v_add_u32 v25, s{S_T0}, v24")
    A("s_mov_b32 s44, 0xffff0000")
    A(f"s_waitcnt vmcnt({nafter + 4})")
    A("v_lshlrev_b32 v30, 16, v30"); A("v_sub_f32 v30, 0, v30"); A("v_mov_b32 v31, v30")
    for i in range(4):
        A(f"s_waitcnt vmcnt({nafter + 3 - i})")
        for r in range(4):
            src = 32 + 4 * i + r
            A(f"v_lshlrev_b32 {v(64+2*(4*i+r))}, 16, {v(src)}")
            A(f"v_and_b32 {v(65+2*(4*i+r))}, s44, {v(src)}")
        for r in range(4):
            A(f"v_pk_add_f32 {v(64+2*(4*i+r),2)}, {v(64+2*(4*i+r),2)}, v[30:31]")
    stamp(A, 'ln_loaded')
    A("v_pk_add_f32 v[32:33], v[64:65], v[66:67]"); A("v_pk_mul_f32 v[34:35], v[64:65], v[64:65]")
    A("v_pk_add_f32 v[36:37], v[68:69], v[70:71]"); A("v_pk_mul_f32 v[38:39], v[66:67], v[66:67]")
    for i in range(2, 16):
        A(f"v_pk_fma_f32 {v(34+4*(i%2),2)}, {v(64+2*i,2)}, {v(64+2*i,2)}, {v(34+4*(i%2),2)}")
        if i >= 4: A(f"v_pk_add_f32 {v(32+4*(i%2),2)}, {v(32+4*(i%2),2)}, {v(64+2*i,2)}")
    A("v_pk_add_f32 v[32:33], v[32:33], v[36:37]"); A("v_pk_add_f32 v[34:35], v[34:35], v[38:39]")
    A("v_add_f32 v26, v32, v33"); A("v_add_f32 v27, v34, v35")
    A("s_nop 0")
    for r in (26, 27):
        A(f"v_add_f32_dpp {v(r)}, {v(r)}, {v(r)} row_ror:8 row_mask:0xf bank_mask:0xf")
    A("v_mov_b32 v28, v26"); A("v_mov_b32 v29, v27"); A("s_nop 0")
    A("v_permlane16_swap_b32 v26, v28"); A("v_permlane16_swap_b32 v27, v29"); A("s_nop 0")
    A("v_add_f32 v26, v26, v28"); A("v_add_f32 v27, v27, v29")
    A("v_mov_b32 v28, v26"); A("v_mov_b32 v29, v27"); A("s_nop 0")
    A("v_permlane32_swap_b32 v26, v28"); A("v_permlane32_swap_b32 v27, v29"); A("s_nop 0")
    A("v_add_f32 v26, v26, v28"); A("v_add_f32 v27, v27, v29")
    A("ds_write_b64 v25, v[26:27]")
    A("s_waitcnt lgkmcnt(0)")
    A("s_barrier")
    for w_ in range(4): A(f"ds_read_b64 {v(32+2*w_,2)}, v24 offset:{64*w_}")
    A("s_waitcnt lgkmcnt(0)")
    A("v_pk_add_f32 v[32:33], v[32:33], v[34:35]"); A("v_pk_add_f32 v[36:37], v[36:37], v[38:39]")
    A("v_pk_add_f32 v[32:33], v[32:33], v[36:37]")
    A(f"v_mul_f32 v32, {fbits(1.0/1024)}, v32")
    A(f"v_mov_b32 v30, {fbits(1e-5)}")
    A(f"v_fmac_f32 v30, {fbits(1.0/1024)}, v33")
    A("v_fma_f32 v30, -v32, v32, v30")
    A(f"v_max_f32 v30, {fbits(1e-5)}, v30")
    A("v_rsq_f32 v30, v30"); A("s_nop 0")
    A("v_mul_f32 v32, -v32, v30"); A("v_mov_b32 v31, v30"); A("v_mov_b32 v33, v32")
    for i in range(16): A(f"v_pk_fma_f32 {v(64+2*i,2)}, {v(64+2*i,2)}, v[30:31], v[32:33]")
    for i in range(16): A(f"v_cvt_pk_bf16_f32 {v(40+i)}, {v(64+2*i)}, {v(65+2*i)}")
    A("v_lshlrev_b32 v24, 4, v1")
    A(f"s_lshl_b32 s{S_T0}, s{S_WV}, 12")
    A(f"v_add_u32 v24, s{S_T0}, v24")
    A(f"s_mul_i32 s{S_T1}, s2, {XN_OCT}")
    for i in range(4):
        A(f"buffer_store_dwordx4 {v(40+4*i,4)}, v24, s[{S_X}:{S_X+3}], s{S_T1} offen offset:{i*1024} sc1")
    if zero_acc:
        zero_vgprs(A, list(range(64, 256)) + list(range(32, 40)))
    if pre_signal: pre_signal()
    stamp(A, 'ln_stored')
    A("s_waitcnt vmcnt(0)")
    A("s_barrier")
    stamp(A, 'ln_drained')
    if zero_acc:
        zero_vgprs(A, range(40, 64))
    A(f"s_cmp_eq_u32 s{S_WV}, 0")
    A(f"s_cbranch_scc0 L_l1_nosig{tag}")
    A(f"s_lshr_b32 s{S_T0}, s2, 5"); A(f"s_lshl_b32 s{S_T0}, s{S_T0}, 5")
    A("v_mov_b32 v24, 1")
    A("s_mov_b64 s[44:45], exec"); A("s_mov_b64 exec, 1")
    A(f"buffer_atomic_add v24, off, s[{S_D}:{S_D+3}], s{S_T0}")
    A("s_mov_b64 exec, s[44:45]")
    A.label(f"L_l1_nosig{tag}")

KNAME = "parallel_sum__softmax_full_mha__dense_activation_silu__prompt_kernel"
S_HSIG = 100
def gen_l1(name, A=None, end=None):
    PD = opt("l1_pd", 4 if RX() == 8 else 3); XD = opt("l1_xd", RX() - 1)
    fin = f"L_{name}_fin"
    A("s_cmp_ge_u32 s2, 256")
    A(f"s_cbranch_scc1 {end}")
    stamp(A, 0)
    A(f"s_load_dwordx2 s[4:5], s[0:1], {KARG['wqkv']}")
    A(f"s_load_dwordx2 s[6:7], s[0:1], {KARG['w1']}")
    A(f"s_load_dwordx2 s[{S_WS}:{S_WS+1}], s[0:1], {KARG['ws']}")
    A(f"s_load_dwordx2 s[44:45], s[0:1], {KARG['x']}")
    A(f"s_load_dwordx2 s[46:47], s[0:1], {KARG['dbg']}")
    A("v_mov_b32 v2, v0")
    A("v_and_b32 v1, 63, v0")
    A("v_lshrrev_b32 v3, 6, v0")
    A("s_and_b32 s3, s2, 7")
    A(f"v_readfirstlane_b32 s{S_WV}, v3")
    A(f"s_lshr_b32 s{S_SLOT}, s2, 3")
    nc = [0]
    def code_prefetch():
        A("s_getpc_b64 s[48:49]")
        A.label(f"L_{name}_pc")
        A(f"s_sub_u32 s48, s48, L_{name}_pc-{KNAME}")
        A("s_subb_u32 s49, s49, 0")
        A(f"s_lshl_b32 s{S_T0}, s{S_SLOT}, 2"); A(f"s_add_u32 s{S_T0}, s{S_T0}, s{S_WV}"); A(f"s_lshl_b32 s{S_T0}, s{S_T0}, 9")
        A("v_and_b32 v8, 3, v1"); A("v_lshlrev_b32 v8, 7, v8"); A(f"v_add_u32 v9, s{S_T0}, v8")
        A(f"v_min_u32 v9, L_end-{KNAME}, v9")
        A("v_mov_b32 v21, s49")
        A("v_add_co_u32 v20, vcc, s48, v9"); A("s_nop 1"); A("v_addc_co_u32 v21, vcc, 0, v21, vcc")
        A("s_mov_b64 exec, 15")
        A("global_load_dword a250, v[20:21], off")
        A("s_mov_b64 exec, -1")
        nc[0] += 1
        if RX() == 8:
            A(f"v_add_u32 v9, 0x10000, v9"); A(f"v_min_u32 v9, L_end-{KNAME}, v9")
            A("v_mov_b32 v21, s49")
            A("v_add_co_u32 v20, vcc, s48, v9"); A("s_nop 1"); A("v_addc_co_u32 v21, vcc, 0, v21, vcc")
            A("s_mov_b64 exec, 15")
            A("global_load_dword a250, v[20:21], off")
            A("s_mov_b64 exec, -1")
            nc[0] += 1
    if opt("codepf", 1) == 2:
        A("s_nop 1"); code_prefetch()
    A("s_and_b32 s48, s3, 1"); A("s_lshl_b32 s48, s48, 2")
    A(f"s_and_b32 s{S_T0}, s{S_SLOT}, 3")
    A(f"s_add_u32 s{S_MT}, s48, s{S_T0}")
    A("s_lshr_b32 s3, s3, 1"); A("s_lshl_b32 s3, s3, 2")
    A(f"s_lshr_b32 s{S_T0}, s{S_SLOT}, 2")
    A(f"s_and_b32 s{S_T1}, s{S_T0}, 3"); A(f"s_add_u32 s3, s3, s{S_T1}")
    A(f"s_lshr_b32 s{S_T0}, s{S_T0}, 2"); A(f"s_lshl_b32 s{S_T0}, s{S_T0}, 4")
    A(f"s_add_u32 s3, s3, s{S_T0}")
    A(f"s_mov_b32 s{S_NT}, s3")
    A(f"s_lshl_b32 s{S_TOK}, s{S_MT}, 8")
    A(f"s_lshl_b32 s{S_T0}, s{S_WV}, 6")
    A(f"s_add_u32 s{S_TOK}, s{S_TOK}, s{S_T0}")
    A("s_waitcnt lgkmcnt(0)")
    srd(A, S_N, "s44", "s45", 4 * MB)
    srd(A, S_D, "s46", "s47", 256)
    ln_loads(A)
    ncode = 0
    if opt("tlbpf", 0):
        offs = []
        def pad_in_page(pg, base, stride, payload, count):
            for b in range(count):
                a0 = base + b * stride + payload
                a0 = (a0 + 127) // 128 * 128
                if pg * 2 * MB <= a0 and a0 + 128 <= (pg + 1) * 2 * MB and a0 + 128 <= base + (b + 1) * stride: return a0
            return None
        for pg in range(2, 27):
            for (base, stride, payload, count) in ((QKV_OFF, QKV_BLK, 131072, 96), (AH_OFF, AH_TB, 144 * 2048, 64), (PART_OFF, PART_PAIR, 65536, 128), (XN_OFF, XN_OCT, 16384, 256)):
                a0 = pad_in_page(pg, base, stride, payload, count)
                if a0 is not None: offs.append(a0); break
        offs.append(NRM_OFF + 600 * 1024)
        A(f"s_add_u32 s48, s{S_WS}, 0"); A(f"s_addc_u32 s49, s{S_WS+1}, 0")
        srd(A, S_O, "s48", "s49", 64 * MB)
        A(f"v_mov_b32 v8, {offs[0]}")
        for i, o in enumerate(offs[1:], 1):
            A(f"s_mov_b32 s48, {o}"); A(f"v_writelane_b32 v8, s48, {i}")
        A(f"buffer_load_dword a201, v8, s[{S_O}:{S_O+3}], 0 offen"); ncode += 1
        A(f"s_load_dwordx2 s[48:49], s[0:1], {KARG['w2']}"); A(f"s_load_dwordx2 s[60:61], s[0:1], {KARG['wo']}"); A(f"s_load_dwordx2 s[62:63], s[0:1], {KARG['out']}")
        A("v_and_b32 v8, 3, v1"); A("v_lshlrev_b32 v8, 21, v8")
        A("s_waitcnt lgkmcnt(0)")
        for (p, size) in ((48, 3584 * 2048), (60, 1024 * 2048), (62, 4 * MB)):
            srd(A, S_O, f"s{p}", f"s{p+1}", size)
            A(f"buffer_load_dword a201, v8, s[{S_O}:{S_O+3}], 0 offen"); ncode += 1
    if opt("codepf", 1) == 1: code_prefetch()
    A(f"s_add_u32 s44, s{S_WS}, {XN_OFF}"); A(f"s_addc_u32 s45, s{S_WS+1}, 0")
    srd(A, S_X, "s44", "s45", 256 * XN_OCT)
    A("s_cmp_lt_u32 s3, 16")
    A(f"s_cbranch_scc1 L_{name}_qkv")
    A(f"s_mov_b32 s{S_TYPE}, 2")
    A("s_sub_u32 s3, s3, 16")
    A(f"s_mul_i32 s{S_BLK0}, s3, 7")
    A(f"s_mov_b32 s{S_LDW}, 7168")
    A("s_mov_b32 s4, s6"); A("s_mov_b32 s5, s7")
    A(f"s_mov_b32 s{S_T1}, {1024 * 7168}")
    A("s_movk_i32 s59, 28")
    A(f"s_branch L_{name}_common")
    A.label(f"L_{name}_qkv")
    A(f"s_mov_b32 s{S_LDW}, 6144")
    A(f"s_mov_b32 s{S_T1}, {1024 * 6144}")
    A(f"s_mul_i32 s{S_BLK0}, s3, 6")
    A("s_movk_i32 s59, 24")
    A("s_cmp_lt_u32 s3, 10"); A(f"s_cselect_b32 s{S_TYPE}, 0, 1")
    A("s_cmp_eq_u32 s3, 10"); A(f"s_cselect_b32 s{S_TYPE}, 3, s{S_TYPE}")
    A.label(f"L_{name}_common")
    A(f"s_lshl_b32 s{S_T0}, s{S_BLK0}, 6")
    A(f"s_add_u32 s4, s4, s{S_T0}")
    A("s_addc_u32 s5, s5, 0")
    A(f"s_sub_u32 s{S_T1}, s{S_T1}, s{S_T0}")
    srd(A, S_W, "s4", "s5", f"s{S_T1}")
    A(f"s_lshl_b32 s{S_STG}, s{S_LDW}, 6")
    A(f"s_lshl_b32 s{S_T0}, s{S_WV}, 4")
    A(f"s_movk_i32 s{S_T2}, 2341")
    for i in range(7):
        A(f"v_add_u32 v3, {64 * i}, v1")
        A(f"v_mul_u32_u24 v4, s{S_T2}, v3")
        A("v_lshrrev_b32 v4, 16, v4")
        A("v_mul_u32_u24 v6, 28, v4")
        A("v_sub_u32 v6, v3, v6")
        A("v_lshrrev_b32 v7, 3, v4")
        A("v_lshlrev_b32 v7, 1, v7")
        A("v_xor_b32 v6, v6, v7")
        A(f"v_add_u32 v4, s{S_T0}, v4")
        A(f"v_mul_lo_u32 v4, v4, s{S_LDW}")
        A(f"v_lshl_add_u32 v4, v6, 4, v4")
        if i & 3: A(f"v_subrev_u32 v4, {(i & 3) * 1024}, v4")
        A("v_cmp_gt_u32 vcc, s59, v6"); A("v_mov_b32 v7, 0x7ffff000"); A("s_nop 0")
        A(f"v_cndmask_b32 {v(10 + i)}, v7, v4, vcc")
    A(f"s_mul_i32 s{S_M0A}, s{S_WV}, {16 * PITCH}")
    prol = []
    def dma_p(i, base):
        return f"buffer_load_dwordx4 {v(base + i)}, s[{S_W}:{S_W+3}], s{S_WOFF} offen offset:{(i & 3) * 1024} lds"
    def stage_dma(st, lo, hi, base):
        for i in range(lo, hi):
            if i == 0:
                A(f"s_mul_i32 s{S_WOFF}, s{S_STG}, {st}")
                A(f"s_add_u32 s{S_M0CUR}, s{S_M0A}, {(st & 3) * SLOT}")
                A(f"s_mov_b32 m0, s{S_M0CUR}"); A("s_nop 0")
            if i == 4:
                for z in w_hi(): A(z)
                A("s_nop 0")
            A(dma_p(i, base)); prol.append(('W', st, i))
    NPRE = opt("l1_npre", 0)
    for st in range(NPRE):
        stage_dma(st, 0, 7 if st < PD - 1 else 4, 10)
    ntouch = len(prol) - 7 + ncode + (nc[0] if opt("codepf", 1) == 1 else 0)
    def zero_flags():
        A("s_cmp_lt_u32 s2, 8")
        A(f"s_cbranch_scc0 L_{name}_nz2")
        A(f"s_add_u32 s44, s{S_WS}, {FLAGS_OFF}"); A(f"s_addc_u32 s45, s{S_WS+1}, 0")
        srd(A, S_N, "s44", "s45", NFLAGS * 128)
        A("v_mov_b32 v20, 0"); A("v_mov_b32 v21, 0"); A("v_mov_b32 v22, 0"); A("v_mov_b32 v23, 0")
        A("v_lshlrev_b32 v9, 4, v2")
        A(f"s_mul_i32 s{S_T1}, s2, {49 * 128}")
        A(f"buffer_store_dwordx4 v[20:23], v9, s[{S_N}:{S_N+3}], s{S_T1} offen sc1")
        A(f"s_add_u32 s{S_T1}, s{S_T1}, 4096")
        A("v_cmp_gt_u32 vcc, 136, v2")
        A("s_and_saveexec_b64 s[44:45], vcc")
        A(f"s_cbranch_execz L_{name}_nz")
        A(f"buffer_store_dwordx4 v[20:23], v9, s[{S_N}:{S_N+3}], s{S_T1} offen sc1")
        A.label(f"L_{name}_nz")
        A("s_mov_b64 exec, s[44:45]")
        A.label(f"L_{name}_nz2")
    ln_compute(A, 7 + ntouch, 't', True, zero_flags)
    prol.clear()
    NLATE = opt("l1_nlate", 0)
    for st in range(NPRE, PD - NLATE):
        stage_dma(st, 0, 7 if st < PD - 1 else 4, 10)
    T3 = opt("l1_touch3", 0)
    if T3:
        A(f"s_cmp_eq_u32 s{S_WV}, 0"); A(f"s_cbranch_scc1 L_{name}_nt")
        A(f"s_cmp_eq_u32 s{S_TYPE}, 2"); A(f"s_cbranch_scc1 L_{name}_nt")
        A(f"s_load_dwordx2 s[44:45], s[0:1], {KARG['w1']}")
        A("v_lshrrev_b32 v3, 2, v1"); A("v_lshlrev_b32 v3, 3, v3"); A(f"v_add_u32 v3, s{S_MT}, v3")
        A("v_and_b32 v4, 3, v1"); A("v_lshlrev_b32 v4, 7, v4")
        A(f"s_sub_u32 s{S_T0}, s{S_WV}, 1")
        A(f"s_mul_i32 s{S_T1}, s{S_NT}, 448")
        A("s_waitcnt lgkmcnt(0)")
        A(f"s_add_u32 s44, s44, s{S_T1}"); A("s_addc_u32 s45, s45, 0"); A(f"s_sub_u32 s{S_T1}, {1024 * 7168}, s{S_T1}")
        srd(A, S_O, "s44", "s45", f"s{S_T1}")
        A("v_mul_u32_u24 v5, 7168, v3"); A("v_add_u32 v5, v5, v4")
        A(f"s_mul_i32 s{S_T2}, s{S_T0}, {128 * 7168}")
        for k in range(3):
            A(f"buffer_load_dword v21, v5, s[{S_O}:{S_O+3}], s{S_T2} offen")
            if k < 2: A(f"s_add_u32 s{S_T2}, s{S_T2}, {3 * 128 * 7168}")
        if T3 >= 2:
            A("v_mul_u32_u24 v5, 6144, v3"); A("v_add_u32 v5, v5, v4")
            A(f"s_mul_i32 s{S_T2}, s{S_T0}, {128 * 6144}")
            for k in range(3):
                A(f"buffer_load_dword v21, v5, s[{S_W}:{S_W+3}], s{S_T2} offen")
                if k < 2: A(f"s_add_u32 s{S_T2}, s{S_T2}, {3 * 128 * 6144}")
        A.label(f"L_{name}_nt")
    A("v_and_b32 v3, 15, v1"); A("v_lshrrev_b32 v4, 4, v1")
    A("v_lshrrev_b32 v5, 2, v3"); A("v_lshl_add_u32 v5, v4, 3, v5"); A(f"v_mul_u32_u24 v5, {PITCH}, v5")
    A("v_and_b32 v6, 3, v3"); A("v_lshl_add_u32 v5, v6, 3, v5")
    A("v_and_b32 v6, 1, v4"); A("v_lshlrev_b32 v6, 5, v6")
    A(f"v_add_u32 {v(V_TRE)}, v5, v6"); A(f"v_sub_u32 {v(V_TRO)}, v5, v6")
    A(f"v_lshrrev_b32 v5, 3, v3"); A(f"v_mul_u32_u24 v5, {XN_OCT}, v5")
    A("v_lshl_add_u32 v5, v4, 7, v5"); A("v_and_b32 v6, 7, v3")
    A(f"v_lshl_add_u32 {v(V_X)}, v6, 4, v5")
    A("v_mov_b32 v17, v1")
    for i in range(7): A(f"v_mov_b32 {v(V_DMA + i)}, {v(10 + i)}")
    A(f"s_lshr_b32 s{S_XO}, s{S_TOK}, 3"); A(f"s_mul_i32 s{S_XO}, s{S_XO}, {XN_OCT}")
    for tb in range(1, 4): A(f"s_add_u32 s{S_XO + tb}, s{S_XO}, {tb * 2 * XN_OCT}")
    A(f"s_cmp_eq_u32 s{S_WV}, 0")
    A(f"s_cbranch_scc0 L_{name}_got")
    A(f"s_lshl_b32 s{S_T0}, s{S_MT}, 5")
    A(f"v_mov_b32 v19, s{S_T0}"); A("v_mov_b32 v20, 0"); A("v_cmp_eq_u32 vcc, 0, v17"); A("s_nop 1"); A("v_cndmask_b32 v19, v19, v20, vcc")
    A(f"s_mov_b32 s{S_T1}, 0x8000")
    if opt('lnsleep0', 0): A(f"s_sleep {opt('lnsleep0', 0)}")
    A.label(f"L_{name}_poll")
    A(f"buffer_load_dword v18, v19, s[{S_D}:{S_D+3}], 0 offen sc1")
    A("s_waitcnt vmcnt(0)")
    A("v_cmp_le_u32 vcc, 32, v18")
    A(f"s_sub_u32 s{S_T1}, s{S_T1}, 1")
    A(f"s_cmp_eq_u32 s{S_T1}, 0")
    A(f"s_cbranch_scc1 L_{name}_got")
    A("s_nop 1")
    A("s_cmp_eq_u64 vcc, -1")
    A(f"s_cbranch_scc1 L_{name}_got")
    A(f"s_sleep {opt('lnsleep', 3)}")
    A(f"s_branch L_{name}_poll")
    A.label(f"L_{name}_got")
    A("s_waitcnt vmcnt(0)")
    A("s_barrier")
    stamp(A, 'ln_got')
    prol.clear()
    if opt("l1_ltouch", 1) and RX() == 8:
        A("v_lshrrev_b32 v18, 2, v17"); A(f"s_lshl_b32 s{S_T0}, s{S_WV}, 3"); A(f"v_add_u32 v18, s{S_T0}, v18")
        A("v_lshlrev_b32 v18, 3, v18"); A(f"v_add_u32 v18, s{S_MT}, v18"); A(f"v_mul_lo_u32 v18, v18, s{S_LDW}")
        A("v_and_b32 v19, 3, v17"); A("v_lshl_add_u32 v18, v19, 7, v18")
        A("v_cmp_gt_u32 vcc, 32, v17"); A("v_mov_b32 v19, 0x7ffff000"); A("s_nop 0"); A("v_cndmask_b32 v19, v19, v18, vcc")
        A(f"s_lshl_b32 s62, s{S_LDW}, 8")
        A("s_mov_b32 s60, s62")
    for s_ in range(XD):
        for tb in range(4):
            A(x_load(s_ % RX(), tb, (s_ % RX()) * 512))
    for st in range(PD - NLATE, PD):
        stage_dma(st, 0, 7 if st < PD - 1 else 4, V_DMA)
    late = list(prol)
    A(f"s_movk_i32 s{S_IT}, {32 // RX()}")
    sc = " sc1"
    c = (32 ** -0.5) * math.log2(math.e)
    def start_loop(tag, ncb, swap):
        for r in tr_main(0, ncb): A(r)
        A(f"s_waitcnt vmcnt({len(late)})")
        stamp(A, 1)
        gen_mainloop(A, name + tag, ncb, swap, PD, XD, prol)
        A("s_waitcnt vmcnt(0)")
        A("s_barrier")
        stamp(A, 2)
        A("v_and_b32 v3, 15, v17"); A("v_lshrrev_b32 v4, 4, v17")
        A("v_lshrrev_b32 v7, 1, v4"); A("v_lshlrev_b32 v7, 10, v7")
        A("v_and_b32 v8, 1, v4"); A("v_lshl_add_u32 v7, v8, 9, v7")
    def qkv_srd():
        A(f"s_add_u32 s4, s{S_WS}, {QKV_OFF}"); A(f"s_addc_u32 s5, s{S_WS+1}, 0")
        srd(A, S_O, "s4", "s5", 96 * QKV_BLK)
    def qk_epi(ps):
        A(f"s_add_u32 s4, s{S_WS}, {NRM_OFF}"); A(f"s_addc_u32 s5, s{S_WS+1}, 0")
        srd(A, S_N, "s4", "s5", 512 * 1024)
        A("v_lshl_add_u32 v8, v3, 4, v7")
        A("v_lshrrev_b32 v9, 3, v3"); A("v_lshlrev_b32 v9, 8, v9")
        A("v_and_b32 v10, 7, v3"); A("v_lshl_add_u32 v9, v10, 4, v9")
        A("v_add_u32 v9, v9, v7")
        A("v_lshlrev_b32 v10, 2, v17")
        A("v_and_b32 v11, 1, v4"); A("v_cmp_eq_u32 s[48:49], 1, v11")
        A("v_cmp_le_u32 s[60:61], 2, v4")
        N0 = 24
        for p in ps:
            A(f"s_add_u32 s{S_T0}, s{S_BLK0}, {p}")
            A(f"s_cmp_lt_u32 s{S_T0}, 32")
            A(f"s_cselect_b32 s44, {fbits(c)}, 1.0")
            A(f"s_cselect_b32 s46, 0, 1")
            A("s_mov_b32 s45, s44")
            A(f"s_mul_i32 s{S_T1}, s{S_T0}, {QKV_BLK}")
            A(f"s_lshl_b32 s{S_T2}, s{S_TOK}, 6")
            A(f"s_add_u32 s{S_T1}, s{S_T1}, s{S_T2}")
            A(f"s_lshl_b32 s{S_T2}, s{S_T0}, 13")
            A(f"s_lshl_b32 s{S_T3}, s{S_TOK}, 2")
            A(f"s_add_u32 s{S_T2}, s{S_T2}, s{S_T3}")
            A(f"s_cmp_eq_u32 s46, 1")
            A("s_cselect_b64 vcc, -1, 0")
            A("s_lshr_b32 s47, 256, s46")
            A(f"s_add_u32 s47, s47, s{S_T1}")
            A("v_cndmask_b32 v11, v8, v9, vcc")
            EF = [(acc(2 * p, tb), acc(2 * p + 1, tb)) for tb in range(4)]
            for (E, F) in EF:
                for R in (E, E + 2, F, F + 2): A(f"v_pk_mul_f32 {v(R, 2)}, {v(R, 2)}, s[44:45]")
            for tb, (E, F) in enumerate(EF): A(f"v_pk_mul_f32 {v(N0 + 2 * tb, 2)}, {v(E, 2)}, {v(E, 2)}")
            for k in range(3):
                for tb, (E, F) in enumerate(EF):
                    R = (E + 2, F, F + 2)[k]
                    A(f"v_pk_fma_f32 {v(N0 + 2 * tb, 2)}, {v(R, 2)}, {v(R, 2)}, {v(N0 + 2 * tb, 2)}")
            for tb, (E, F) in enumerate(EF):
                A(f"v_cvt_pk_bf16_f32 {v(E)}, {v(E)}, {v(E + 1)}")
                A(f"v_cvt_pk_bf16_f32 {v(E + 1)}, {v(E + 2)}, {v(E + 3)}")
                A(f"v_cvt_pk_bf16_f32 {v(E + 2)}, {v(F)}, {v(F + 1)}")
                A(f"v_cvt_pk_bf16_f32 {v(E + 3)}, {v(F + 2)}, {v(F + 3)}")
                so = "s47" if tb & 1 else f"s{S_T1}"
                A(f"buffer_store_dwordx4 {v(E, 4)}, v11, s[{S_O}:{S_O+3}], {so} offen offset:{(tb >> 1) * 2048}{sc}")
            for tb in range(4): A(f"v_add_f32 {v(N0 + 2 * tb)}, {v(N0 + 2 * tb)}, {v(N0 + 2 * tb + 1)}")
            for tb in range(4): A(f"v_mov_b32 {v(20 + tb)}, {v(N0 + 2 * tb)}")
            for tb in range(4): A(f"v_permlane32_swap_b32 {v(N0 + 2 * tb)}, {v(20 + tb)}")
            for tb in range(4): A(f"v_add_f32 {v(N0 + 2 * tb)}, {v(N0 + 2 * tb)}, {v(20 + tb)}")
            for tb in range(4): A(f"v_mov_b32 {v(20 + tb)}, {v(N0 + 2 * tb)}")
            for tb in range(4): A(f"v_permlane16_swap_b32 {v(N0 + 2 * tb)}, {v(20 + tb)}")
            for tb in range(4): A(f"v_add_f32 {v(N0 + 2 * tb)}, {v(N0 + 2 * tb)}, {v(20 + tb)}")
            A(f"v_cndmask_b32 {v(N0)}, {v(N0)}, {v(N0 + 2)}, s[48:49]")
            A(f"v_cndmask_b32 {v(N0 + 4)}, {v(N0 + 4)}, {v(N0 + 6)}, s[48:49]")
            A(f"v_cndmask_b32 {v(N0)}, {v(N0)}, {v(N0 + 4)}, s[60:61]")
            A(f"buffer_store_dword {v(N0)}, v10, s[{S_N}:{S_N+3}], s{S_T2} offen sc1")
    def v_epi(cbs):
        A("v_lshl_add_u32 v6, v3, 4, v7")
        A(f"s_mul_i32 s{S_T3}, s{S_BLK0}, {QKV_BLK}")
        A(f"s_lshl_b32 s47, s{S_TOK}, 6")
        A(f"s_add_u32 s{S_T3}, s{S_T3}, s47")
        for kb in range(2):
            for cb in cbs:
                E = acc(cb, 2 * kb); F = acc(cb, 2 * kb + 1)
                A(f"v_cvt_pk_bf16_f32 {v(E)}, {v(E)}, {v(E + 1)}")
                A(f"v_cvt_pk_bf16_f32 {v(E + 1)}, {v(E + 2)}, {v(E + 3)}")
                A(f"v_cvt_pk_bf16_f32 {v(E + 2)}, {v(F)}, {v(F + 1)}")
                A(f"v_cvt_pk_bf16_f32 {v(E + 3)}, {v(F + 2)}, {v(F + 3)}")
                A(f"s_add_u32 s47, s{S_T3}, {(cb >> 1) * QKV_BLK + kb * 2048}")
                A(f"buffer_store_dwordx4 {v(E, 4)}, v6, s[{S_O}:{S_O+3}], s47 offen offset:{(cb & 1) * 256}{sc}")
    A(f"s_cmp_eq_u32 s{S_TYPE}, 2"); A(f"s_cbranch_scc1 L_{name}_hpath")
    A(f"s_cmp_eq_u32 s{S_TYPE}, 1"); A(f"s_cbranch_scc1 L_{name}_vpath")
    A(f"s_cmp_eq_u32 s{S_TYPE}, 3"); A(f"s_cbranch_scc1 L_{name}_mpath")
    start_loop("_n", 12, lambda cb: False)
    qkv_srd(); qk_epi(range(6))
    A(f"s_branch L_{name}_sigqkv")
    A.label(f"L_{name}_mpath")
    start_loop("_m", 12, lambda cb: cb >= 8)
    qkv_srd(); v_epi(range(8, 12)); qk_epi(range(4))
    A(f"s_branch L_{name}_sigqkv")
    A.label(f"L_{name}_vpath")
    start_loop("_v", 12, lambda cb: True)
    qkv_srd(); v_epi(range(12))
    A(f"s_branch L_{name}_sigqkv")
    A.label(f"L_{name}_hpath")
    start_loop("_h", 14, lambda cb: False)
    A(f"s_add_u32 s4, s{S_WS}, {AH_OFF}"); A(f"s_addc_u32 s5, s{S_WS+1}, 0")
    srd(A, S_O, "s4", "s5", 64 * AH_TB)
    A("v_lshl_add_u32 v7, v3, 4, v7")
    A(f"s_lshr_b32 s{S_T1}, s{S_TOK}, 5")
    A(f"s_mul_i32 s{S_T1}, s{S_T1}, {AH_TB}")
    A(f"s_lshl_b32 s{S_T2}, s{S_BLK0}, 11")
    A(f"s_add_u32 s{S_T1}, s{S_T1}, s{S_T2}")
    A(f"s_add_u32 s{S_T1}, s{S_T1}, {32 * 2048}")
    A(f"s_mov_b32 s44, {fbits(-math.log2(math.e))}"); A("s_mov_b32 s45, s44")
    A("s_mov_b32 s46, 1.0"); A("s_mov_b32 s47, 1.0")
    EARLY = opt("earlyp2", 0) and not opt("hdefer", 0)
    def silu_groups(ps, TP, so, sbase, stmp):
        for p in ps:
            for tb in range(4):
                E = acc(2 * p, tb); F = acc(2 * p + 1, tb)
                prs = [E, E + 2, F, F + 2]
                for k, R in enumerate(prs): A(f"v_pk_mul_f32 {v(TP[k], 2)}, {v(R, 2)}, s[44:45]")
                for k in range(4):
                    A(f"v_exp_f32 {v(TP[k])}, {v(TP[k])}"); A(f"v_exp_f32 {v(TP[k] + 1)}, {v(TP[k] + 1)}")
                for k in range(4): A(f"v_pk_add_f32 {v(TP[k], 2)}, {v(TP[k], 2)}, s[46:47]")
                for k in range(4):
                    A(f"v_rcp_f32 {v(TP[k])}, {v(TP[k])}"); A(f"v_rcp_f32 {v(TP[k] + 1)}, {v(TP[k] + 1)}")
                defer = (4 * p + tb) & 1 and opt("hdefer", 0)
                if not defer: A(f"s_add_u32 s{stmp}, s{sbase}, {(tb >> 1) * AH_TB + p * 2048 + (tb & 1) * 256}")
                for k, R in enumerate(prs): A(f"v_pk_mul_f32 {v(R, 2)}, {v(R, 2)}, {v(TP[k], 2)}")
                A(f"v_cvt_pk_bf16_f32 {v(E)}, {v(E)}, {v(E + 1)}")
                A(f"v_cvt_pk_bf16_f32 {v(E + 1)}, {v(E + 2)}, {v(E + 3)}")
                A(f"v_cvt_pk_bf16_f32 {v(E + 2)}, {v(F)}, {v(F + 1)}")
                A(f"v_cvt_pk_bf16_f32 {v(E + 3)}, {v(F + 2)}, {v(F + 3)}")
                q = 4 * p + tb
                if defer:
                    for r in range(4): A(f"v_accvgpr_write_b32 {a(128 + 4 * (q >> 1) + r)}, {v(E + r)}")
                else:
                    A(f"buffer_store_dwordx4 {v(E, 4)}, v7, s[{so}:{so+3}], s{stmp} offen{sc}")
    NP1 = opt("earlynp", 4) if EARLY else 7
    silu_groups(range(NP1), [8, 10, 12, 14], S_O, S_T1, S_T2)
    A(f"s_mov_b32 s55, s{S_T1}")
    A(f"s_mov_b32 s{S_HSIG}, s{S_MT}")
    A(f"s_branch {fin}")
    if EARLY:
        A.label("L_silu2")
        silu_groups(range(NP1, 7), [24, 26, 28, 30], 20, 55, 59)
        A("s_branch L_p2b")
    A.label(f"L_{name}_sigqkv")
    A(f"s_add_u32 s4, s{S_WS}, {FLAGS_OFF + PRIV_LINE * 128}"); A(f"s_addc_u32 s5, s{S_WS+1}, 0")
    srd(A, S_N, "s4", "s5", 256 * 128)
    A(f"s_mul_i32 s{S_T0}, s{S_NT}, 6")
    A("v_lshrrev_b32 v3, 3, v17"); A(f"v_add_u32 v3, s{S_T0}, v3")
    A("v_cmp_gt_u32 vcc, 48, v17"); A("s_nop 3"); A("s_mov_b64 s[44:45], vcc")
    A("v_and_b32 v3, 31, v3")
    A("v_lshrrev_b32 v4, 2, v3")
    A("v_and_b32 v3, 3, v3"); A("v_lshlrev_b32 v3, 3, v3"); A("v_and_b32 v5, 7, v17"); A("v_or_b32 v3, v3, v5")
    A("v_lshl_add_u32 v3, v3, 3, v4"); A("v_lshlrev_b32 v3, 7, v3")
    A("v_mov_b32 v4, 1")
    A("s_waitcnt vmcnt(0)")
    A("s_barrier")
    A(f"s_cmp_eq_u32 s{S_WV}, 0")
    A(f"s_cbranch_scc0 L_{name}_nosq")
    A("s_mov_b64 exec, s[44:45]")
    A(f"s_cbranch_execz L_{name}_nosq2")
    A(f"buffer_atomic_add v4, v3, s[{S_N}:{S_N+3}], 0 offen")
    A.label(f"L_{name}_nosq2")
    A("s_mov_b64 exec, -1")
    A.label(f"L_{name}_nosq")
    A(f"s_mov_b32 s{S_HSIG}, -1")
    if not opt("w2touch", 1): A(f"s_branch {fin}")
    A(f"s_load_dwordx2 s[4:5], s[0:1], {KARG['wo']}")
    A(f"s_load_dwordx2 s[6:7], s[0:1], {KARG['w2']}")
    A(f"s_lshl_b32 s{S_T0}, s{S_NT}, 3"); A(f"s_add_u32 s{S_T0}, s{S_T0}, s{S_MT}")
    A(f"s_lshl_b32 s{S_T1}, s{S_WV}, 6"); A(f"v_add_u32 v9, s{S_T1}, v17"); A("v_lshlrev_b32 v9, 7, v9")
    A("s_waitcnt lgkmcnt(0)")
    A(f"s_mul_i32 s{S_T1}, s{S_T0}, 16384"); A(f"s_add_u32 s4, s4, s{S_T1}"); A("s_addc_u32 s5, s5, 0")
    srd(A, S_W, "s4", "s5", 16384)
    A(f"buffer_load_dword v10, v9, s[{S_W}:{S_W+3}], 0 offen")
    A(f"s_mul_i32 s{S_T1}, s{S_T0}, 57344"); A(f"s_add_u32 s6, s6, s{S_T1}"); A("s_addc_u32 s7, s7, 0")
    srd(A, S_W, "s6", "s7", 57344)
    A(f"buffer_load_dword v10, v9, s[{S_W}:{S_W+3}], 0 offen")
    A(f"s_mov_b32 s{S_T1}, 32768")
    A(f"buffer_load_dword v10, v9, s[{S_W}:{S_W+3}], s{S_T1} offen")
    A.label(fin)
    stamp(A, 'epi_end')
```
